```python
import torch

def _softmax(x, axis=-1):
    return torch.softmax(x, dim=axis)

def _gelu(x):
    return torch.nn.functional.gelu(x, approximate='tanh')

def _silu(x):
    return torch.nn.functional.silu(x)

def _sigmoid(x):
    return torch.sigmoid(x)

def _layernorm(x, axis=-1, eps=1e-05):
    m = x.mean(dim=axis, keepdim=True)
    v = x.var(dim=axis, keepdim=True, unbiased=False)
    return (x - m) / torch.sqrt(v + eps)

def _scatter_add(tgt, idx, src, axis=0):
    return tgt.clone().index_add_(axis, idx, src)

def _segment_sum(src, seg, n):
    out = torch.zeros((n,) + src.shape[1:], dtype=src.dtype)
    return out.index_add_(0, seg, src)

def _pad(x, pw):
    flat = tuple((v for pair in reversed(pw) for v in pair))
    return torch.nn.functional.pad(x, flat)
kernel_name = 'sequential_preLN__mha_block__mixer_gmlp__prompt'

def setup_inputs():

    _w = lambda a: (lambda t: t.to(torch.bfloat16) if t.is_floating_point() else t)(torch.as_tensor(a))

    def _A_setup():
        B, S, D, H = (1, 2048, 512, 32)
        return {'x': _w((lambda *s: torch.randn(*s, dtype=torch.bfloat16) * 0.05)(B, S, D)), 'wqkv': _w((lambda *s: torch.randn(*s, dtype=torch.bfloat16) * 0.05)(D, 3 * D)), 'wo': _w((lambda *s: torch.randn(*s, dtype=torch.bfloat16) * 0.05)(D, D))}
    _A_in = _A_setup()

    def _B_setup():
        B, S, D, F = (1, 2048, 512, 1792)
        Fh = F // 2
        return {'x': _w((lambda *s: torch.randn(*s, dtype=torch.bfloat16) * 0.05)(B, S, D)), 'w_in': _w((lambda *s: torch.randn(*s, dtype=torch.bfloat16) * 0.4)(D, 2 * Fh)), 'w_sp': _w(0.01 * (lambda *s: torch.randn(*s, dtype=torch.bfloat16) * 0.4)(S, S)), 'b_sp': _w(1.0 + 0.01 * (lambda *s: torch.randn(*s, dtype=torch.bfloat16) * 0.05)(S)), 'w_out': _w((lambda *s: torch.randn(*s, dtype=torch.bfloat16) * 0.05)(Fh, D))}
    _B_in = _B_setup()
    return {'A_x': _A_in['x'], 'A_wqkv': _A_in['wqkv'], 'A_wo': _A_in['wo'], 'B_x': _B_in['x'], 'B_w_in': _B_in['w_in'], 'B_w_sp': _B_in['w_sp'], 'B_b_sp': _B_in['b_sp'], 'B_w_out': _B_in['w_out']}

def reference(A_x, A_wqkv, A_wo, B_x, B_w_in, B_w_sp, B_b_sp, B_w_out):

    def _A_ref(x, wqkv, wo):
        B, S, D = x.shape
        H = 32
        Dh = D // H
        qkv = (lambda x, *d: x.permute(*d))((x @ wqkv).reshape(B, S, 3, H, Dh), 2, 0, 3, 1, 4)
        q, k, v = (qkv[0], qkv[1], qkv[2])
        scores = torch.einsum('bhqd,bhkd->bhqk', q, k) * Dh ** (-0.5)
        p = _softmax(scores, axis=-1)
        o = torch.einsum('bhqk,bhkd->bhqd', p, v)
        return (lambda x, *d: x.permute(*d))(o, 0, 2, 1, 3).reshape(B, S, D) @ wo

    def _B_ref(x, w_in, w_sp, b_sp, w_out):
        B, S, D = x.shape
        F = w_in.shape[-1]
        Fh = F // 2
        z = _gelu(torch.einsum('bsd,df->bsf', x, w_in))
        z1 = z[..., :Fh].clone()
        z2 = _layernorm(z[..., Fh:], axis=-1)
        g = torch.einsum('ts,bsf->btf', w_sp, z2) + b_sp[None, :, None]
        return torch.einsum('bsf,fd->bsd', z1 * g, w_out)
    x = A_x
    h = x + _A_ref(_layernorm(x, axis=-1), A_wqkv, A_wo)
    h2 = h + _B_ref(_layernorm(h, axis=-1), B_w_in, B_w_sp, B_b_sp, B_w_out)
    return h2
```

```python
T = 2048; D = 512; H = 32; DH = 16; F = 1792; FH = 896

KA_X, KA_WQKV, KA_WO, KA_BX, KA_WIN, KA_WSP, KA_BSP, KA_WOUT, KA_OUT, KA_DBG, KA_WS = [8*i for i in range(11)]

WS_QF  = 0x000000
WS_KVF = 0x200000
WS_OF  = 0x600000
WS_HF  = 0x800000
WS_Z1F = 0xA00000
WS_Z2I = 0xE00000
WS_UF  = 0x1200000
WS_PS  = 0x1600000
WS_HS  = 0x1680000
WS_END = 0x1700000

def vr(a, n=1):
    return f"v{a}" if n == 1 else f"v[{a}:{a+n-1}]"
def sr(a, n=1):
    return f"s{a}" if n == 1 else f"s[{a}:{a+n-1}]"
def ar(a, n=1):
    return f"a{a}" if n == 1 else f"a[{a}:{a+n-1}]"

class K:
    def __init__(self, name, grid, block, lds):
        self.name = name; self.grid = grid; self.block = block; self.lds = lds
        self.lines = []
        self.nv = 0; self.ns = 0; self.na = 0
        self.vnext = 1; self.snext = 3
        self._lab = 0
        self.stamps = False
    def __call__(self, s):
        for ln in s.strip("\n").split("\n"):
            self.lines.append("  " + ln.strip())
    def label(self, l):
        self.lines.append(f"{self.L(l)}:")
    def L(self, l):
        return f"L_{self.name}_{l}"
    def valloc(self, n=1, align=1):
        a = (self.vnext + align - 1)//align*align
        self.vnext = a + n
        return a
    def salloc(self, n=1, align=1):
        a = (self.snext + align - 1)//align*align
        self.snext = a + n
        assert self.snext <= 100
        return a
    def srd(self, s, base_lo, base_hi, size):
        self(f"s_mov_b32 s{s}, s{base_lo}")
        self(f"s_and_b32 s{s+1}, s{base_hi}, 0xffff")
        self(f"s_mov_b32 s{s+2}, {size:#x}")
        self(f"s_mov_b32 s{s+3}, 0x20000")
    STAMP0 = 76
    def stamp(self, i):
        if not self.stamps: return
        if i == 0:
            self(f"s_memrealtime s[{self.STAMP0+20}:{self.STAMP0+21}]")
        self(f"s_memtime s[{self.STAMP0+2*i}:{self.STAMP0+2*i+1}]")
    def stamp_flush(self, kidx, n, vtmp):
        if not self.stamps: return
        S = self.STAMP0
        self(f"s_waitcnt vmcnt(0) lgkmcnt(0)")
        self(f"s_memrealtime s[{S+22}:{S+23}]")
        self(f"s_load_dwordx2 s[{S+18}:{S+19}], s[0:1], {KA_WS}")
        self(f"s_waitcnt lgkmcnt(0)")
        self(f"s_add_u32 s{S+18}, s{S+18}, {0x1800000 + kidx*16384}")
        self(f"s_addc_u32 s{S+19}, s{S+19}, 0")
        self(f"v_cmp_eq_u32 vcc, 0, v0")
        self(f"s_and_saveexec_b64 s[{S+16}:{S+17}], vcc")
        self(f"s_cbranch_execz {self.L('stampskip')}")
        self(f"s_lshl_b32 s{S+1}, s2, 6")
        self(f"v_mov_b32 v{vtmp}, s{S+1}")
        self(f"v_mov_b32 v{vtmp+1}, s{S+20}")
        self(f"global_store_dword v{vtmp}, v{vtmp+1}, s[{S+18}:{S+19}]")
        self(f"v_mov_b32 v{vtmp+1}, s{S+22}")
        self(f"global_store_dword v{vtmp}, v{vtmp+1}, s[{S+18}:{S+19}] offset:4")
        for i in range(1, n):
            self(f"s_sub_u32 s{S+1}, s{S+2*i}, s{S}")
            self(f"v_mov_b32 v{vtmp+1}, s{S+1}")
            self(f"global_store_dword v{vtmp}, v{vtmp+1}, s[{S+18}:{S+19}] offset:{4+4*i}")
        self.label('stampskip')
        self.snext = 100
    def header(self):
        return f"; @launch kernel={self.name} grid=({self.grid},1,1) block=({self.block},1,1) lds={self.lds}"
    def text(self):
        nv = max(self.vnext, 8)
        acc = (nv + 3)//4*4
        tot = acc + self.na
        body = "\n".join(self.lines)
        return f"""
.text
.globl {self.name}
.p2align 8
.type {self.name},@function
{self.name}:
  s_cmp_ge_u32 s2, {self.grid}
  s_cbranch_scc1 {self.L('exit')}
{body}
{self.L('exit')}:
  s_endpgm
.section .rodata,"a"
.p2align 6
.amdhsa_kernel {self.name}
  .amdhsa_next_free_vgpr {tot}
  .amdhsa_next_free_sgpr {max(self.snext, 16)}
  .amdhsa_accum_offset {acc}
  .amdhsa_group_segment_fixed_size 0
  .amdhsa_kernarg_size 88
  .amdhsa_user_sgpr_count 2
  .amdhsa_user_sgpr_kernarg_segment_ptr 1
  .amdhsa_system_sgpr_workgroup_id_x 1
.end_amdhsa_kernel
"""

HEADER = """; Kernarg layout for this problem (88 bytes, ptrs only, base s[0:1]):
"""

def emit(kernels, path):
    s = HEADER + "\n".join(k.header() for k in kernels) + "\n"
    s += '.amdgcn_target "amdgcn-amd-amdhsa--gfx950"\n'
    seen = set()
    for k in kernels:
        if k.name in seen: continue
        seen.add(k.name)
        s += k.text()
    open(path, "w").write(s)
```

```python
from common import *
import math, struct
def f32(x): return struct.unpack('<I', struct.pack('<f', x))[0]

def lane_consts(k, vLane, vTmp, vTr, natural):
    k(f"v_lshrrev_b32 v{vTmp}, 5, v{vLane}")
    k(f"v_lshlrev_b32 v{vTr}, {9 if natural else 8}, v{vTmp}")
    k(f"v_bfe_u32 v{vTmp}, v{vLane}, 2, 2")
    k(f"v_lshl_add_u32 v{vTr}, v{vTmp}, 6, v{vTr}")
    k(f"v_bfe_u32 v{vTmp}, v{vLane}, 4, 1")
    k(f"v_lshl_add_u32 v{vTr}, v{vTmp}, 5, v{vTr}")
    k(f"v_and_b32 v{vTmp}, 3, v{vLane}")
    k(f"v_lshl_add_u32 v{vTr}, v{vTmp}, 3, v{vTr}")

def build(stamp=False, kidx=0):
    k = K("qkv_kernel", 256, 256, 163840)
    k.stamps = stamp
    XST = 96*1024
    sP = k.salloc(8, 4)
    sWSp = k.salloc(2, 2)
    sSX = k.salloc(4, 4); sSW = k.salloc(4, 4); sSO = k.salloc(4, 4)
    sWave = k.salloc(); sRb = k.salloc(); sHp = k.salloc(); sT0 = k.salloc(); sT1 = k.salloc()
    sXo = k.salloc(); sWo = k.salloc(); sXm = k.salloc(); sWm = k.salloc(); sTT = k.salloc()
    vLane = k.valloc(); vT0 = k.valloc(); vT1 = k.valloc(); vT2 = k.valloc(); vT3 = k.valloc()
    vXd = k.valloc(); vWd = k.valloc()
    vXa = k.valloc(4); vWa = k.valloc(4)
    vSum = k.valloc(); vSq = k.valloc(); vCs = k.valloc(3); vOnes = k.valloc()
    vX = k.valloc(16, 4)
    vW = [k.valloc(12, 4), k.valloc(12, 4)]
    vAcc = k.valloc(48, 4)
    vE = k.valloc(32, 4)
    k.stamp(0)
    k(f"s_load_dwordx4 {sr(sP,4)}, s[0:1], {KA_X}")
    k(f"s_load_dwordx2 {sr(sWSp,2)}, s[0:1], {KA_WS}")
    k(f"v_lshrrev_b32 v{vT0}, 6, v0")
    k(f"v_and_b32 v{vLane}, 63, v0")
    k(f"v_readfirstlane_b32 s{sWave}, v{vT0}")
    k(f"s_and_b32 s{sT0}, s2, 3")
    k(f"s_lshl_b32 s{sT0}, s{sT0}, 2")
    k(f"s_bfe_u32 s{sT1}, s2, {3 | (2<<16)}")
    k(f"s_add_u32 s{sRb}, s{sT0}, s{sT1}")
    k(f"s_bfe_u32 s{sT0}, s2, {2 | (1<<16)}")
    k(f"s_lshl_b32 s{sT0}, s{sT0}, 3")
    k(f"s_lshr_b32 s{sT1}, s2, 5")
    k(f"s_add_u32 s{sHp}, s{sT0}, s{sT1}")
    k(f"s_lshl_b32 s{sTT}, s{sRb}, 2")
    k(f"s_add_u32 s{sTT}, s{sTT}, s{sWave}")
    k(f"v_lshrrev_b32 v{vT0}, 4, v{vLane}")
    k(f"v_and_b32 v{vT1}, 7, v{vLane}")
    k(f"v_xor_b32 v{vT1}, v{vT1}, v{vT0}")
    k(f"v_lshrrev_b32 v{vT0}, 3, v{vLane}")
    k(f"v_lshlrev_b32 v{vT0}, 10, v{vT0}")
    k(f"v_lshl_add_u32 v{vXd}, v{vT1}, 4, v{vT0}")
    k(f"v_xor_b32 v{vT3}, 64, v{vXd}")
    k(f"v_lshrrev_b32 v{vT0}, 2, v{vLane}")
    k(f"v_mul_u32_u24 v{vT0}, 3072, v{vT0}")
    k(f"v_and_b32 v{vT1}, 3, v{vLane}")
    k(f"v_lshl_add_u32 v{vWd}, v{vT1}, 4, v{vT0}")
    k(f"s_lshl_b32 s{sXo}, s{sTT}, 15")
    k(f"s_lshl_b32 s{sXm}, s{sWave}, 14")
    k(f"s_add_u32 s{sXm}, s{sXm}, {XST}")
    k(f"s_mul_i32 s{sWo}, s{sWave}, {16*3072}")
    k(f"s_lshl_b32 s{sT0}, s{sHp}, 6")
    k(f"s_add_u32 s{sWo}, s{sWo}, s{sT0}")
    k(f"s_mul_i32 s{sWm}, s{sWave}, 3072")
    k(f"s_waitcnt lgkmcnt(0)")
    k.srd(sSX, sP, sP+1, T*D*2)
    k.srd(sSW, sP+2, sP+3, D*3*D*2)
    def issue(s):
        for i in range(4):
            k(f"s_add_u32 m0, s{sXm}, {(s&3)*4096 + i*1024}")
            k(f"s_add_u32 s{sT0}, s{sXo}, {s*128 + i*8192}")
            k(f"buffer_load_dwordx4 v{vXd if i%2==0 else vT3}, {sr(sSX,4)}, s{sT0} offen lds")
        k(f"s_add_u32 m0, s{sWm}, {s*12288}")
        k(f"s_add_u32 s{sT0}, s{sWo}, {s*64*3072}")
        for c in range(3):
            k(f"buffer_load_dwordx4 v{vWd}, {sr(sSW,4)}, s{sT0} offen offset:{c*1024} lds")
    for s in range(4): issue(s)
    k.stamp(1)
    k.srd(sSO, sWSp, sWSp+1, WS_END)
    lane_consts(k, vLane, vT0, vT1, natural=True)
    k(f"v_and_b32 v{vT0}, 31, v{vLane}")
    k(f"v_bfe_u32 v{vT2}, v{vLane}, 1, 3")
    k(f"v_lshrrev_b32 v{vSum}, 5, v{vLane}")
    k(f"v_xor_b32 v{vT2}, v{vT2}, v{vSum}")
    k(f"v_lshlrev_b32 v{vT0}, 7, v{vT0}")
    k(f"v_add_u32 v{vT0}, s{sXm}, v{vT0}")
    for i in range(4):
        k(f"s_xor_b32 s{sT0}, s{sWave}, {i}")
        k(f"s_lshl_b32 s{sT1}, s{sT0}, 1")
        k(f"v_xor_b32 v{vSq}, s{sT1}, v{vT2}")
        k(f"v_lshl_add_u32 v{vXa+i}, v{vSq}, 4, v{vT0}")
        k(f"s_mul_i32 s{sT0}, s{sT0}, 3072")
        k(f"v_add_u32 v{vWa+i}, s{sT0}, v{vT1}")
    k(f"v_mov_b32 v{vSum}, 0"); k(f"v_mov_b32 v{vSq}, 0")
    for c in range(3): k(f"v_mov_b32 v{vCs+c}, 0")
    k(f"v_mov_b32 v{vOnes}, 0x3f803f80")
    for i in range(48): k(f"v_mov_b32 v{vAcc+i}, 0")
    def wread(buf, s, i):
        base = (s & 3)*12288
        for c in range(3):
            k(f"ds_read_b64_tr_b16 {vr(vW[buf]+4*c,2)}, v{vWa+i} offset:{base + c*1024}")
            k(f"ds_read_b64_tr_b16 {vr(vW[buf]+4*c+2,2)}, v{vWa+i} offset:{base + c*1024 + 256}")
    for s in range(8):
        rem = min(3, 7-s)
        k(f"s_waitcnt vmcnt({rem*7})")
        k(f"s_barrier")
        if s == 0: k.stamp(2)
        if s == 4:
            for i in range(4): k(f"v_add_u32 v{vWa+i}, {4*12288}, v{vWa+i}")
        for i in range(4):
            k(f"ds_read_b128 {vr(vX+4*i,4)}, v{vXa+i} offset:{(s&3)*4096}")
        wread(0, s, 0)
        k(f"s_waitcnt lgkmcnt(6)")
        if s + 4 < 8: issue(s+4)
        for i in range(4):
            b = i & 1
            if i < 3:
                wread(1-b, s, i+1)
                k(f"s_waitcnt lgkmcnt(6)")
            else:
                k(f"s_waitcnt lgkmcnt(0)")
            X = vr(vX+4*i, 4)
            k(f"v_mfma_f32_32x32x16_bf16 {vr(vAcc,16)}, {vr(vW[b],4)}, {X}, {vr(vAcc,16)}")
            for j in range(4):
                k(f"v_dot2_f32_bf16 v{vSum}, v{vX+4*i+j}, v{vOnes}, v{vSum}")
            k(f"v_mfma_f32_32x32x16_bf16 {vr(vAcc+16,16)}, {vr(vW[b]+4,4)}, {X}, {vr(vAcc+16,16)}")
            for j in range(4):
                k(f"v_dot2_f32_bf16 v{vSq}, v{vX+4*i+j}, v{vX+4*i+j}, v{vSq}")
            k(f"v_mfma_f32_32x32x16_bf16 {vr(vAcc+32,16)}, {X}, {vr(vW[b]+8,4)}, {vr(vAcc+32,16)}")
            if i == 0:
                for j in range(4):
                    for c in range(3):
                        k(f"v_dot2_f32_bf16 v{vCs+c}, v{vW[b]+4*c+j}, v{vOnes}, v{vCs+c}")
    k.stamp(3)
    k(f"s_nop 2")
    for r in [vSum, vSq, vCs, vCs+1, vCs+2]:
        k(f"v_mov_b32 v{vT0}, v{r}")
        k(f"s_nop 1")
        k(f"v_permlane32_swap_b32 v{vT0}, v{r}")
        k(f"s_nop 1")
        k(f"v_add_f32 v{r}, v{r}, v{vT0}")
    k(f"v_and_b32 v{vT0}, 31, v{vLane}")
    k(f"v_lshlrev_b32 v{vT0}, 2, v{vT0}")
    k(f"v_add_u32 v{vT1}, s{sXm}, v{vT0}")
    for c in range(3):
        k(f"ds_write_b32 v{vT1}, v{vCs+c} offset:{c*128}")
    k(f"v_mul_f32 v{vSum}, {f32(1/512):#x}, v{vSum}")
    k(f"v_mul_f32 v{vSq}, {f32(1/512):#x}, v{vSq}")
    k(f"v_fma_f32 v{vSq}, -v{vSum}, v{vSum}, v{vSq}")
    k(f"v_max_f32 v{vSq}, 0, v{vSq}")
    k(f"v_add_f32 v{vSq}, {f32(1e-5):#x}, v{vSq}")
    k(f"v_rsq_f32 v{vSq}, v{vSq}")
    k(f"s_nop 0")
    k(f"v_mul_f32 v{vSum}, v{vSum}, v{vSq}")
    k(f"v_sub_f32 v{vSum}, 0, v{vSum}")
    k(f"ds_write_b32 v{vT1}, v{vSq} offset:1024")
    k(f"ds_write_b32 v{vT1}, v{vSum} offset:1152")
    k(f"s_waitcnt lgkmcnt(0)")
    k(f"s_barrier")
    k(f"v_add_u32 v{vT2}, {XST}, v{vT0}")
    for w in range(4):
        for c in range(3):
            k(f"ds_read_b32 v{vE+3*w+c}, v{vT2} offset:{w*16384 + c*128}")
    k(f"s_waitcnt lgkmcnt(0)")
    for c in range(3):
        k(f"v_add_f32 v{vCs+c}, v{vE+c}, v{vE+3+c}")
        k(f"v_add_f32 v{vE+6+c}, v{vE+6+c}, v{vE+9+c}")
        k(f"v_add_f32 v{vCs+c}, v{vCs+c}, v{vE+6+c}")
    for c in range(2):
        k(f"ds_write_b32 v{vT1}, v{vCs+c} offset:{512 + c*128}")
    k(f"v_lshrrev_b32 v{vT2}, 5, v{vLane}")
    k(f"v_lshlrev_b32 v{vT2}, 4, v{vT2}")
    k(f"v_add_u32 v{vT2}, s{sXm}, v{vT2}")
    k(f"s_waitcnt lgkmcnt(0)")
    for c in range(2):
        for g in range(4):
            k(f"ds_read_b128 {vr(vE+16*c+4*g,4)}, v{vT2} offset:{512 + c*128 + 32*g}")
    k(f"v_lshlrev_b32 v{vT0}, 4, v{vLane}")
    k(f"v_and_b32 v{vT1}, 0x33, v{vLane}")
    k(f"v_bfe_u32 v{vT3}, v{vLane}, 2, 1")
    k(f"v_lshl_add_u32 v{vT1}, v{vT3}, 3, v{vT1}")
    k(f"v_bfe_u32 v{vT3}, v{vLane}, 3, 1")
    k(f"v_lshl_add_u32 v{vT1}, v{vT3}, 2, v{vT1}")
    k(f"v_lshlrev_b32 v{vT1}, 4, v{vT1}")
    k(f"v_bfe_u32 v{vT3}, v{vLane}, 4, 1")
    k(f"v_lshlrev_b32 v{vXd}, 17, v{vT3}")
    k(f"v_lshrrev_b32 v{vT3}, 5, v{vLane}")
    k(f"v_lshl_add_u32 v{vXd}, v{vT3}, 8, v{vXd}")
    k(f"v_and_b32 v{vT3}, 15, v{vLane}")
    k(f"v_lshl_add_u32 v{vXd}, v{vT3}, 4, v{vXd}")
    k(f"s_lshl_b32 s{sT0}, s{sHp}, 7")
    k(f"s_add_u32 s{sT0}, s{sT0}, s{sTT}")
    k(f"s_lshl_b32 s{sXo}, s{sT0}, 10")
    k(f"s_lshl_b32 s{sWo}, s{sT0}, 11")
    k(f"s_add_u32 s{sWo}, s{sWo}, {WS_KVF:#x}")
    CQ = 0.25*1.4426950408889634
    k(f"v_mul_f32 v{vWd}, {f32(CQ):#x}, v{vSq}")
    k(f"v_mul_f32 v{vOnes}, {f32(CQ):#x}, v{vSum}")
    k(f"s_waitcnt lgkmcnt(0)")
    for c in range(2):
        a, b = (vWd, vOnes) if c == 0 else (vSq, vSum)
        for r in range(16):
            k(f"v_mul_f32 v{vAcc+16*c+r}, v{vAcc+16*c+r}, v{a}")
            k(f"v_fmac_f32 v{vAcc+16*c+r}, v{vE+16*c+r}, v{b}")
        for r in range(8):
            k(f"v_cvt_pk_bf16_f32 v{vX+8*c+r}, v{vAcc+16*c+2*r}, v{vAcc+16*c+2*r+1}")
        if c == 0:
            k(f"buffer_store_dwordx4 {vr(vX,4)}, v{vT0}, {sr(sSO,4)}, s{sXo} offen")
            k(f"s_add_u32 s{sXo}, s{sXo}, 65536")
            k(f"buffer_store_dwordx4 {vr(vX+4,4)}, v{vT0}, {sr(sSO,4)}, s{sXo} offen")
            for g in range(4):
                k(f"ds_read_b128 {vr(vE+4*g,4)}, v{vT2} offset:{1024 + 32*g}")
        else:
            k(f"buffer_store_dwordx4 {vr(vX+8,4)}, v{vT1}, {sr(sSO,4)}, s{sWo} offen")
            k(f"s_add_u32 s{sT0}, s{sWo}, 131072")
            k(f"buffer_store_dwordx4 {vr(vX+12,4)}, v{vT1}, {sr(sSO,4)}, s{sT0} offen")
            for g in range(4):
                k(f"ds_read_b128 {vr(vE+16+4*g,4)}, v{vT2} offset:{1152 + 32*g}")
    k(f"s_waitcnt lgkmcnt(0)")
    for r in range(16):
        k(f"v_mul_f32 v{vAcc+32+r}, v{vAcc+32+r}, v{vE+r}")
        k(f"v_fmac_f32 v{vAcc+32+r}, v{vE+16+r}, v{vCs+2}")
    for r in range(8):
        k(f"v_cvt_pk_bf16_f32 v{vW[0]+r}, v{vAcc+32+2*r}, v{vAcc+32+2*r+1}")
    k(f"buffer_store_dwordx4 {vr(vW[0],4)}, v{vXd}, {sr(sSO,4)}, s{sWo} offen offset:1024")
    k(f"buffer_store_dwordx4 {vr(vW[0]+4,4)}, v{vXd}, {sr(sSO,4)}, s{sWo} offen offset:1536")
    k.stamp(4)
    k.stamp_flush(kidx, 5, vT0)
    return k
```

```python
from common import *

def build(stamp=False, kidx=0):
    k = K("attn_kernel", 256, 512, 135168)
    k.stamps = stamp
    sWS = k.salloc(2, 2)
    sSRD = k.salloc(4, 4)
    sMask = k.salloc(2, 2)
    sWave = k.salloc(); sHead = k.salloc(); sQb = k.salloc(); sT0 = k.salloc(); sT1 = k.salloc()
    sCnt = k.salloc(); sPhase = k.salloc(); sOoff = k.salloc(); sKV = k.salloc()
    vL16 = k.valloc()
    vKa = k.valloc(); vVa = k.valloc(); vIdx = k.valloc(); vT0 = k.valloc(); vT1 = k.valloc(); vVa0 = k.valloc()
    vQ = k.valloc(4, 4)
    vKf = k.valloc(4, 4)
    vV0 = k.valloc(4, 4)
    vV1 = [k.valloc(4, 4), k.valloc(4, 4)]
    vS = [k.valloc(16, 4), k.valloc(16, 4)]
    vNM = k.valloc(16, 4)
    vO = k.valloc(16, 4)

    k.stamp(0)
    k(f"s_load_dwordx2 {sr(sWS,2)}, s[0:1], {KA_WS}")
    k(f"v_lshrrev_b32 v{vT0}, 6, v0")
    k(f"v_and_b32 v{vT1}, 63, v0")
    k(f"v_readfirstlane_b32 s{sWave}, v{vT0}")
    k(f"v_lshlrev_b32 v{vL16}, 4, v{vT1}")
    k(f"s_and_b32 s{sT0}, s2, 7")
    k(f"s_lshl_b32 s{sT0}, s{sT0}, 2")
    k(f"s_lshr_b32 s{sT1}, s2, 6")
    k(f"s_add_u32 s{sHead}, s{sT0}, s{sT1}")
    k(f"s_lshr_b32 s{sQb}, s2, 3")
    k(f"s_and_b32 s{sQb}, s{sQb}, 7")
    k(f"v_lshrrev_b32 v{vT0}, 5, v{vT1}")
    k(f"v_and_b32 v{vVa0}, 15, v{vT1}")
    k(f"v_lshl_add_u32 v{vVa0}, v{vT0}, 4, v{vVa0}")
    k(f"v_lshlrev_b32 v{vVa0}, 4, v{vVa0}")
    k(f"v_add_u32 v{vVa0}, 1024, v{vVa0}")
    k(f"v_mov_b32 v{vIdx}, 0xdddddddd")
    k(f"s_mov_b32 s{sMask}, 0xffff")
    k(f"s_mov_b32 s{sMask+1}, 0xffff")
    k(f"s_lshl_b32 s{sT0}, s{sQb}, 3")
    k(f"s_add_u32 s{sT0}, s{sT0}, s{sWave}")
    k(f"s_lshl_b32 s{sOoff}, s{sT0}, 5")
    k(f"s_add_u32 s{sOoff}, s{sOoff}, s{sHead}")
    k(f"s_lshl_b32 s{sOoff}, s{sOoff}, 10")
    k(f"s_add_u32 s{sOoff}, s{sOoff}, {WS_OF:#x}")
    k(f"s_lshl_b32 s{sT1}, s{sHead}, 6")
    k(f"s_add_u32 s{sT0}, s{sT0}, s{sT1}")
    k(f"s_lshl_b32 s{sT0}, s{sT0}, 10")
    assert WS_QF == 0
    k(f"s_lshl_b32 s{sKV}, s{sHead}, 17")
    k(f"s_lshl_b32 s{sT1}, s{sWave}, 11")
    k(f"s_add_u32 s{sKV}, s{sKV}, s{sT1}")
    k(f"s_add_u32 s{sKV}, s{sKV}, {WS_KVF:#x}")
    k(f"s_waitcnt lgkmcnt(0)")
    k.srd(sSRD, sWS, sWS+1, WS_END)
    k(f"buffer_load_dwordx4 {vr(vQ,4)}, v{vL16}, {sr(sSRD,4)}, s{sT0} offen")
    for s in range(8):
        k(f"s_add_u32 s{sT0}, s{sQb}, {s}")
        k(f"s_and_b32 s{sT0}, s{sT0}, 7")
        k(f"s_lshl_b32 s{sT0}, s{sT0}, 14")
        k(f"s_add_u32 m0, s{sT1}, {s*16384}")
        k(f"s_add_u32 s{sT0}, s{sT0}, s{sKV}")
        k(f"buffer_load_dwordx4 v{vL16}, {sr(sSRD,4)}, s{sT0} offen lds")
        k(f"buffer_load_dwordx4 v{vL16}, {sr(sSRD,4)}, s{sT0} offen offset:1024 lds")
    for r in [vV0, vV1[0], vV1[1]]:
        for i in range(4):
            k(f"v_mov_b32 v{r+i}, 0x3f803f80")
    k(f"s_mov_b32 s{sPhase}, 0")
    k(f"s_mov_b32 s{sCnt}, 3")
    k.stamp(1)
    k(f"s_waitcnt vmcnt(14)")
    k(f"s_barrier")
    k.stamp(2)
    k(f"ds_read_b128 {vr(vKf,4)}, v{vL16}")
    k(f"s_waitcnt lgkmcnt(0)")
    k(f"v_mfma_f32_32x32x16_bf16 {vr(vS[0],16)}, {vr(vKf,4)}, {vr(vQ,4)}, 0")
    k(f"s_nop 15")
    k(f"v_max3_f32 v{vT0}, v{vS[0]}, v{vS[0]+1}, v{vS[0]+2}")
    for i in range(3, 15, 2):
        k(f"v_max3_f32 v{vT0}, v{vT0}, v{vS[0]+i}, v{vS[0]+i+1}")
    k(f"v_max_f32 v{vT0}, v{vT0}, v{vS[0]+15}")
    k.label("setmax")
    k(f"v_mov_b32 v{vT1}, v{vT0}")
    k(f"s_nop 1")
    k(f"v_permlane32_swap_b32 v{vT0}, v{vT1}")
    k(f"s_nop 1")
    k(f"v_max_f32 v{vT0}, v{vT0}, v{vT1}")
    for i in range(16):
        k(f"v_sub_f32 v{vNM+i}, 0, v{vT0}")
    for i in range(16):
        k(f"v_mov_b32 v{vO+i}, 0")
    for i in range(8, 16):
        k(f"v_mov_b32 v{vS[1]+i}, 0")
    k(f"v_mov_b32 v{vKa}, v{vL16}")
    k(f"v_mov_b32 v{vVa}, v{vVa0}")
    k(f"ds_read_b128 {vr(vKf,4)}, v{vKa}")
    k(f"s_waitcnt lgkmcnt(0)")
    k(f"v_mfma_f32_32x32x16_bf16 {vr(vS[0],16)}, {vr(vKf,4)}, {vr(vQ,4)}, {vr(vNM,16)}")
    k(f"ds_read_b128 {vr(vKf,4)}, v{vKa} offset:2048")
    k(f"s_mov_b64 exec, {sr(sMask,2)}")
    k(f"ds_read_b128 {vr(vV0,4)}, v{vVa}")
    k(f"ds_read_b128 {vr(vV1[0],4)}, v{vVa} offset:512")
    k(f"s_mov_b64 exec, -1")
    k(f"s_nop 7")
    k(".p2align 3")
    k.label("loop")
    for p in range(2):
        S = vS[p]; Sn = vS[1-p]
        e = lambda i: k(f"v_exp_f32 v{S+i}, v{S+i}")
        e(0); e(1)
        k(f"v_smfmac_f32_32x32x32_bf16 {vr(vO,16)}, {vr(vV1[1-p],4)}, {vr(Sn+8,8)}, v{vIdx}")
        e(2); e(3); e(4); e(5)
        k(f"s_waitcnt lgkmcnt(2)")
        k(f"v_mfma_f32_32x32x16_bf16 {vr(Sn,16)}, {vr(vKf,4)}, {vr(vQ,4)}, {vr(vNM,16)}")
        k(f"ds_read_b128 {vr(vKf,4)}, v{vKa} offset:{(p+2)*2048}")
        e(6); e(7); e(8); e(9)
        k(f"s_waitcnt lgkmcnt(1)")
        k(f"v_smfmac_f32_32x32x32_bf16 {vr(vO,16)}, {vr(vV0,4)}, {vr(S,8)}, v{vIdx}")
        k(f"s_mov_b64 exec, {sr(sMask,2)}")
        k(f"ds_read_b128 {vr(vV0,4)}, v{vVa} offset:{(p+1)*2048}")
        k(f"ds_read_b128 {vr(vV1[1-p],4)}, v{vVa} offset:{(p+1)*2048+512}")
        k(f"s_mov_b64 exec, -1")
        e(10); e(11); e(12)
        if p == 1:
            k(f"v_add_u32 v{vKa}, 4096, v{vKa}")
            k(f"v_add_u32 v{vVa}, 4096, v{vVa}")
            k(f"s_sub_u32 s{sCnt}, s{sCnt}, 1")
            k(f"s_cmp_lg_u32 s{sCnt}, 0")
        e(13); e(14); e(15)
    k(f"s_cbranch_scc1 {k.L('loop')}")
    k(f"s_cmp_ge_u32 s{sPhase}, 2")
    k(f"s_cbranch_scc1 {k.L('fin')}")
    k(f"s_cmp_eq_u32 s{sPhase}, 1")
    k(f"s_cbranch_scc1 {k.L('ph2')}")
    k(f"s_mov_b32 s{sPhase}, 1")
    k(f"s_mov_b32 s{sCnt}, 12")
    k.stamp(3)
    k(f"s_waitcnt vmcnt(8)")
    k(f"s_barrier")
    k.stamp(4)
    k(f"s_waitcnt lgkmcnt(0)")
    k(f"s_branch {k.L('loop')}")
    k.label("ph2")
    k(f"s_mov_b32 s{sPhase}, 2")
    k(f"s_mov_b32 s{sCnt}, 17")
    k.stamp(5)
    k(f"s_waitcnt vmcnt(0)")
    k(f"s_barrier")
    k.stamp(6)
    k(f"s_waitcnt lgkmcnt(0)")
    k(f"s_branch {k.L('loop')}")
    k.label("fin")
    k(f"s_nop 0")
    k(f"v_smfmac_f32_32x32x32_bf16 {vr(vO,16)}, {vr(vV1[1],4)}, {vr(vS[1]+8,8)}, v{vIdx}")
    k(f"s_waitcnt lgkmcnt(0)")
    k(f"s_nop 15")
    k(f"v_add_f32 v{vT0}, abs(v{vO}), v{vO+8}")
    for i in range(1, 8):
        k(f"v_add_f32 v{vT0}, abs(v{vO+i}), v{vT0}")
    k(f"v_rcp_f32 v{vT1}, v{vO+8}")
    k(f"s_mov_b32 s{sT0}, 0x71800000")
    k(f"v_cmp_gt_f32 vcc, s{sT0}, v{vT0}")
    k(f"s_cmp_eq_u32 s{sPhase}, 3")
    k(f"s_cbranch_scc1 {k.L('store')}")
    k(f"s_cmp_eq_u64 vcc, -1")
    k(f"s_cbranch_scc0 {k.L('fallback')}")
    k.label("store")
    for i in range(8):
        k(f"v_mul_f32 v{vO+i}, v{vO+i}, v{vT1}")
    for i in range(4):
        k(f"v_cvt_pk_bf16_f32 v{vKf+i}, v{vO+2*i}, v{vO+2*i+1}")
    k(f"buffer_store_dwordx4 {vr(vKf,4)}, v{vL16}, {sr(sSRD,4)}, s{sOoff} offen")
    k.stamp(7)
    k.stamp_flush(kidx, 8, vT0)
    k(f"s_endpgm")
    k.label("fallback")
    k(f"s_mov_b32 s{sPhase}, 3")
    k(f"s_mov_b32 s{sCnt}, 64")
    k(f"v_mov_b32 v{vKa}, v{vL16}")
    k(f"v_mov_b32 v{vT0}, 0xff800000")
    k.label("fbloop")
    k(f"ds_read_b128 {vr(vKf,4)}, v{vKa}")
    k(f"v_add_u32 v{vKa}, 2048, v{vKa}")
    k(f"s_waitcnt lgkmcnt(0)")
    k(f"v_mfma_f32_32x32x16_bf16 {vr(vS[0],16)}, {vr(vKf,4)}, {vr(vQ,4)}, 0")
    k(f"s_nop 15")
    for i in range(0, 16, 2):
        k(f"v_max3_f32 v{vT0}, v{vT0}, v{vS[0]+i}, v{vS[0]+i+1}")
    k(f"s_sub_u32 s{sCnt}, s{sCnt}, 1")
    k(f"s_cmp_lg_u32 s{sCnt}, 0")
    k(f"s_cbranch_scc1 {k.L('fbloop')}")
    k(f"s_mov_b32 s{sCnt}, 32")
    k(f"s_branch {k.L('setmax')}")
    return k
```

```python
from common import *
from k1_qkv import lane_consts, f32

def build(mode, stamp, kidx):
    NKS = 32 if mode == 3 else 56
    HK = NKS//2
    WB = NKS*2048
    RED = WB
    XR = WB + 16384
    lds = XR + 8192
    k = K("wo_kernel" if mode == 3 else "wout_kernel", 256, 256, lds)
    k.stamps = stamp
    sPw = k.salloc(2, 2); sPx = k.salloc(2, 2); sWSp = k.salloc(2, 2)
    sSW = k.salloc(4, 4); sSX = k.salloc(4, 4); sSWS = k.salloc(4, 4)
    sWave = k.salloc(); sKh = k.salloc(); sTh = k.salloc(); sTT = k.salloc(); sCb = k.salloc()
    sT0 = k.salloc(); sT1 = k.salloc(); sAo = k.salloc(); sWo = k.salloc(); sWm = k.salloc()
    vLane = k.valloc(); vL16 = k.valloc(); vT0 = k.valloc(); vT1 = k.valloc(); vT2 = k.valloc()
    vWd = k.valloc(); vWa = k.valloc()
    vR = k.valloc(8, 4)
    vW = [k.valloc(8, 4), k.valloc(8, 4)]
    vAcc = k.valloc(32, 4)
    vE = k.valloc(16, 4)
    vA = k.valloc(4*HK, 4)
    k.stamp(0)
    k(f"s_load_dwordx2 {sr(sPw,2)}, s[0:1], {KA_WO if mode == 3 else KA_WOUT}")
    k(f"s_load_dwordx2 {sr(sPx,2)}, s[0:1], {KA_X if mode == 3 else KA_OUT}")
    k(f"s_load_dwordx2 {sr(sWSp,2)}, s[0:1], {KA_WS}")
    k(f"v_lshrrev_b32 v{vT0}, 6, v0")
    k(f"v_and_b32 v{vLane}, 63, v0")
    k(f"v_readfirstlane_b32 s{sWave}, v{vT0}")
    k(f"v_lshlrev_b32 v{vL16}, 4, v{vLane}")
    k(f"s_and_b32 s{sT0}, s2, 7")
    k(f"s_lshl_b32 s{sT0}, s{sT0}, 2")
    k(f"s_bfe_u32 s{sT1}, s2, {3 | (2<<16)}")
    k(f"s_add_u32 s{sT0}, s{sT0}, s{sT1}")
    k(f"s_lshr_b32 s{sCb}, s2, 5")
    k(f"s_lshr_b32 s{sKh}, s{sWave}, 1")
    k(f"s_and_b32 s{sTh}, s{sWave}, 1")
    k(f"s_lshl_b32 s{sTT}, s{sT0}, 1")
    k(f"s_add_u32 s{sTT}, s{sTT}, s{sTh}")
    k(f"s_mul_i32 s{sAo}, s{sTT}, {NKS*1024}")
    k(f"s_mul_i32 s{sT0}, s{sKh}, {HK*1024}")
    k(f"s_add_u32 s{sAo}, s{sAo}, s{sT0}")
    k(f"s_add_u32 s{sAo}, s{sAo}, {(WS_OF if mode == 3 else WS_UF):#x}")
    k(f"v_lshrrev_b32 v{vT0}, 2, v{vLane}")
    k(f"v_lshlrev_b32 v{vT0}, 10, v{vT0}")
    k(f"v_and_b32 v{vT1}, 3, v{vLane}")
    k(f"v_lshl_add_u32 v{vWd}, v{vT1}, 4, v{vT0}")
    k(f"s_mul_i32 s{sWo}, s{sKh}, {HK*16384}")
    k(f"s_lshl_b32 s{sT0}, s{sCb}, 7")
    k(f"s_add_u32 s{sWo}, s{sWo}, s{sT0}")
    k(f"s_lshl_b32 s{sT0}, s{sTh}, 6")
    k(f"s_add_u32 s{sWo}, s{sWo}, s{sT0}")
    k(f"s_mul_i32 s{sWm}, s{sKh}, {HK*2048}")
    k(f"s_lshl_b32 s{sT0}, s{sTh}, 10")
    k(f"s_add_u32 s{sWm}, s{sWm}, s{sT0}")
    k(f"s_waitcnt lgkmcnt(0)")
    k.srd(sSW, sPw, sPw+1, NKS*16*1024)
    k.srd(sSWS, sWSp, sWSp+1, WS_END)
    k.srd(sSX, sPx, sPx+1, T*D*2)
    if mode == 3:
        k(f"v_lshrrev_b32 v{vT2}, 4, v{vLane}")
        k(f"v_xor_b32 v{vT1}, v{vT1}, v{vT2}")
        k(f"v_lshl_add_u32 v{vT2}, v{vT1}, 4, v{vT0}")
        k(f"s_lshl_b32 s{sT0}, s{sTT}, 15")
        k(f"s_lshl_b32 s{sT1}, s{sCb}, 7")
        k(f"s_add_u32 s{sT0}, s{sT0}, s{sT1}")
        k(f"s_lshl_b32 s{sT1}, s{sKh}, 6")
        k(f"s_add_u32 s{sT0}, s{sT0}, s{sT1}")
        k(f"s_lshl_b32 s{sT1}, s{sWave}, 11")
        k(f"s_add_u32 m0, s{sT1}, {XR}")
        k(f"s_nop 0")
        k(f"buffer_load_dwordx4 v{vT2}, {sr(sSX,4)}, s{sT0} offen lds")
        k(f"s_add_u32 m0, m0, 1024")
        k(f"s_add_u32 s{sT0}, s{sT0}, 16384")
        k(f"buffer_load_dwordx4 v{vT2}, {sr(sSX,4)}, s{sT0} offen lds")
    else:
        k(f"s_lshl_b32 s{sT0}, s{sTT}, 5")
        k(f"s_lshl_b32 s{sT1}, s{sCb}, 2")
        k(f"s_add_u32 s{sT0}, s{sT0}, s{sT1}")
        k(f"s_lshl_b32 s{sT1}, s{sKh}, 1")
        k(f"s_add_u32 s{sT0}, s{sT0}, s{sT1}")
        k(f"s_lshl_b32 s{sT0}, s{sT0}, 10")
        k(f"s_add_u32 s{sT0}, s{sT0}, {WS_HF:#x}")
        k(f"buffer_load_dwordx4 {vr(vR,4)}, v{vL16}, {sr(sSWS,4)}, s{sT0} offen")
        k(f"buffer_load_dwordx4 {vr(vR+4,4)}, v{vL16}, {sr(sSWS,4)}, s{sT0} offen offset:1024")
    k(f"s_mov_b32 m0, s{sWm}")
    for i in range(HK):
        if i % 4 == 0 and i: k(f"s_add_u32 s{sAo}, s{sAo}, 4096")
        k(f"buffer_load_dwordx4 {vr(vA+4*i,4)}, v{vL16}, {sr(sSWS,4)}, s{sAo} offen offset:{(i%4)*1024}")
        k(f"buffer_load_dwordx4 v{vWd}, {sr(sSW,4)}, s{sWo} offen lds")
        if i < HK-1:
            k(f"s_add_u32 m0, m0, 2048")
            k(f"s_add_u32 s{sWo}, s{sWo}, 16384")
    k.stamp(1)
    lane_consts(k, vLane, vT0, vWa, natural=False)
    k(f"s_mul_i32 s{sT0}, s{sKh}, {HK*2048}")
    k(f"v_add_u32 v{vWa}, s{sT0}, v{vWa}")
    for i in range(32): k(f"v_mov_b32 v{vAcc+i}, 0")
    SG = 4
    def wread(b, i):
        for c in range(2):
            k(f"ds_read_b64_tr_b16 {vr(vW[b]+4*c,2)}, v{vWa} offset:{i*2048 + c*1024}")
            k(f"ds_read_b64_tr_b16 {vr(vW[b]+4*c+2,2)}, v{vWa} offset:{i*2048 + c*1024 + 512}")
    for i in range(HK):
        b = i & 1
        if i % SG == 0:
            k(f"s_waitcnt vmcnt({2*(HK - i - SG)})")
            k(f"s_barrier")
            if i == 0: k.stamp(2)
            wread(b, i)
        if (i+1) % SG != 0:
            wread(1-b, i+1)
            k(f"s_waitcnt lgkmcnt(4)")
        else:
            k(f"s_waitcnt lgkmcnt(0)")
        for c in range(2):
            k(f"v_mfma_f32_32x32x16_bf16 {vr(vAcc+16*c,16)}, {vr(vW[b]+4*c,4)}, {vr(vA+4*i,4)}, {vr(vAcc+16*c,16)}")
    k.stamp(3)
    k(f"s_lshl_b32 s{sT0}, s{sWave}, 12")
    k(f"s_add_u32 s{sT0}, s{sT0}, {RED}")
    k(f"v_add_u32 v{vT0}, s{sT0}, v{vL16}")
    k(f"s_xor_b32 s{sT0}, s{sT0}, 8192")
    assert RED % 16384 == 0
    k(f"v_add_u32 v{vT1}, s{sT0}, v{vL16}")
    k(f"s_nop 10")
    k(f"s_cmp_eq_u32 s{sKh}, 0")
    k(f"s_cbranch_scc1 {k.L('kh0')}")
    for g in range(4):
        k(f"ds_write_b128 v{vT0}, {vr(vAcc+4*g,4)} offset:{g*1024}")
    k(f"s_waitcnt lgkmcnt(0)")
    for r in range(16):
        k(f"v_mov_b32 v{vAcc+r}, v{vAcc+16+r}")
    k(f"s_branch {k.L('red')}")
    k.label("kh0")
    for g in range(4):
        k(f"ds_write_b128 v{vT0}, {vr(vAcc+16+4*g,4)} offset:{g*1024}")
    k.label("red")
    k(f"s_waitcnt lgkmcnt(0)")
    k(f"s_barrier")
    for g in range(4):
        k(f"ds_read_b128 {vr(vE+4*g,4)}, v{vT1} offset:{g*1024}")
    if mode == 3:
        k(f"v_and_b32 v{vT0}, 31, v{vLane}")
        k(f"v_lshlrev_b32 v{vT0}, 6, v{vT0}")
        k(f"v_lshrrev_b32 v{vT2}, 5, v{vLane}")
        k(f"v_lshl_add_u32 v{vT0}, v{vT2}, 3, v{vT0}")
        k(f"s_lshl_b32 s{sT1}, s{sWave}, 11")
        k(f"s_add_u32 s{sT1}, s{sT1}, {XR}")
        k(f"v_add_u32 v{vT0}, s{sT1}, v{vT0}")
        k(f"v_bfe_u32 v{vT2}, v{vLane}, 2, 2")
        for p in range(4):
            k(f"v_xor_b32 v{vWd}, {p}, v{vT2}")
            k(f"v_lshl_add_u32 v{vWd}, v{vWd}, 4, v{vT0}")
            k(f"ds_read_b64 {vr(vR+2*p,2)}, v{vWd}")
    k(f"s_waitcnt lgkmcnt(0)")
    for r in range(16):
        k(f"v_add_f32 v{vAcc+r}, v{vAcc+r}, v{vE+r}")
    for r in range(8):
        k(f"v_lshlrev_b32 v{vE+2*r}, 16, v{vR+r}")
        k(f"v_and_b32 v{vE+2*r+1}, 0xffff0000, v{vR+r}")
    for r in range(16):
        k(f"v_add_f32 v{vAcc+r}, v{vAcc+r}, v{vE+r}")
    for r in range(8):
        k(f"v_cvt_pk_bf16_f32 v{vR+r}, v{vAcc+2*r}, v{vAcc+2*r+1}")
    if mode == 3:
        k(f"s_lshl_b32 s{sT0}, s{sTT}, 5")
        k(f"s_lshl_b32 s{sT1}, s{sCb}, 2")
        k(f"s_add_u32 s{sT0}, s{sT0}, s{sT1}")
        k(f"s_lshl_b32 s{sT1}, s{sKh}, 1")
        k(f"s_add_u32 s{sT0}, s{sT0}, s{sT1}")
        k(f"s_lshl_b32 s{sT0}, s{sT0}, 10")
        k(f"s_add_u32 s{sT0}, s{sT0}, {WS_HF:#x}")
        k(f"buffer_store_dwordx4 {vr(vR,4)}, v{vL16}, {sr(sSWS,4)}, s{sT0} offen")
        k(f"buffer_store_dwordx4 {vr(vR+4,4)}, v{vL16}, {sr(sSWS,4)}, s{sT0} offen offset:1024")
        k(f"v_mov_b32 v{vT0}, -1")
        k(f"v_lshlrev_b32 v{vT1}, 2, v0")
        k(f"s_lshl_b32 s{sT0}, s2, 10")
        k(f"s_add_u32 s{sT0}, s{sT0}, {WS_PS:#x}")
        k(f"buffer_store_dword v{vT0}, v{vT1}, {sr(sSWS,4)}, s{sT0} offen")
    else:
        k(f"s_nop 1")
        for m in range(2):
            k(f"v_permlane32_swap_b32 v{vR+4*m}, v{vR+4*m+2}")
            k(f"v_permlane32_swap_b32 v{vR+4*m+1}, v{vR+4*m+3}")
        k(f"v_and_b32 v{vT0}, 31, v{vLane}")
        k(f"v_lshlrev_b32 v{vT0}, 10, v{vT0}")
        k(f"v_lshrrev_b32 v{vT2}, 5, v{vLane}")
        k(f"v_lshl_add_u32 v{vT0}, v{vT2}, 4, v{vT0}")
        k(f"s_lshl_b32 s{sT0}, s{sTT}, 15")
        k(f"s_lshl_b32 s{sT1}, s{sCb}, 7")
        k(f"s_add_u32 s{sT0}, s{sT0}, s{sT1}")
        k(f"s_lshl_b32 s{sT1}, s{sKh}, 6")
        k(f"s_add_u32 s{sT0}, s{sT0}, s{sT1}")
        k(f"buffer_store_dwordx4 {vr(vR,4)}, v{vT0}, {sr(sSX,4)}, s{sT0} offen")
        k(f"buffer_store_dwordx4 {vr(vR+4,4)}, v{vT0}, {sr(sSX,4)}, s{sT0} offen offset:32")
    k.stamp(4)
    k.stamp_flush(kidx, 5, vT0)
    return k
def build3(stamp=False, kidx=0): return build(3, stamp, kidx)
def build6(stamp=False, kidx=0): return build(6, stamp, kidx)
```

```python
from common import *
from k1_qkv import lane_consts, f32

def build(stamp=False, kidx=0):
    SCR = 131072
    k = K("win_kernel", 224, 256, SCR + 8192)
    k.stamps = stamp
    sPw = k.salloc(2, 2); sWSp = k.salloc(2, 2)
    sSW = k.salloc(4, 4); sSWS = k.salloc(4, 4)
    sWave = k.salloc(); sTT = k.salloc(); sNb = k.salloc(); sRb = k.salloc()
    sT0 = k.salloc(); sT1 = k.salloc(); sAo = k.salloc(); sWo = k.salloc(); sScr = k.salloc(); sCnt = k.salloc()
    sC0 = k.salloc(); sC1 = k.salloc()
    vLane = k.valloc(); vL16 = k.valloc(); vT0 = k.valloc(); vT1 = k.valloc(); vT2 = k.valloc(); vT3 = k.valloc()
    vWd = k.valloc(); vWa = k.valloc()
    vSum = k.valloc(2, 2); vSq = vSum+1
    vCs = k.valloc(); vOnes = k.valloc()
    vW = [k.valloc(16, 4), k.valloc(16, 4)]
    vAcc = k.valloc(64, 4)
    vA = k.valloc(128, 4)
    k.stamp(0)
    k(f"s_load_dwordx2 {sr(sPw,2)}, s[0:1], {KA_WIN}")
    k(f"s_load_dwordx2 {sr(sWSp,2)}, s[0:1], {KA_WS}")
    k(f"v_lshrrev_b32 v{vT0}, 6, v0")
    k(f"v_and_b32 v{vLane}, 63, v0")
    k(f"v_readfirstlane_b32 s{sWave}, v{vT0}")
    k(f"v_lshlrev_b32 v{vL16}, 4, v{vLane}")
    k(f"s_and_b32 s{sT0}, s2, 7")
    k(f"s_lshl_b32 s{sT0}, s{sT0}, 1")
    k(f"s_bfe_u32 s{sT1}, s2, {3 | (1<<16)}")
    k(f"s_add_u32 s{sRb}, s{sT0}, s{sT1}")
    k(f"s_lshr_b32 s{sNb}, s2, 4")
    k(f"s_lshl_b32 s{sTT}, s{sRb}, 2")
    k(f"s_add_u32 s{sTT}, s{sTT}, s{sWave}")
    k(f"s_lshl_b32 s{sAo}, s{sTT}, 15")
    k(f"s_add_u32 s{sAo}, s{sAo}, {WS_HF:#x}")
    k(f"v_lshrrev_b32 v{vT0}, 2, v{vLane}")
    k(f"v_mul_u32_u24 v{vT0}, 3584, v{vT0}")
    k(f"v_and_b32 v{vT1}, 3, v{vLane}")
    k(f"v_lshl_add_u32 v{vWd}, v{vT1}, 4, v{vT0}")
    k(f"s_lshl_b32 s{sWo}, s{sNb}, 7")
    k(f"s_and_b32 s{sT0}, s{sWave}, 1")
    k(f"s_lshl_b32 s{sT0}, s{sT0}, 6")
    k(f"s_add_u32 s{sWo}, s{sWo}, s{sT0}")
    k(f"s_cmp_lt_u32 s{sWave}, 2")
    k(f"s_cselect_b32 s{sT0}, 1792, 0")
    k(f"s_add_u32 s{sWo}, s{sWo}, s{sT0}")
    k(f"s_lshl_b32 m0, s{sWave}, 10")
    k(f"s_lshl_b32 s{sScr}, s{sWave}, 11")
    k(f"s_add_u32 s{sScr}, s{sScr}, {SCR}")
    k(f"s_waitcnt lgkmcnt(0)")
    k.srd(sSW, sPw, sPw+1, D*F*2)
    k.srd(sSWS, sWSp, sWSp+1, WS_END)
    def issue(s):
        for i in range(4):
            ks = 4*s + i
            k(f"buffer_load_dwordx4 {vr(vA+4*ks,4)}, v{vL16}, {sr(sSWS,4)}, s{sAo} offen offset:{i*1024}")
            k(f"buffer_load_dwordx4 v{vWd}, {sr(sSW,4)}, s{sWo} offen lds")
            k(f"s_add_u32 m0, m0, 4096")
            k(f"s_add_u32 s{sWo}, s{sWo}, {16*3584}")
        k(f"s_add_u32 s{sAo}, s{sAo}, 4096")
    for s in range(7): issue(s)
    k.stamp(1)
    lane_consts(k, vLane, vT0, vWa, natural=False)
    k(f"s_lshl_b32 s{sT0}, s{sWave}, 10")
    k(f"v_add_u32 v{vT3}, s{sT0}, v{vWa}")
    k(f"v_mov_b32 v{vSum}, 0"); k(f"v_mov_b32 v{vSq}, 0"); k(f"v_mov_b32 v{vCs}, 0")
    k(f"v_mov_b32 v{vOnes}, 0x3f803f80")
    for i in range(64): k(f"v_mov_b32 v{vAcc+i}, 0")
    vC = [k.valloc(4, 4), k.valloc(4, 4)]
    def wread(b, ks):
        off = (ks % 16)*4096
        for c in range(4):
            k(f"ds_read_b64_tr_b16 {vr(vW[b]+4*c,2)}, v{vWa} offset:{off + c*1024}")
            k(f"ds_read_b64_tr_b16 {vr(vW[b]+4*c+2,2)}, v{vWa} offset:{off + c*1024 + 512}")
        k(f"ds_read_b64_tr_b16 {vr(vC[b],2)}, v{vT3} offset:{off}")
        k(f"ds_read_b64_tr_b16 {vr(vC[b]+2,2)}, v{vT3} offset:{off + 512}")
    for s in range(8):
        k(f"s_waitcnt vmcnt({8*(6 if s == 0 else 7-s)})")
        k(f"s_barrier")
        if s == 0: k.stamp(2)
        if s == 4:
            k(f"v_add_u32 v{vWa}, 65536, v{vWa}")
            k(f"v_add_u32 v{vT3}, 65536, v{vT3}")
        wread(0, 4*s)
        if s == 0: issue(7)
        for i in range(4):
            ks = 4*s + i; b = i & 1
            if i < 3:
                wread(1-b, ks+1)
                k(f"s_waitcnt lgkmcnt(10)")
            else:
                k(f"s_waitcnt lgkmcnt(0)")
            A = vA + 4*ks
            for c in range(4):
                k(f"v_mfma_f32_32x32x16_bf16 {vr(vAcc+16*c,16)}, {vr(vW[b]+4*c,4)}, {vr(A,4)}, {vr(vAcc+16*c,16)}")
                k(f"v_dot2_f32_bf16 v{vSum}, v{A+c}, v{vOnes}, v{vSum}")
                k(f"v_dot2_f32_bf16 v{vSq}, v{A+c}, v{A+c}, v{vSq}")
                k(f"v_dot2_f32_bf16 v{vCs}, v{vC[b]+c}, v{vOnes}, v{vCs}")
    k.stamp(3)
    k(f"s_nop 2")
    for r in [vSum, vSq, vCs]:
        k(f"v_mov_b32 v{vT0}, v{r}")
        k(f"s_nop 1")
        k(f"v_permlane32_swap_b32 v{vT0}, v{r}")
        k(f"s_nop 1")
        k(f"v_add_f32 v{r}, v{r}, v{vT0}")
    k(f"v_and_b32 v{vT0}, 31, v{vLane}")
    k(f"v_lshlrev_b32 v{vT0}, 2, v{vT0}")
    k(f"v_add_u32 v{vT1}, s{sScr}, v{vT0}")
    k(f"ds_write_b32 v{vT1}, v{vCs}")
    k(f"v_mul_f32 v{vSum}, {f32(1/512):#x}, v{vSum}")
    k(f"v_mul_f32 v{vSq}, {f32(1/512):#x}, v{vSq}")
    k(f"v_fma_f32 v{vSq}, -v{vSum}, v{vSum}, v{vSq}")
    k(f"v_max_f32 v{vSq}, 0, v{vSq}")
    k(f"v_add_f32 v{vSq}, {f32(1e-5):#x}, v{vSq}")
    k(f"v_rsq_f32 v{vCs}, v{vSq}")
    k(f"s_waitcnt lgkmcnt(0)")
    k(f"v_mul_f32 v{vOnes}, v{vSum}, v{vCs}")
    k(f"v_sub_f32 v{vOnes}, 0, v{vOnes}")
    va, vb = vCs, vOnes
    k(f"s_barrier")
    k(f"v_lshrrev_b32 v{vT2}, 5, v{vLane}")
    k(f"v_lshlrev_b32 v{vT2}, 4, v{vT2}")
    k(f"v_add_u32 v{vT2}, {SCR}, v{vT2}")
    vE = vA
    for c in range(4):
        for g in range(4):
            k(f"ds_read_b128 {vr(vE+16*c+4*g,4)}, v{vT2} offset:{c*2048 + 32*g}")
    C0 = -2*0.7978845608028654*1.4426950408889634
    C1 = C0*0.044715
    k(f"s_mov_b32 s{sC0}, {f32(C0):#x}")
    k(f"v_mov_b32 v{vT3}, {f32(C1):#x}")
    k(f"v_mov_b32 v{vSum}, 0"); k(f"v_mov_b32 v{vSq}, 0")
    vTm = vA + 64
    vP = vA + 80
    k(f"s_waitcnt lgkmcnt(0)")
    def gelu(c):
        for r in range(16):
            y = vAcc+16*c+r
            k(f"v_mul_f32 v{y}, v{y}, v{va}")
            k(f"v_fmac_f32 v{y}, v{vE+16*c+r}, v{vb}")
            k(f"v_mul_f32 v{vTm+r}, v{y}, v{y}")
            k(f"v_fma_f32 v{vTm+r}, v{vTm+r}, v{vT3}, s{sC0}")
            k(f"v_mul_f32 v{vTm+r}, v{vTm+r}, v{y}")
        for r in range(16):
            k(f"v_exp_f32 v{vTm+r}, v{vTm+r}")
        for r in range(16):
            k(f"v_add_f32 v{vTm+r}, 1.0, v{vTm+r}")
        for r in range(16):
            k(f"v_rcp_f32 v{vTm+r}, v{vTm+r}")
        for r in range(16):
            k(f"v_mul_f32 v{vAcc+16*c+r}, v{vAcc+16*c+r}, v{vTm+r}")
    for c in range(2):
        gelu(c)
        for r in range(16):
            k(f"v_add_f32 v{vSum}, v{vSum}, v{vAcc+16*c+r}")
            k(f"v_fmac_f32 v{vSq}, v{vAcc+16*c+r}, v{vAcc+16*c+r}")
    for r in [vSum, vSq]:
        k(f"v_mov_b32 v{vT0}, v{r}")
        k(f"s_nop 1")
        k(f"v_permlane32_swap_b32 v{vT0}, v{r}")
        k(f"s_nop 1")
        k(f"v_add_f32 v{r}, v{r}, v{vT0}")
    k(f"v_and_b32 v{vSq}, 0x7fffffff, v{vSq}")
    k(f"v_and_b32 v{vT0}, 31, v{vLane}")
    k(f"v_lshlrev_b32 v{vT0}, 3, v{vT0}")
    k(f"s_mul_i32 s{sAo}, s{sTT}, {14*256}")
    k(f"s_add_u32 s{sAo}, s{sAo}, {WS_PS:#x}")
    k(f"s_lshl_b32 s{sT0}, s{sNb}, 8")
    k(f"s_add_u32 s{sT0}, s{sT0}, s{sAo}")
    k(f"buffer_store_dwordx2 {vr(vSum,2)}, v{vT0}, {sr(sSWS,4)}, s{sT0} offen sc0 sc1")
    k.stamp(4)
    k(f"s_mul_i32 s{sT0}, s{sTT}, {56*1024}")
    k(f"s_lshl_b32 s{sT1}, s{sNb}, 12")
    k(f"s_add_u32 s{sT0}, s{sT0}, s{sT1}")
    k(f"s_add_u32 s{sT0}, s{sT0}, {WS_Z1F:#x}")
    for c in range(2, 4):
        gelu(c)
        for r in range(8):
            k(f"v_cvt_pk_bf16_f32 v{vP+8*(c-2)+r}, v{vAcc+16*c+2*r}, v{vAcc+16*c+2*r+1}")
        for m in range(2):
            k(f"buffer_store_dwordx4 {vr(vP+8*(c-2)+4*m,4)}, v{vL16}, {sr(sSWS,4)}, s{sT0} offen offset:{(2*(c-2)+m)*1024}")
    k.stamp(5)
    vG = vA + 96
    k(f"v_lshlrev_b32 v{vT0}, 3, v{vLane}")
    k(f"s_mov_b32 s{sCnt}, 20000")
    k.label("poll")
    for i in range(7):
        k(f"buffer_load_dwordx2 {vr(vG+2*i,2)}, v{vT0}, {sr(sSWS,4)}, s{sAo} offen offset:{i*512} sc0 sc1")
    k(f"s_waitcnt vmcnt(0)")
    k(f"v_or_b32 v{vT1}, v{vG+1}, v{vG+3}")
    k(f"v_or3_b32 v{vT1}, v{vT1}, v{vG+5}, v{vG+7}")
    k(f"v_or3_b32 v{vT1}, v{vT1}, v{vG+9}, v{vG+11}")
    k(f"v_or_b32 v{vT1}, v{vT1}, v{vG+13}")
    k(f"v_cmp_gt_i32 vcc, 0, v{vT1}")
    k(f"s_sub_u32 s{sCnt}, s{sCnt}, 1")
    k(f"s_cbranch_scc1 {k.L('polldone')}")
    k(f"s_cbranch_vccnz {k.L('poll')}")
    k.label("polldone")
    k.stamp(6)
    for i in range(1, 7):
        k(f"v_add_f32 v{vG}, v{vG}, v{vG+2*i}")
        k(f"v_add_f32 v{vG+1}, v{vG+1}, v{vG+2*i+1}")
    for r in [vG, vG+1]:
        k(f"v_mov_b32 v{vT0}, v{r}")
        k(f"s_nop 1")
        k(f"v_permlane32_swap_b32 v{vT0}, v{r}")
        k(f"s_nop 1")
        k(f"v_add_f32 v{r}, v{r}, v{vT0}")
    k(f"v_mul_f32 v{vG}, {f32(1/896):#x}, v{vG}")
    k(f"v_mul_f32 v{vG+1}, {f32(1/896):#x}, v{vG+1}")
    k(f"v_fma_f32 v{vG+1}, -v{vG}, v{vG}, v{vG+1}")
    k(f"v_max_f32 v{vG+1}, 0, v{vG+1}")
    k(f"v_add_f32 v{vG+1}, {f32(1e-5):#x}, v{vG+1}")
    k(f"v_rsq_f32 v{vG+1}, v{vG+1}")
    k(f"s_nop 0")
    k(f"v_mul_f32 v{vG}, v{vG}, v{vG+1}")
    k(f"v_sub_f32 v{vG}, 0, v{vG}")
    k(f"v_bfe_u32 v{vT0}, v{vLane}, 2, 3")
    k(f"v_lshlrev_b32 v{vT0}, 8, v{vT0}")
    k(f"v_lshrrev_b32 v{vT1}, 5, v{vLane}")
    k(f"v_lshl_add_u32 v{vT0}, v{vT1}, 6, v{vT0}")
    k(f"v_and_b32 v{vT1}, 3, v{vLane}")
    k(f"v_lshl_add_u32 v{vT0}, v{vT1}, 4, v{vT0}")
    k(f"s_lshr_b32 s{sT0}, s{sNb}, 1")
    k(f"s_lshl_b32 s{sT0}, s{sT0}, 6")
    k(f"s_add_u32 s{sT0}, s{sT0}, s{sTT}")
    k(f"s_lshl_b32 s{sT0}, s{sT0}, 13")
    k(f"s_and_b32 s{sT1}, s{sNb}, 1")
    k(f"s_lshl_b32 s{sT1}, s{sT1}, 12")
    k(f"s_add_u32 s{sT0}, s{sT0}, s{sT1}")
    k(f"s_add_u32 s{sT0}, s{sT0}, {WS_Z2I:#x}")
    vP2 = vA + 112
    for c in range(2):
        for r in range(16):
            k(f"v_fma_f32 v{vAcc+16*c+r}, v{vAcc+16*c+r}, v{vG+1}, v{vG}")
        for r in range(8):
            k(f"v_cvt_pk_bf16_f32 v{vP2+8*c+r}, v{vAcc+16*c+2*r}, v{vAcc+16*c+2*r+1}")
        for m in range(2):
            k(f"buffer_store_dwordx4 {vr(vP2+8*c+4*m,4)}, v{vT0}, {sr(sSWS,4)}, s{sT0} offen offset:{c*2048 + m*128}")
    k.stamp(7)
    k.stamp_flush(kidx, 8, vT0)
    return k
```

```python
from common import *
from k1_qkv import f32

def build(stamp=False, kidx=0):
    NSL = 6; SLOT = 24576
    k = K("sp_kernel", 224, 256, NSL*SLOT)
    k.stamps = stamp
    sPw = k.salloc(4, 4); sWSp = k.salloc(2, 2)
    sSW = k.salloc(4, 4); sSWS = k.salloc(4, 4); sSB = k.salloc(4, 4)
    sWave = k.salloc(); sTb = k.salloc(); sFb = k.salloc(); sTh = k.salloc(); sFh = k.salloc()
    sT0 = k.salloc(); sT1 = k.salloc(); sWo = k.salloc(); sZo = k.salloc(); sSt = k.salloc(); sSl = k.salloc()
    sCnt = k.salloc(); sUo = k.salloc(); sRd = k.salloc(); sWm = k.salloc(); sZm = k.salloc()
    vLane = k.valloc(); vL16 = k.valloc(); vT0 = k.valloc(); vT1 = k.valloc(); vT2 = k.valloc()
    vWd = k.valloc(2); vWa0 = k.valloc(4); vZa0 = k.valloc(); vWa = k.valloc(4); vZa = k.valloc(); vBias = k.valloc()
    vZ1 = k.valloc(16, 4)
    vWf = k.valloc(16, 4)
    vZf = [k.valloc(8, 4), k.valloc(8, 4)]
    vAcc = k.valloc(32, 4)
    vE = k.valloc(16, 4)
    k.stamp(0)
    k(f"s_load_dwordx4 {sr(sPw,4)}, s[0:1], {KA_WSP}")
    k(f"s_load_dwordx2 {sr(sWSp,2)}, s[0:1], {KA_WS}")
    k(f"v_lshrrev_b32 v{vT0}, 6, v0")
    k(f"v_and_b32 v{vLane}, 63, v0")
    k(f"v_readfirstlane_b32 s{sWave}, v{vT0}")
    k(f"v_lshlrev_b32 v{vL16}, 4, v{vLane}")
    k(f"s_and_b32 s{sT0}, s2, 7")
    k(f"s_lshl_b32 s{sT0}, s{sT0}, 2")
    k(f"s_bfe_u32 s{sT1}, s2, {3 | (2<<16)}")
    k(f"s_add_u32 s{sTb}, s{sT0}, s{sT1}")
    k(f"s_lshr_b32 s{sFb}, s2, 5")
    k(f"s_and_b32 s{sTh}, s{sWave}, 1")
    k(f"s_lshr_b32 s{sFh}, s{sWave}, 1")
    k(f"v_lshrrev_b32 v{vT0}, 4, v{vLane}")
    k(f"v_and_b32 v{vT1}, 7, v{vLane}")
    k(f"v_xor_b32 v{vT1}, v{vT1}, v{vT0}")
    k(f"v_lshrrev_b32 v{vT0}, 3, v{vLane}")
    k(f"v_lshlrev_b32 v{vT0}, 12, v{vT0}")
    k(f"v_lshl_add_u32 v{vWd}, v{vT1}, 4, v{vT0}")
    k(f"v_xor_b32 v{vWd+1}, 64, v{vWd}")
    k(f"v_add_u32 v{vWd+1}, {8*4096}, v{vWd+1}")
    k(f"s_lshl_b32 s{sWo}, s{sTb}, 18")
    k(f"s_lshl_b32 s{sT0}, s{sWave}, 16")
    k(f"s_add_u32 s{sWo}, s{sWo}, s{sT0}")
    k(f"s_lshl_b32 s{sZo}, s{sFb}, 19")
    k(f"s_lshl_b32 s{sT0}, s{sWave}, 12")
    k(f"s_add_u32 s{sZo}, s{sZo}, s{sT0}")
    k(f"s_add_u32 s{sZo}, s{sZo}, {WS_Z2I:#x}")
    k(f"s_lshl_b32 s{sWm}, s{sWave}, 11")
    k(f"s_add_u32 s{sZm}, s{sT0}, 8192")
    k(f"s_lshr_b32 s{sSt}, s2, 3")
    k(f"s_and_b32 s{sSt}, s{sSt}, 31")
    k(f"s_mov_b32 s{sSl}, 0")
    k(f"s_lshl_b32 s{sT0}, s{sTb}, 1")
    k(f"s_add_u32 s{sT0}, s{sT0}, s{sTh}")
    k(f"s_mul_i32 s{sUo}, s{sT0}, 56")
    k(f"s_lshl_b32 s{sT1}, s{sFb}, 3")
    k(f"s_add_u32 s{sUo}, s{sUo}, s{sT1}")
    k(f"s_lshl_b32 s{sT1}, s{sFh}, 2")
    k(f"s_add_u32 s{sUo}, s{sUo}, s{sT1}")
    k(f"s_lshl_b32 s{sUo}, s{sUo}, 10")
    k(f"s_lshl_b32 s{sT0}, s{sT0}, 6")
    k(f"v_and_b32 v{vT2}, 31, v{vLane}")
    k(f"v_lshlrev_b32 v{vT1}, 1, v{vT2}")
    k(f"s_waitcnt lgkmcnt(0)")
    k.srd(sSW, sPw, sPw+1, T*T*2)
    k.srd(sSB, sPw+2, sPw+3, T*2)
    k.srd(sSWS, sWSp, sWSp+1, WS_END)
    k(f"buffer_load_ushort v{vBias}, v{vT1}, {sr(sSB,4)}, s{sT0} offen")
    k(f"s_add_u32 s{sT0}, s{sUo}, {WS_Z1F:#x}")
    for i in range(4):
        k(f"buffer_load_dwordx4 {vr(vZ1+4*i,4)}, v{vL16}, {sr(sSWS,4)}, s{sT0} offen offset:{i*1024}")
    def issue():
        k(f"s_lshl_b32 s{sT0}, s{sSt}, 7")
        k(f"s_add_u32 m0, s{sSl}, s{sWm}")
        k(f"s_add_u32 s{sT0}, s{sT0}, s{sWo}")
        k(f"buffer_load_dwordx4 v{vWd}, {sr(sSW,4)}, s{sT0} offen lds")
        k(f"s_add_u32 m0, m0, 1024")
        k(f"s_lshl_b32 s{sT1}, s{sSt}, 14")
        k(f"buffer_load_dwordx4 v{vWd+1}, {sr(sSW,4)}, s{sT0} offen lds")
        k(f"s_add_u32 m0, s{sSl}, s{sZm}")
        k(f"s_add_u32 s{sT1}, s{sT1}, s{sZo}")
        for i in range(4):
            k(f"buffer_load_dwordx4 v{vL16}, {sr(sSWS,4)}, s{sT1} offen offset:{i*1024} lds")
        k(f"s_add_u32 s{sSt}, s{sSt}, 1")
        k(f"s_and_b32 s{sSt}, s{sSt}, 31")
        k(f"s_add_u32 s{sSl}, s{sSl}, {SLOT}")
        k(f"s_cmp_eq_u32 s{sSl}, {NSL*SLOT}")
        k(f"s_cselect_b32 s{sSl}, 0, s{sSl}")
    for s in range(NSL-1): issue()
    k.stamp(1)
    k(f"v_bfe_u32 v{vT0}, v{vLane}, 1, 3")
    k(f"v_lshrrev_b32 v{vT1}, 5, v{vLane}")
    k(f"v_xor_b32 v{vT0}, v{vT0}, v{vT1}")
    k(f"v_lshlrev_b32 v{vT2}, 7, v{vT2}")
    k(f"s_lshl_b32 s{sT0}, s{sTh}, 12")
    k(f"v_add_u32 v{vT2}, s{sT0}, v{vT2}")
    for i in range(4):
        k(f"v_xor_b32 v{vWa0+i}, {2*i}, v{vT0}")
        k(f"v_lshl_add_u32 v{vWa0+i}, v{vWa0+i}, 4, v{vT2}")
    k(f"v_lshlrev_b32 v{vZa0}, 9, v{vT1}")
    k(f"v_bfe_u32 v{vT0}, v{vLane}, 4, 1")
    k(f"v_lshl_add_u32 v{vZa0}, v{vT0}, 7, v{vZa0}")
    k(f"v_and_b32 v{vT0}, 1, v{vLane}")
    k(f"v_lshl_add_u32 v{vZa0}, v{vT0}, 6, v{vZa0}")
    k(f"v_bfe_u32 v{vT0}, v{vLane}, 2, 2")
    k(f"v_lshl_add_u32 v{vZa0}, v{vT0}, 4, v{vZa0}")
    k(f"v_bfe_u32 v{vT0}, v{vLane}, 1, 1")
    k(f"v_lshl_add_u32 v{vZa0}, v{vT0}, 3, v{vZa0}")
    k(f"s_lshl_b32 s{sT0}, s{sFh}, 12")
    k(f"s_add_u32 s{sT0}, s{sT0}, 8192")
    k(f"v_add_u32 v{vZa0}, s{sT0}, v{vZa0}")
    for i in range(32): k(f"v_mov_b32 v{vAcc+i}, 0")
    k(f"s_mov_b32 s{sRd}, 0")
    def zread(b, ks):
        off = (ks >> 1)*8192 + (ks & 1)*1024
        for c in range(2):
            k(f"ds_read_b64_tr_b16 {vr(vZf[b]+4*c,2)}, v{vZa} offset:{off + c*2048}")
            k(f"ds_read_b64_tr_b16 {vr(vZf[b]+4*c+2,2)}, v{vZa} offset:{off + c*2048 + 256}")
    def stage(wait, do_issue):
        k(f"s_waitcnt vmcnt({wait})")
        k(f"s_barrier")
        for i in range(4): k(f"v_add_u32 v{vWa+i}, s{sRd}, v{vWa0+i}")
        k(f"v_add_u32 v{vZa}, s{sRd}, v{vZa0}")
        for i in range(4): k(f"ds_read_b128 {vr(vWf+4*i,4)}, v{vWa+i}")
        zread(0, 0)
        if do_issue: issue()
        k(f"s_add_u32 s{sRd}, s{sRd}, {SLOT}")
        k(f"s_cmp_eq_u32 s{sRd}, {NSL*SLOT}")
        k(f"s_cselect_b32 s{sRd}, 0, s{sRd}")
        for i in range(4):
            b = i & 1
            if i < 3:
                zread(1-b, i+1)
                k(f"s_waitcnt lgkmcnt(4)")
            else:
                k(f"s_waitcnt lgkmcnt(0)")
            for c in range(2):
                k(f"v_mfma_f32_32x32x16_bf16 {vr(vAcc+16*c,16)}, {vr(vZf[b]+4*c,4)}, {vr(vWf+4*i,4)}, {vr(vAcc+16*c,16)}")
    k(f"s_mov_b32 s{sCnt}, {32-(NSL-1)}")
    k.label("loop")
    stage(6*(NSL-2), True)
    k(f"s_sub_u32 s{sCnt}, s{sCnt}, 1")
    k(f"s_cmp_lg_u32 s{sCnt}, 0")
    k(f"s_cbranch_scc1 {k.L('loop')}")
    k.stamp(2)
    for s in range(NSL-1):
        stage(6*(NSL-2-s), False)
    k.stamp(3)
    k(f"v_lshlrev_b32 v{vBias}, 16, v{vBias}")
    k(f"s_add_u32 s{sT0}, s{sUo}, {WS_UF:#x}")
    k(f"s_nop 10")
    for c in range(2):
        for r in range(8):
            k(f"v_lshlrev_b32 v{vE+2*r}, 16, v{vZ1+8*c+r}")
            k(f"v_and_b32 v{vE+2*r+1}, 0xffff0000, v{vZ1+8*c+r}")
        for r in range(16):
            k(f"v_add_f32 v{vAcc+16*c+r}, v{vAcc+16*c+r}, v{vBias}")
            k(f"v_mul_f32 v{vAcc+16*c+r}, v{vAcc+16*c+r}, v{vE+r}")
        for r in range(8):
            k(f"v_cvt_pk_bf16_f32 v{vZ1+8*c+r}, v{vAcc+16*c+2*r}, v{vAcc+16*c+2*r+1}")
        for m in range(2):
            k(f"buffer_store_dwordx4 {vr(vZ1+8*c+4*m,4)}, v{vL16}, {sr(sSWS,4)}, s{sT0} offen offset:{(2*c+m)*1024}")
    k.stamp(4)
    k.stamp_flush(kidx, 5, vT0)
    return k
```

```python
import sys, os
from common import *
import k1_qkv, k2_attn
st = os.environ.get("STAMP", "0") == "1"
sel = os.environ.get("KS", "1,2,3,4,5,6").split(",")
ks = []
def add(i, f):
    if str(i) in sel:
        ks.append(f(stamp=st, kidx=len(ks)))
add(1, k1_qkv.build)
add(2, k2_attn.build)
try:
    import k36_proj, k4_win, k5_sp
    add(3, k36_proj.build3)
    add(4, k4_win.build)
    add(5, k5_sp.build)
    add(6, k36_proj.build6)
except ImportError as e:
    print("skip", e)
emit(ks, sys.argv[1] if len(sys.argv) > 1 else "cur.s")
```

```python
from common import *
from ring import *
import os
import math, struct
def f32(x): return struct.unpack('<I', struct.pack('<f', x))[0]

def lane_consts(k, vLane, vTmp, vTr, natural):
    k(f"v_lshrrev_b32 v{vTmp}, 5, v{vLane}")
    k(f"v_lshlrev_b32 v{vTr}, {9 if natural else 8}, v{vTmp}")
    k(f"v_bfe_u32 v{vTmp}, v{vLane}, 2, 2")
    k(f"v_lshl_add_u32 v{vTr}, v{vTmp}, 6, v{vTr}")
    k(f"v_bfe_u32 v{vTmp}, v{vLane}, 4, 1")
    k(f"v_lshl_add_u32 v{vTr}, v{vTmp}, 5, v{vTr}")
    k(f"v_and_b32 v{vTmp}, 3, v{vLane}")
    k(f"v_lshl_add_u32 v{vTr}, v{vTmp}, 3, v{vTr}")

def build(stamp=False, kidx=0):
    SLOT = 28672; NSL = 5; N = 8
    SCR = NSL*SLOT
    ROT = int(os.environ.get("K1_ROT", 1))
    k = K("qkv_kernel", 256, 512, SCR + 8192)
    k.stamps = stamp
    sP = k.salloc(4, 4)
    sWSp = k.salloc(2, 2)
    sSX = k.salloc(4, 4); sSW = k.salloc(4, 4); sSO = k.salloc(4, 4)
    sWave = k.salloc(); sRb = k.salloc(); sHp = k.salloc(); sT0 = k.salloc(); sT1 = k.salloc()
    sXo = k.salloc(); sWo = k.salloc(); sXm = k.salloc(); sWm = k.salloc(); sTT = k.salloc()
    sSl = k.salloc(); sSt = k.salloc(); sCnt = k.salloc()
    vLane = k.valloc(); vT0 = k.valloc(); vT1 = k.valloc(); vT2 = k.valloc(); vT3 = k.valloc()
    vXd = k.valloc(); vWd = k.valloc()
    vXa0 = k.valloc(4); vWa0 = k.valloc(4); vXa = k.valloc(4); vWa = k.valloc(4)
    vSum = k.valloc(2); vSq = k.valloc(2); vCs = k.valloc(3); vOnes = k.valloc()
    vX = [k.valloc(16, 4), k.valloc(16, 4)]
    vW = [k.valloc(48, 4), k.valloc(48, 4)]
    vAcc = k.valloc(48, 4)
    vE = vW[0]
    k.stamp(0)
    k(f"s_load_dwordx4 {sr(sP,4)}, s[0:1], {KA_X}")
    k(f"s_load_dwordx2 {sr(sWSp,2)}, s[0:1], {KA_WS}")
    k(f"v_lshrrev_b32 v{vT0}, 6, v0")
    k(f"v_and_b32 v{vLane}, 63, v0")
    k(f"v_readfirstlane_b32 s{sWave}, v{vT0}")
    k(f"s_and_b32 s{sT0}, s2, 3")
    k(f"s_lshl_b32 s{sT0}, s{sT0}, 2")
    k(f"s_bfe_u32 s{sT1}, s2, {3 | (2<<16)}")
    k(f"s_add_u32 s{sRb}, s{sT0}, s{sT1}")
    k(f"s_lshl_b32 s{sSt}, s{sT1}, 1")
    k(f"s_bfe_u32 s{sT0}, s2, {2 | (1<<16)}")
    k(f"s_lshl_b32 s{sT0}, s{sT0}, 3")
    k(f"s_lshr_b32 s{sT1}, s2, 5")
    k(f"s_add_u32 s{sHp}, s{sT0}, s{sT1}")
    k(f"s_add_u32 s{sSt}, s{sSt}, s{sT1}")
    k(f"s_and_b32 s{sSt}, s{sSt}, {7 if ROT else 0}")
    k(f"s_and_b32 s{sT0}, s{sWave}, 3")
    k(f"s_lshl_b32 s{sTT}, s{sRb}, 2")
    k(f"s_add_u32 s{sTT}, s{sTT}, s{sT0}")
    k(f"s_mov_b32 s{sSl}, 0")
    k(f"s_cmp_ge_u32 s{sWave}, 4")
    k(f"s_cbranch_scc1 {k.L('loader')}")
    k(f"s_lshl_b32 s{sXm}, s{sWave}, 11")
    k(f"s_add_u32 s{sXm}, s{sXm}, {SCR}")
    lane_consts(k, vLane, vT0, vT1, natural=True)
    k(f"v_add_u32 v{vT1}, 16384, v{vT1}")
    k(f"v_and_b32 v{vT0}, 31, v{vLane}")
    k(f"v_bfe_u32 v{vT2}, v{vLane}, 1, 3")
    k(f"v_lshrrev_b32 v{vT3}, 5, v{vLane}")
    k(f"v_xor_b32 v{vT2}, v{vT2}, v{vT3}")
    k(f"v_lshlrev_b32 v{vT0}, 7, v{vT0}")
    k(f"s_lshl_b32 s{sT0}, s{sWave}, 12")
    k(f"v_add_u32 v{vT0}, s{sT0}, v{vT0}")
    for i in range(4):
        k(f"s_xor_b32 s{sT0}, s{sWave}, {i}")
        k(f"s_lshl_b32 s{sT1}, s{sT0}, 1")
        k(f"v_xor_b32 v{vT3}, s{sT1}, v{vT2}")
        k(f"v_lshl_add_u32 v{vXa0+i}, v{vT3}, 4, v{vT0}")
        k(f"s_mul_i32 s{sT0}, s{sT0}, 3072")
        k(f"v_add_u32 v{vWa0+i}, s{sT0}, v{vT1}")
    for r in [vSum, vSum+1, vSq, vSq+1, vCs, vCs+1, vCs+2]: k(f"v_mov_b32 v{r}, 0")
    k(f"v_mov_b32 v{vOnes}, 0x3f803f80")
    for i in range(48): k(f"v_mov_b32 v{vAcc+i}, 0")
    k(f"s_waitcnt lgkmcnt(0)")
    k.srd(sSO, sWSp, sWSp+1, WS_END)
    k.stamp(1)
    def reads(b):
        l = []
        for i in range(4):
            l.append(f"ds_read_b128 {vr(vX[b]+4*i,4)}, v{vXa+i}")
            for c in range(3):
                l.append(f"ds_read_b64_tr_b16 {vr(vW[b]+12*i+4*c,2)}, v{vWa+i} offset:{c*1024}")
                l.append(f"ds_read_b64_tr_b16 {vr(vW[b]+12*i+4*c+2,2)}, v{vWa+i} offset:{c*1024 + 256}")
        return l
    def comp(b):
        dots = []
        for i in range(4):
            for j in range(4):
                x = vX[b]+4*i+j
                dots.append(f"v_dot2_f32_bf16 v{vSum+(j&1)}, v{x}, v{vOnes}, v{vSum+(j&1)}")
                dots.append(f"v_dot2_f32_bf16 v{vSq+(j&1)}, v{x}, v{x}, v{vSq+(j&1)}")
                if j < 3:
                    dots.append(f"v_dot2_f32_bf16 v{vCs+j}, v{vW[b]+4*j+i}, v{vOnes}, v{vCs+j}")
        g = []
        for i in range(4):
            X = vr(vX[b]+4*i, 4)
            for c in range(3):
                W_ = vr(vW[b]+12*i+4*c, 4)
                a_, b_ = (W_, X) if c < 2 else (X, W_)
                grp = [f"v_mfma_f32_32x32x16_bf16 {vr(vAcc+16*c,16)}, {a_}, {b_}, {vr(vAcc+16*c,16)}"]
                g.append(grp)
        g.append(dots)
        return g
    def addr():
        return [f"v_add_u32 v{vXa+i}, s{sSl}, v{vXa0+i}" for i in range(4)] + [f"v_add_u32 v{vWa+i}, s{sSl}, v{vWa0+i}" for i in range(4)] + slot_adv(sSl, SLOT, NSL)
    consumer_loop(k, N, reads, comp, addr, sCnt, per=4, after_first=lambda: k.stamp(2))
    k.stamp(3)
    k(f"s_nop 2")
    k(f"v_add_f32 v{vSum}, v{vSum}, v{vSum+1}")
    k(f"v_add_f32 v{vSq}, v{vSq}, v{vSq+1}")
    half_combine(k, [vCs, vCs+1, vCs+2, vSum, vSq], vT0)
    k(f"v_and_b32 v{vT0}, 31, v{vLane}")
    k(f"v_lshlrev_b32 v{vT0}, 2, v{vT0}")
    k(f"v_add_u32 v{vT1}, s{sXm}, v{vT0}")
    for c in range(3):
        k(f"ds_write_b32 v{vT1}, v{vCs+c} offset:{c*128}")
    k(f"v_mul_f32 v{vSum}, {f32(1/512):#x}, v{vSum}")
    k(f"v_mul_f32 v{vSq}, {f32(1/512):#x}, v{vSq}")
    k(f"v_fma_f32 v{vSq}, -v{vSum}, v{vSum}, v{vSq}")
    k(f"v_max_f32 v{vSq}, 0, v{vSq}")
    k(f"v_add_f32 v{vSq}, {f32(1e-5):#x}, v{vSq}")
    k(f"v_rsq_f32 v{vSq}, v{vSq}")
    k(f"s_waitcnt lgkmcnt(0)")
    k(f"s_barrier")
    k(f"v_add_u32 v{vT2}, {SCR}, v{vT0}")
    for w in range(4):
        for c in range(3):
            k(f"ds_read_b32 v{vE+3*w+c}, v{vT2} offset:{w*2048 + c*128}")
    k(f"v_mul_f32 v{vSum}, v{vSum}, v{vSq}")
    k(f"v_sub_f32 v{vSum}, 0, v{vSum}")
    k(f"ds_write_b32 v{vT1}, v{vSq} offset:1024")
    k(f"ds_write_b32 v{vT1}, v{vSum} offset:1152")
    k(f"v_lshrrev_b32 v{vT2}, 5, v{vLane}")
    k(f"v_lshlrev_b32 v{vT2}, 4, v{vT2}")
    k(f"v_add_u32 v{vT2}, s{sXm}, v{vT2}")
    k(f"s_waitcnt lgkmcnt(0)")
    vAB = vW[1]
    for g in range(4):
        k(f"ds_read_b128 {vr(vAB+4*g,4)}, v{vT2} offset:{1024 + 32*g}")
        k(f"ds_read_b128 {vr(vAB+16+4*g,4)}, v{vT2} offset:{1152 + 32*g}")
    for c in range(3):
        k(f"v_add_f32 v{vCs+c}, v{vE+c}, v{vE+3+c}")
        k(f"v_add_f32 v{vE+6+c}, v{vE+6+c}, v{vE+9+c}")
        k(f"v_add_f32 v{vCs+c}, v{vCs+c}, v{vE+6+c}")
    for c in range(2):
        k(f"ds_write_b32 v{vT1}, v{vCs+c} offset:{512 + c*128}")
    k(f"v_lshlrev_b32 v{vT0}, 4, v{vLane}")
    k(f"v_and_b32 v{vT1}, 0x33, v{vLane}")
    k(f"v_bfe_u32 v{vT3}, v{vLane}, 2, 1")
    k(f"v_lshl_add_u32 v{vT1}, v{vT3}, 3, v{vT1}")
    k(f"v_bfe_u32 v{vT3}, v{vLane}, 3, 1")
    k(f"v_lshl_add_u32 v{vT1}, v{vT3}, 2, v{vT1}")
    k(f"v_lshlrev_b32 v{vT1}, 4, v{vT1}")
    k(f"v_bfe_u32 v{vT3}, v{vLane}, 4, 1")
    k(f"v_lshlrev_b32 v{vXd}, 17, v{vT3}")
    k(f"v_lshrrev_b32 v{vT3}, 5, v{vLane}")
    k(f"v_lshl_add_u32 v{vXd}, v{vT3}, 8, v{vXd}")
    k(f"v_and_b32 v{vT3}, 15, v{vLane}")
    k(f"v_lshl_add_u32 v{vXd}, v{vT3}, 4, v{vXd}")
    k(f"s_lshl_b32 s{sT0}, s{sHp}, 7")
    k(f"s_add_u32 s{sT0}, s{sT0}, s{sTT}")
    k(f"s_lshl_b32 s{sXo}, s{sT0}, 10")
    k(f"s_lshl_b32 s{sWo}, s{sT0}, 11")
    k(f"s_add_u32 s{sWo}, s{sWo}, {WS_KVF:#x}")
    k(f"s_waitcnt lgkmcnt(0)")
    for c in range(2):
        for g in range(4):
            k(f"ds_read_b128 {vr(vE+16*c+4*g,4)}, v{vT2} offset:{512 + c*128 + 32*g}")
    vP = vX[0]
    for r in range(16):
        k(f"v_mul_f32 v{vAcc+32+r}, v{vAcc+32+r}, v{vAB+r}")
        k(f"v_fmac_f32 v{vAcc+32+r}, v{vAB+16+r}, v{vCs+2}")
    for r in range(8):
        k(f"v_cvt_pk_bf16_f32 v{vP+16+r}, v{vAcc+32+2*r}, v{vAcc+32+2*r+1}")
    k(f"buffer_store_dwordx4 {vr(vP+16,4)}, v{vXd}, {sr(sSO,4)}, s{sWo} offen offset:1024")
    k(f"buffer_store_dwordx4 {vr(vP+20,4)}, v{vXd}, {sr(sSO,4)}, s{sWo} offen offset:1536")
    CQ = 0.25*1.4426950408889634
    k(f"v_mul_f32 v{vWd}, {f32(CQ):#x}, v{vSq}")
    k(f"v_mul_f32 v{vOnes}, {f32(CQ):#x}, v{vSum}")
    k(f"s_waitcnt lgkmcnt(0)")
    for c in (1, 0):
        a, b = (vWd, vOnes) if c == 0 else (vSq, vSum)
        for r in range(16):
            k(f"v_mul_f32 v{vAcc+16*c+r}, v{vAcc+16*c+r}, v{a}")
            k(f"v_fmac_f32 v{vAcc+16*c+r}, v{vE+16*c+r}, v{b}")
        for r in range(8):
            k(f"v_cvt_pk_bf16_f32 v{vP+8*c+r}, v{vAcc+16*c+2*r}, v{vAcc+16*c+2*r+1}")
        if c == 0:
            k(f"buffer_store_dwordx4 {vr(vP,4)}, v{vT0}, {sr(sSO,4)}, s{sXo} offen")
            k(f"s_add_u32 s{sXo}, s{sXo}, 65536")
            k(f"buffer_store_dwordx4 {vr(vP+4,4)}, v{vT0}, {sr(sSO,4)}, s{sXo} offen")
        else:
            k(f"buffer_store_dwordx4 {vr(vP+8,4)}, v{vT1}, {sr(sSO,4)}, s{sWo} offen")
            k(f"s_add_u32 s{sT0}, s{sWo}, 131072")
            k(f"buffer_store_dwordx4 {vr(vP+12,4)}, v{vT1}, {sr(sSO,4)}, s{sT0} offen")
    k.stamp(4)
    k.stamp_flush(kidx, 5, vT0)
    k(f"s_endpgm")
    k.label("loader")
    k(f"s_sub_u32 s{sWave}, s{sWave}, 4")
    k(f"v_lshrrev_b32 v{vT0}, 4, v{vLane}")
    k(f"v_and_b32 v{vT1}, 7, v{vLane}")
    k(f"v_xor_b32 v{vT1}, v{vT1}, v{vT0}")
    k(f"v_lshrrev_b32 v{vT0}, 3, v{vLane}")
    k(f"v_lshlrev_b32 v{vT0}, 10, v{vT0}")
    k(f"v_lshl_add_u32 v{vXa}, v{vT1}, 4, v{vT0}")
    k(f"v_xor_b32 v{vXa+1}, 64, v{vXa}")
    k(f"v_add_u32 v{vXa+1}, {8192-1024}, v{vXa+1}")
    k(f"v_add_u32 v{vXa+2}, {2*(8192-1024)}, v{vXa}")
    k(f"v_add_u32 v{vXa+3}, {2*(8192-1024)}, v{vXa+1}")
    k(f"v_lshrrev_b32 v{vT0}, 2, v{vLane}")
    k(f"v_mul_u32_u24 v{vT0}, 3072, v{vT0}")
    k(f"v_and_b32 v{vT1}, 3, v{vLane}")
    k(f"v_lshl_add_u32 v{vWd}, v{vT1}, 4, v{vT0}")
    k(f"s_lshl_b32 s{sXo}, s{sTT}, 15")
    k(f"s_lshl_b32 s{sXm}, s{sWave}, 12")
    k(f"s_mul_i32 s{sWo}, s{sWave}, {16*3072}")
    k(f"s_lshl_b32 s{sT0}, s{sHp}, 6")
    k(f"s_add_u32 s{sWo}, s{sWo}, s{sT0}")
    k(f"s_mul_i32 s{sWm}, s{sWave}, 3072")
    k(f"s_add_u32 s{sWm}, s{sWm}, 16384")
    k(f"s_waitcnt lgkmcnt(0)")
    k.srd(sSX, sP, sP+1, T*D*2)
    k.srd(sSW, sP+2, sP+3, D*3*D*2)
    def issue():
        k(f"s_add_u32 m0, s{sSl}, s{sXm}")
        k(f"s_lshl_b32 s{sT0}, s{sSt}, 7")
        k(f"s_add_u32 s{sT0}, s{sT0}, s{sXo}")
        for i in range(4):
            k(f"buffer_load_dwordx4 v{vXa+i}, {sr(sSX,4)}, s{sT0} offen offset:{i*1024} lds")
        k(f"s_add_u32 m0, s{sSl}, s{sWm}")
        k(f"s_mul_i32 s{sT0}, s{sSt}, {64*3072}")
        k(f"s_add_u32 s{sT0}, s{sT0}, s{sWo}")
        for c in range(3):
            k(f"buffer_load_dwordx4 v{vWd}, {sr(sSW,4)}, s{sT0} offen offset:{c*1024} lds")
        k(f"s_add_u32 s{sSt}, s{sSt}, 1")
        k(f"s_and_b32 s{sSt}, s{sSt}, 7")
        for t in slot_adv(sSl, SLOT, NSL): k(t)
    loader_loop(k, N, NSL, 7, issue, sCnt, PRE=2)
    return k
```

```python
from common import *
import os

def build(stamp=False, kidx=0):
    U = 4
    EXP = os.environ.get('K2_EXP', '')
    AL = 16 if 'a' in EXP else 4
    PAD = 131072
    XCH = PAD + 12288
    k = K("attn_kernel", 256, 768, 163840)
    k.stamps = stamp
    sWS = k.salloc(2, 2)
    sSRD = k.salloc(4, 4)
    sWave = k.salloc(); sHead = k.salloc(); sQb = k.salloc(); sT0 = k.salloc(); sT1 = k.salloc()
    sCnt = k.salloc(); sPhase = k.salloc(); sOoff = k.salloc(); sKV = k.salloc(); sKh = k.salloc()
    sIn = k.salloc(16, 4)
    sPF = k.salloc(4, 4); sId = k.salloc(); sXc = k.salloc()
    vL16 = k.valloc(); vLane = k.valloc()
    vKa = k.valloc(); vVa = k.valloc(); vVinc = k.valloc(); vIdx = k.valloc(); vT0 = k.valloc(); vT1 = k.valloc(); vVa0 = k.valloc()
    vQ = [k.valloc(4, 4), k.valloc(4, 4)]
    vKf = [k.valloc(4, 4), k.valloc(4, 4)]
    vV0 = k.valloc(4, 4)
    vV1 = [k.valloc(4, 4), k.valloc(4, 4)]
    vS = [k.valloc(16, AL), k.valloc(16, AL)]
    vNM = [k.valloc(16, 4), k.valloc(16, 4)]
    vO = [k.valloc(16, 4), k.valloc(16, 4)]
    QK = lambda d, kf, q, c: k(f"v_mfma_f32_32x32x16_bf16 {vr(d,16)}, {vr(kf,4)}, {vr(q,4)}, {c}")
    PV = lambda o, v, s: k(f"v_smfmac_f32_32x32x32_bf16 {vr(o,16)}, {vr(v,4)}, {vr(s,8)}, v{vIdx}")

    k.stamp(0)
    k(f"s_load_dwordx2 {sr(sWS,2)}, s[0:1], {KA_WS}")
    k(f"s_load_dwordx16 {sr(sIn,16)}, s[0:1], 0")
    k(f"v_lshrrev_b32 v{vT0}, 6, v0")
    k(f"v_and_b32 v{vLane}, 63, v0")
    k(f"v_readfirstlane_b32 s{sWave}, v{vT0}")
    k(f"v_lshlrev_b32 v{vL16}, 4, v{vLane}")
    k(f"s_and_b32 s{sT0}, s2, 7")
    k(f"s_lshl_b32 s{sT0}, s{sT0}, 2")
    k(f"s_lshr_b32 s{sT1}, s2, 6")
    k(f"s_add_u32 s{sHead}, s{sT0}, s{sT1}")
    k(f"s_lshr_b32 s{sQb}, s2, 3")
    k(f"s_and_b32 s{sQb}, s{sQb}, 7")
    k(f"s_cmp_ge_u32 s{sWave}, 8")
    k(f"s_cbranch_scc1 {k.L('loader')}")
    k(f"s_lshr_b32 s{sKh}, s{sWave}, 2")
    k(f"s_and_b32 s{sT0}, s{sWave}, 3")
    k(f"s_lshl_b32 s{sT0}, s{sT0}, 1")
    k(f"s_lshl_b32 s{sT1}, s{sQb}, 3")
    k(f"s_add_u32 s{sT0}, s{sT0}, s{sT1}")
    k(f"s_add_u32 s{sOoff}, s{sT0}, s{sKh}")
    k(f"s_lshl_b32 s{sOoff}, s{sOoff}, 5")
    k(f"s_add_u32 s{sOoff}, s{sOoff}, s{sHead}")
    k(f"s_lshl_b32 s{sOoff}, s{sOoff}, 10")
    k(f"s_add_u32 s{sOoff}, s{sOoff}, {WS_OF:#x}")
    k(f"s_lshl_b32 s{sT1}, s{sHead}, 6")
    k(f"s_add_u32 s{sKV}, s{sT0}, s{sT1}")
    k(f"s_lshl_b32 s{sKV}, s{sKV}, 10")
    k(f"v_lshrrev_b32 v{vT0}, 5, v{vLane}")
    k(f"v_and_b32 v{vVa0}, 15, v{vLane}")
    k(f"v_lshl_add_u32 v{vVa0}, v{vT0}, 4, v{vVa0}")
    k(f"v_lshlrev_b32 v{vVa0}, 4, v{vVa0}")
    k(f"v_add_u32 v{vVa0}, 1024, v{vVa0}")
    k(f"v_and_b32 v{vT0}, 27, v{vLane}")
    k(f"v_cmp_eq_u32 vcc, 16, v{vT0}")
    k(f"v_mov_b32 v{vT1}, {PAD + 1024 + 16}")
    k(f"v_mov_b32 v{vKa}, {PAD + 1024}")
    k(f"v_cndmask_b32 v{vT1}, v{vT1}, v{vKa}, vcc")
    k(f"v_and_b32 v{vT0}, 16, v{vLane}")
    k(f"v_cmp_eq_u32 vcc, 0, v{vT0}")
    k(f"s_lshl_b32 s{sT0}, s{sKh}, 16")
    k(f"v_mov_b32 v{vKa}, {U*2048}")
    k(f"v_cndmask_b32 v{vVinc}, 0, v{vKa}, vcc")
    k(f"v_add_u32 v{vVa}, s{sT0}, v{vVa0}")
    k(f"v_cndmask_b32 v{vVa}, v{vT1}, v{vVa}, vcc")
    k(f"v_cndmask_b32 v{vVa0}, v{vT1}, v{vVa0}, vcc")
    k(f"v_add_u32 v{vKa}, s{sT0}, v{vL16}")
    k(f"v_mov_b32 v{vIdx}, 0xdddddddd")
    k(f"v_lshrrev_b32 v{vT0}, 1, v{vLane}")
    k(f"v_min_u32 v{vT0}, 23, v{vT0}")
    k(f"v_lshlrev_b32 v{vT0}, 9, v{vT0}")
    k(f"v_and_b32 v{vT1}, 1, v{vLane}")
    k(f"v_lshl_add_u32 v{vT0}, v{vT1}, 4, v{vT0}")
    k(f"v_add_u32 v{vT0}, {PAD}, v{vT0}")
    k(f"v_cmp_eq_u32 vcc, 0, v{vT1}")
    k(f"v_mov_b32 v{vT1}, 0x3f803f80")
    k(f"s_nop 0")
    for i in range(4): k(f"v_cndmask_b32 v{vV0+i}, 0, v{vT1}, vcc")
    k(f"ds_write_b128 v{vT0}, {vr(vV0,4)}")
    for t in range(2):
        for i in range(16): k(f"v_mov_b32 v{vO[t]+i}, 0")
    for i in range(8, 16): k(f"v_mov_b32 v{vS[1]+i}, 0")
    for i in range(4): k(f"v_mov_b32 v{vV1[1]+i}, 0")
    k(f"s_waitcnt lgkmcnt(0)")
    k.srd(sSRD, sWS, sWS+1, WS_END)
    k(f"buffer_load_dwordx4 {vr(vQ[0],4)}, v{vL16}, {sr(sSRD,4)}, s{sKV} offen")
    k(f"buffer_load_dwordx4 {vr(vQ[1],4)}, v{vL16}, {sr(sSRD,4)}, s{sKV} offen offset:1024")
    k(f"s_mov_b32 s{sPhase}, 0")
    k(f"s_mov_b32 s{sCnt}, 1")
    k.stamp(1)
    k(f"s_barrier")
    k.stamp(2)
    k(f"ds_read_b128 {vr(vV0,4)}, v{vL16}")
    k(f"ds_read_b128 {vr(vKf[0],4)}, v{vKa}")
    k(f"ds_read_b128 {vr(vKf[1],4)}, v{vKa} offset:2048")
    k(f"s_waitcnt vmcnt(0) lgkmcnt(2)")
    QK(vNM[0], vV0, vQ[0], "0")
    QK(vNM[1], vV0, vQ[1], "0")
    k(f"ds_read_b128 {vr(vV0,4)}, v{vVa}")
    k(f"ds_read_b128 {vr(vV1[0],4)}, v{vVa} offset:512")
    k(f"s_nop 9")
    for t in range(2):
        N_ = vNM[t]
        k(f"v_max3_f32 v{vT0}, v{N_}, v{N_+1}, v{N_+2}")
        for i in range(3, 15, 2):
            k(f"v_max3_f32 v{vT0}, v{vT0}, v{N_+i}, v{N_+i+1}")
        k(f"v_max_f32 v{vT0}, v{vT0}, v{N_+15}")
        k(f"v_mov_b32 v{vT1}, v{vT0}")
        k(f"s_nop 1")
        k(f"v_permlane32_swap_b32 v{vT0}, v{vT1}")
        k(f"s_nop 1")
        k(f"v_max_f32 v{vT0}, v{vT0}, v{vT1}")
        for i in range(16):
            k(f"v_sub_f32 v{N_+i}, 0, v{vT0}")
        if t == 0:
            k(f"s_waitcnt lgkmcnt(0)")
            k(f"s_nop 0")
            QK(vS[0], vKf[0], vQ[0], vr(vNM[0],16))
    if "p" in EXP:
        k(f"s_cmp_eq_u32 s{sKh}, 0")
        k(f"s_cbranch_scc1 {k.L('noprio')}")
        k(f"s_setprio 1")
        k.label("noprio")
    k(".p2align 6" if "6" in EXP else ".p2align 3")
    k.label("loop")
    for u in range(U):
        p = u & 1
        e = lambda S, i: k(f"v_exp_f32 v{S+i}, v{S+i}")
        A, B = vS[0], vS[1]
        e(A,0); e(A,1)
        PV(vO[1], vV1[1-p], B+8)
        for i in range(2, 6): e(A,i)
        QK(B, vKf[p], vQ[1], vr(vNM[1],16))
        for i in range(6, 10): e(A,i)
        if "w" not in EXP: k(f"s_waitcnt lgkmcnt(0)")
        PV(vO[0], vV0, A)
        for i in range(10, 16): e(A,i)
        e(B,0); e(B,1)
        PV(vO[0], vV1[p], A+8)
        for i in range(2, 6): e(B,i)
        QK(A, vKf[1-p], vQ[0], vr(vNM[0],16))
        for i in range(6, 10): e(B,i)
        PV(vO[1], vV0, B)
        if "r" not in EXP:
            k(f"ds_read_b128 {vr(vV0,4)}, v{vVa} offset:{(u+1)*2048}")
            k(f"ds_read_b128 {vr(vV1[1-p],4)}, v{vVa} offset:{(u+1)*2048+512}")
            k(f"ds_read_b128 {vr(vKf[p],4)}, v{vKa} offset:{(u+2)*2048}")
        for i in range(10, 13): e(B,i)
        if u == U-1:
            k(f"v_add_u32 v{vKa}, {U*2048}, v{vKa}")
            k(f"v_add_u32 v{vVa}, v{vVinc}, v{vVa}")
            k(f"s_sub_u32 s{sCnt}, s{sCnt}, 1")
            k(f"s_cmp_lg_u32 s{sCnt}, 0")
        for i in range(13, 16): e(B,i)
    k(f"s_cbranch_scc1 {k.L('loop')}")
    k(f"s_cmp_ge_u32 s{sPhase}, 2")
    k(f"s_cbranch_scc1 {k.L('fin')}")
    k(f"s_cmp_eq_u32 s{sPhase}, 0")
    k(f"s_cselect_b32 s{sCnt}, 2, 5")
    k(f"s_add_u32 s{sPhase}, s{sPhase}, 1")
    k(f"s_barrier")
    k(f"s_branch {k.L('loop')}")
    k.label("fin")
    k.stamp(3)
    k(f"s_nop 0")
    PV(vO[1], vV1[1], vS[1]+8)
    k(f"s_mul_i32 s{sT0}, s{sWave}, 2304")
    k(f"s_add_u32 s{sT0}, s{sT0}, {XCH}")
    k(f"v_add_u32 v{vT0}, s{sT0}, v{vL16}")
    k(f"v_lshlrev_b32 v{vKa}, 2, v{vLane}")
    k(f"v_add_u32 v{vKa}, s{sT0}, v{vKa}")
    k(f"s_xor_b32 s{sT1}, s{sWave}, 4")
    k(f"s_mul_i32 s{sT1}, s{sT1}, 2304")
    k(f"s_add_u32 s{sT1}, s{sT1}, {XCH}")
    k(f"v_add_u32 v{vT1}, s{sT1}, v{vL16}")
    k(f"v_lshlrev_b32 v{vVa}, 2, v{vLane}")
    k(f"v_add_u32 v{vVa}, s{sT1}, v{vVa}")
    k(f"s_waitcnt lgkmcnt(0)")
    k(f"s_nop 4")
    k(f"s_cmp_eq_u32 s{sKh}, 0")
    k(f"s_cbranch_scc1 {k.L('kh0')}")
    k(f"ds_write_b128 v{vT0}, {vr(vO[0],4)}")
    k(f"ds_write_b128 v{vT0}, {vr(vO[0]+4,4)} offset:1024")
    k(f"ds_write_b32 v{vKa}, v{vO[0]+8} offset:2048")
    k(f"s_waitcnt lgkmcnt(0)")
    for i in range(9): k(f"v_mov_b32 v{vO[0]+i}, v{vO[1]+i}")
    for i in range(4): k(f"v_mov_b32 v{vQ[0]+i}, v{vQ[1]+i}")
    k(f"s_branch {k.L('xch')}")
    k.label("kh0")
    k(f"ds_write_b128 v{vT0}, {vr(vO[1],4)}")
    k(f"ds_write_b128 v{vT0}, {vr(vO[1]+4,4)} offset:1024")
    k(f"ds_write_b32 v{vKa}, v{vO[1]+8} offset:2048")
    k(f"s_waitcnt lgkmcnt(0)")
    k.label("xch")
    k(f"s_barrier")
    k.stamp(4)
    k(f"ds_read_b128 {vr(vS[0],4)}, v{vT1}")
    k(f"ds_read_b128 {vr(vS[0]+4,4)}, v{vT1} offset:1024")
    k(f"ds_read_b32 v{vS[0]+8}, v{vVa} offset:2048")
    k(f"s_waitcnt lgkmcnt(0)")
    O = vO[0]
    for i in range(9): k(f"v_add_f32 v{O+i}, v{O+i}, v{vS[0]+i}")
    k(f"v_add_f32 v{vT0}, abs(v{O}), v{O+8}")
    for i in range(1, 8):
        k(f"v_add_f32 v{vT0}, abs(v{O+i}), v{vT0}")
    k(f"s_mov_b32 s{sT0}, 0x71800000")
    k(f"v_cmp_gt_f32 vcc, s{sT0}, v{vT0}")
    k(f"s_cmp_eq_u64 vcc, -1")
    k(f"s_cbranch_scc0 {k.L('fallback')}")
    k.label("store")
    k(f"v_rcp_f32 v{vT1}, v{O+8}")
    k(f"s_nop 0")
    for i in range(8):
        k(f"v_mul_f32 v{O+i}, v{O+i}, v{vT1}")
    for i in range(4):
        k(f"v_cvt_pk_bf16_f32 v{vKf[0]+i}, v{O+2*i}, v{O+2*i+1}")
    k(f"buffer_store_dwordx4 {vr(vKf[0],4)}, v{vL16}, {sr(sSRD,4)}, s{sOoff} offen")
    k.stamp(5)
    k.stamp_flush(kidx, 6, vT0)
    k(f"s_endpgm")
    k.label("fallback")
    k(f"s_mov_b32 s{sCnt}, 64")
    k(f"v_mov_b32 v{vKa}, v{vL16}")
    k(f"v_mov_b32 v{vT0}, 0xff800000")
    k.label("fb1")
    k(f"ds_read_b128 {vr(vKf[0],4)}, v{vKa}")
    k(f"v_add_u32 v{vKa}, 2048, v{vKa}")
    k(f"s_waitcnt lgkmcnt(0)")
    QK(vS[0], vKf[0], vQ[0], "0")
    k(f"s_nop 15")
    for i in range(0, 16, 2):
        k(f"v_max3_f32 v{vT0}, v{vT0}, v{vS[0]+i}, v{vS[0]+i+1}")
    k(f"s_sub_u32 s{sCnt}, s{sCnt}, 1")
    k(f"s_cmp_lg_u32 s{sCnt}, 0")
    k(f"s_cbranch_scc1 {k.L('fb1')}")
    k(f"v_mov_b32 v{vT1}, v{vT0}")
    k(f"s_nop 1")
    k(f"v_permlane32_swap_b32 v{vT0}, v{vT1}")
    k(f"s_nop 1")
    k(f"v_max_f32 v{vT0}, v{vT0}, v{vT1}")
    for i in range(16):
        k(f"v_sub_f32 v{vNM[0]+i}, 0, v{vT0}")
        k(f"v_mov_b32 v{O+i}, 0")
    k(f"v_mov_b32 v{vKa}, v{vL16}")
    k(f"v_lshrrev_b32 v{vVinc}, {U.bit_length()-1}, v{vVinc}")
    k(f"s_mov_b32 s{sCnt}, 64")
    k.label("fb2")
    k(f"ds_read_b128 {vr(vKf[0],4)}, v{vKa}")
    k(f"ds_read_b128 {vr(vV0,4)}, v{vVa0}")
    k(f"ds_read_b128 {vr(vV1[0],4)}, v{vVa0} offset:512")
    k(f"v_add_u32 v{vKa}, 2048, v{vKa}")
    k(f"v_add_u32 v{vVa0}, v{vVinc}, v{vVa0}")
    k(f"s_waitcnt lgkmcnt(0)")
    QK(vS[0], vKf[0], vQ[0], vr(vNM[0],16))
    k(f"s_nop 15")
    for i in range(16): k(f"v_exp_f32 v{vS[0]+i}, v{vS[0]+i}")
    k(f"s_nop 1")
    PV(O, vV0, vS[0])
    PV(O, vV1[0], vS[0]+8)
    k(f"s_nop 15")
    k(f"s_sub_u32 s{sCnt}, s{sCnt}, 1")
    k(f"s_cmp_lg_u32 s{sCnt}, 0")
    k(f"s_cbranch_scc1 {k.L('fb2')}")
    k(f"s_branch {k.L('store')}")
    k.label("loader")
    k(f"s_sub_u32 s{sWave}, s{sWave}, 8")
    k(f"s_lshl_b32 s{sKV}, s{sHead}, 17")
    k(f"s_and_b32 s{sT0}, s{sWave}, 1")
    k(f"s_lshl_b32 s{sT0}, s{sT0}, 10")
    k(f"s_add_u32 s{sKV}, s{sKV}, s{sT0}")
    k(f"s_add_u32 s{sKV}, s{sKV}, {WS_KVF:#x}")
    k(f"s_lshr_b32 s{sKh}, s{sWave}, 1")
    k(f"s_lshl_b32 s{sT1}, s{sKh}, 16")
    k(f"s_add_u32 m0, s{sT1}, s{sT0}")
    k(f"s_lshl_b32 s{sOoff}, s{sQb}, 14")
    k(f"s_add_u32 s{sOoff}, s{sOoff}, s{sT1}")
    k(f"s_waitcnt lgkmcnt(0)")
    k.srd(sSRD, sWS, sWS+1, WS_END)
    def issue2():
        k(f"s_and_b32 s{sOoff}, s{sOoff}, 0x1ffff")
        k(f"s_add_u32 s{sT0}, s{sOoff}, s{sKV}")
        k(f"buffer_load_dwordx4 v{vL16}, {sr(sSRD,4)}, s{sT0} offen lds")
        k(f"buffer_load_dwordx4 v{vL16}, {sr(sSRD,4)}, s{sT0} offen offset:2048 lds")
        k(f"s_add_u32 m0, m0, 4096")
        k(f"s_add_u32 s{sOoff}, s{sOoff}, 4096")
    for i in range(5): issue2()
    k(f"s_waitcnt vmcnt(4)")
    k(f"s_barrier")
    for i in range(11): issue2()
    k(f"s_waitcnt vmcnt(18)")
    k(f"s_barrier")
    k(f"s_waitcnt vmcnt(0)")
    k(f"s_barrier")
    PF = os.environ.get("K2_PF", "oixsu")
    G = 128
    k(f"s_lshr_b32 s{sId}, s2, 3")
    k(f"s_lshl_b32 s{sId}, s{sId}, 2")
    k(f"s_add_u32 s{sId}, s{sId}, s{sWave}")
    k(f"s_and_b32 s{sXc}, s2, 7")
    def touch(ptr, size, per_wave, xcd_stride):
        k.srd(sPF, sIn+2*ptr, sIn+2*ptr+1, size)
        k(f"s_mul_i32 s{sT0}, s{sId}, {per_wave}")
        if xcd_stride:
            k(f"s_mul_i32 s{sT1}, s{sXc}, {xcd_stride}")
            k(f"s_add_u32 s{sT0}, s{sT0}, s{sT1}")
        stride = min(G, per_wave//64)
        n = -(-per_wave//(64*stride))
        k(f"v_mul_u32_u24 v{vT0}, {stride}, v{vLane}")
        for i in range(n):
            k(f"buffer_load_dword v{vT1}, v{vT0}, {sr(sPF,4)}, s{sT0} offen")
            if i < n-1: k(f"s_add_u32 s{sT0}, s{sT0}, {64*stride}")
    if "s" in PF: touch(5, T*T*2, 8192, 1048576)
    if "u" in PF: touch(7, FH*D*2, 1024, 131072)
    if "i" in PF: touch(4, D*F*2, 16384, 0)
    if "x" in PF: touch(0, T*D*2, 2048, 262144)
    if "o" in PF: touch(2, D*D*2, 4096, 0)
    return k
```

```python
from common import *
from ring import *
from k1_qkv import lane_consts, f32
import os

def build(mode, stamp, kidx):
    NKS = 32 if mode == 3 else 56
    N = NKS//4
    SLOT = 16384
    NSL = 9
    XR = NSL*SLOT
    k = K("wo_kernel" if mode == 3 else "wout_kernel", 256, 512, XR + 8192)
    k.stamps = stamp
    sPw = k.salloc(2, 2); sPx = k.salloc(2, 2); sWSp = k.salloc(2, 2)
    sSW = k.salloc(4, 4); sSX = k.salloc(4, 4); sSWS = k.salloc(4, 4)
    sWave = k.salloc(); sCt = k.salloc(); sTh = k.salloc(); sTT = k.salloc(); sCb = k.salloc(); sTb = k.salloc()
    sT0 = k.salloc(); sT1 = k.salloc(); sAo = k.salloc(); sWo = k.salloc(); sSl = k.salloc(); sCnt = k.salloc()
    sAm = k.salloc(); sWm = k.salloc(); sHo = k.salloc(); sXo = k.salloc(); sSt = k.salloc()
    vLane = k.valloc(); vL16 = k.valloc(); vT0 = k.valloc(); vT1 = k.valloc(); vT2 = k.valloc()
    vWd = k.valloc(); vWa0 = k.valloc(); vAa0 = k.valloc(); vWa = k.valloc(); vAa = k.valloc()
    vR = k.valloc(8, 4)
    vW = [k.valloc(16, 4), k.valloc(16, 4)]
    vA = [k.valloc(16, 4), k.valloc(16, 4)]
    vAcc = k.valloc(16, 4)
    vE = k.valloc(16, 4)
    k.stamp(0)
    k(f"s_load_dwordx2 {sr(sPw,2)}, s[0:1], {KA_WO if mode == 3 else KA_WOUT}")
    k(f"s_load_dwordx2 {sr(sPx,2)}, s[0:1], {KA_X if mode == 3 else KA_OUT}")
    k(f"s_load_dwordx2 {sr(sWSp,2)}, s[0:1], {KA_WS}")
    k(f"v_lshrrev_b32 v{vT0}, 6, v0")
    k(f"v_and_b32 v{vLane}, 63, v0")
    k(f"v_readfirstlane_b32 s{sWave}, v{vT0}")
    k(f"v_lshlrev_b32 v{vL16}, 4, v{vLane}")
    k(f"s_and_b32 s{sT0}, s2, 7")
    k(f"s_lshl_b32 s{sT0}, s{sT0}, 2")
    k(f"s_bfe_u32 s{sT1}, s2, {3 | (2<<16)}")
    k(f"s_add_u32 s{sTb}, s{sT0}, s{sT1}")
    k(f"s_lshr_b32 s{sCb}, s2, 5")
    ROT = int(os.environ.get("K36_ROT", 1))
    k(f"s_lshl_b32 s{sSt}, s{sT1}, 1")
    k(f"s_add_u32 s{sSt}, s{sSt}, s{sCb}")
    k(f"s_and_b32 s{sSt}, s{sSt}, {7 if ROT else 0}")
    if mode == 6:
        k(f"s_mul_i32 s{sSt}, s{sSt}, 7")
        k(f"s_lshr_b32 s{sSt}, s{sSt}, 2")
    k(f"s_mov_b32 s{sSl}, 0")
    k(f"v_lshrrev_b32 v{vT0}, 2, v{vLane}")
    k(f"v_lshlrev_b32 v{vT0}, 10, v{vT0}")
    k(f"v_and_b32 v{vT1}, 3, v{vLane}")
    k(f"s_cmp_ge_u32 s{sWave}, 4")
    k(f"s_cbranch_scc1 {k.L('loader')}")
    k(f"s_and_b32 s{sTh}, s{sWave}, 1")
    k(f"s_lshr_b32 s{sCt}, s{sWave}, 1")
    k(f"s_lshl_b32 s{sTT}, s{sTb}, 1")
    k(f"s_add_u32 s{sTT}, s{sTT}, s{sTh}")
    k(f"s_lshl_b32 s{sHo}, s{sTT}, 5")
    k(f"s_lshl_b32 s{sT1}, s{sCb}, 2")
    k(f"s_add_u32 s{sHo}, s{sHo}, s{sT1}")
    k(f"s_lshl_b32 s{sT1}, s{sCt}, 1")
    k(f"s_add_u32 s{sHo}, s{sHo}, s{sT1}")
    k(f"s_lshl_b32 s{sHo}, s{sHo}, 10")
    k(f"s_add_u32 s{sHo}, s{sHo}, {WS_HF:#x}")
    k(f"s_lshl_b32 s{sXo}, s{sTT}, 15")
    k(f"s_lshl_b32 s{sT1}, s{sCb}, 7")
    k(f"s_add_u32 s{sXo}, s{sXo}, s{sT1}")
    k(f"s_lshl_b32 s{sT1}, s{sCt}, 6")
    k(f"s_add_u32 s{sXo}, s{sXo}, s{sT1}")
    if mode == 3:
        k(f"v_lshrrev_b32 v{vT2}, 4, v{vLane}")
        k(f"v_xor_b32 v{vT1}, v{vT1}, v{vT2}")
        k(f"v_lshl_add_u32 v{vT2}, v{vT1}, 4, v{vT0}")
        k(f"s_lshl_b32 s{sAm}, s{sWave}, 11")
        k(f"s_add_u32 s{sAm}, s{sAm}, {XR}")
        k(f"s_mov_b32 m0, s{sAm}")
    lane_consts(k, vLane, vT0, vWa0, natural=False)
    k(f"s_lshl_b32 s{sT0}, s{sCt}, 10")
    k(f"s_add_u32 s{sT0}, s{sT0}, 8192")
    k(f"v_add_u32 v{vWa0}, s{sT0}, v{vWa0}")
    k(f"s_lshl_b32 s{sT0}, s{sTh}, 12")
    k(f"v_add_u32 v{vAa0}, s{sT0}, v{vL16}")
    for i in range(16): k(f"v_mov_b32 v{vAcc+i}, 0")
    k(f"s_waitcnt lgkmcnt(0)")
    k.srd(sSWS, sWSp, sWSp+1, WS_END)
    k.srd(sSX, sPx, sPx+1, T*D*2)
    if mode == 3:
        k(f"buffer_load_dwordx4 v{vT2}, {sr(sSX,4)}, s{sXo} offen lds")
        k(f"s_add_u32 m0, m0, 1024")
        k(f"s_add_u32 s{sT0}, s{sXo}, 16384")
        k(f"buffer_load_dwordx4 v{vT2}, {sr(sSX,4)}, s{sT0} offen lds")
        k(f"v_mov_b32 v{vT0}, -1")
        k(f"v_lshlrev_b32 v{vT1}, 2, v0")
        k(f"s_lshl_b32 s{sT0}, s2, 10")
        k(f"s_add_u32 s{sT0}, s{sT0}, {WS_PS:#x}")
        k(f"buffer_store_dword v{vT0}, v{vT1}, {sr(sSWS,4)}, s{sT0} offen")
    else:
        k(f"buffer_load_dwordx4 {vr(vR,4)}, v{vL16}, {sr(sSWS,4)}, s{sHo} offen")
        k(f"buffer_load_dwordx4 {vr(vR+4,4)}, v{vL16}, {sr(sSWS,4)}, s{sHo} offen offset:1024")
    k.stamp(1)
    def reads(b):
        l = []
        for i in range(4):
            l.append(f"ds_read_b128 {vr(vA[b]+4*i,4)}, v{vAa} offset:{i*1024}")
            l.append(f"ds_read_b64_tr_b16 {vr(vW[b]+4*i,2)}, v{vWa} offset:{i*2048}")
            l.append(f"ds_read_b64_tr_b16 {vr(vW[b]+4*i+2,2)}, v{vWa} offset:{i*2048 + 512}")
        return l
    def comp(b):
        return [[f"v_mfma_f32_32x32x16_bf16 {vr(vAcc,16)}, {vr(vW[b]+4*i,4)}, {vr(vA[b]+4*i,4)}, {vr(vAcc,16)}"] for i in range(4)]
    def addr():
        return [f"v_add_u32 v{vAa}, s{sSl}, v{vAa0}", f"v_add_u32 v{vWa}, s{sSl}, v{vWa0}"] + slot_adv(sSl, SLOT, NSL)
    consumer_loop(k, N, reads, comp, addr, sCnt, after_first=lambda: k.stamp(2))
    k.stamp(3)
    k(f"s_waitcnt vmcnt(0)")
    if mode == 3:
        k(f"v_and_b32 v{vT0}, 31, v{vLane}")
        k(f"v_lshlrev_b32 v{vT0}, 6, v{vT0}")
        k(f"v_lshrrev_b32 v{vT2}, 5, v{vLane}")
        k(f"v_lshl_add_u32 v{vT0}, v{vT2}, 3, v{vT0}")
        k(f"v_add_u32 v{vT0}, s{sAm}, v{vT0}")
        k(f"v_bfe_u32 v{vT2}, v{vLane}, 2, 2")
        for p in range(4):
            k(f"v_xor_b32 v{vWd}, {p}, v{vT2}")
            k(f"v_lshl_add_u32 v{vWd}, v{vWd}, 4, v{vT0}")
            k(f"ds_read_b64 {vr(vR+2*p,2)}, v{vWd}")
        k(f"s_waitcnt lgkmcnt(0)")
    else:
        k(f"v_and_b32 v{vT0}, 31, v{vLane}")
        k(f"v_lshlrev_b32 v{vT0}, 10, v{vT0}")
        k(f"v_lshrrev_b32 v{vT2}, 5, v{vLane}")
        k(f"v_lshl_add_u32 v{vT0}, v{vT2}, 4, v{vT0}")
    for r in range(8):
        k(f"v_lshlrev_b32 v{vE+2*r}, 16, v{vR+r}")
        k(f"v_and_b32 v{vE+2*r+1}, 0xffff0000, v{vR+r}")
    for r in range(16):
        k(f"v_add_f32 v{vAcc+r}, v{vAcc+r}, v{vE+r}")
    for r in range(8):
        k(f"v_cvt_pk_bf16_f32 v{vR+r}, v{vAcc+2*r}, v{vAcc+2*r+1}")
    if mode == 3:
        k(f"buffer_store_dwordx4 {vr(vR,4)}, v{vL16}, {sr(sSWS,4)}, s{sHo} offen")
        k(f"buffer_store_dwordx4 {vr(vR+4,4)}, v{vL16}, {sr(sSWS,4)}, s{sHo} offen offset:1024")
        for r in range(8):
            k(f"v_lshlrev_b32 v{vE+2*r}, 16, v{vR+r}")
            k(f"v_and_b32 v{vE+2*r+1}, 0xffff0000, v{vR+r}")
        vS = vAcc
        k(f"v_add_f32 v{vS}, v{vE}, v{vE+1}")
        k(f"v_mul_f32 v{vS+1}, v{vE}, v{vE}")
        k(f"v_add_f32 v{vS+2}, v{vE+2}, v{vE+3}")
        k(f"v_mul_f32 v{vS+3}, v{vE+1}, v{vE+1}")
        for r in range(2, 16):
            if r >= 4: k(f"v_add_f32 v{vS+2*(r&1)}, v{vS+2*(r&1)}, v{vE+r}")
            k(f"v_fmac_f32 v{vS+1+2*(r&1)}, v{vE+r}, v{vE+r}")
        k(f"v_add_f32 v{vS}, v{vS}, v{vS+2}")
        k(f"v_add_f32 v{vS+1}, v{vS+1}, v{vS+3}")
        k(f"v_lshlrev_b32 v{vT0}, 3, v{vLane}")
        k(f"v_add_u32 v{vT1}, s{sAm}, v{vT0}")
        k(f"ds_write_b64 v{vT1}, {vr(vS,2)}")
        k(f"s_waitcnt lgkmcnt(0)")
        k(f"s_barrier")
        k(f"s_cmp_lg_u32 s{sCt}, 0")
        k(f"s_cbranch_scc1 {k.L('done')}")
        k(f"ds_read_b64 {vr(vS+2,2)}, v{vT1} offset:4096")
        k(f"s_waitcnt lgkmcnt(0)")
        k(f"v_add_f32 v{vS}, v{vS}, v{vS+2}")
        k(f"v_add_f32 v{vS+1}, v{vS+1}, v{vS+3}")
        half_combine(k, [vS, vS+1], vT1)
        k(f"v_and_b32 v{vT0}, 31, v{vLane}")
        k(f"v_lshlrev_b32 v{vT0}, 4, v{vT0}")
        k(f"s_lshl_b32 s{sT0}, s{sTT}, 11")
        k(f"s_lshr_b32 s{sT1}, s{sCb}, 1")
        k(f"s_lshl_b32 s{sT1}, s{sT1}, 9")
        k(f"s_add_u32 s{sT0}, s{sT0}, s{sT1}")
        k(f"s_and_b32 s{sT1}, s{sCb}, 1")
        k(f"s_lshl_b32 s{sT1}, s{sT1}, 3")
        k(f"s_add_u32 s{sT0}, s{sT0}, s{sT1}")
        k(f"s_add_u32 s{sT0}, s{sT0}, {WS_HS:#x}")
        k(f"buffer_store_dwordx2 {vr(vS,2)}, v{vT0}, {sr(sSWS,4)}, s{sT0} offen")
        k.label("done")
    else:
        k(f"s_nop 1")
        for m in range(2):
            k(f"v_permlane32_swap_b32 v{vR+4*m}, v{vR+4*m+2}")
            k(f"v_permlane32_swap_b32 v{vR+4*m+1}, v{vR+4*m+3}")
        k(f"buffer_store_dwordx4 {vr(vR,4)}, v{vT0}, {sr(sSX,4)}, s{sXo} offen")
        k(f"buffer_store_dwordx4 {vr(vR+4,4)}, v{vT0}, {sr(sSX,4)}, s{sXo} offen offset:32")
    k.stamp(4)
    k.stamp_flush(kidx, 5, vT0)
    k(f"s_endpgm")
    k.label("loader")
    k(f"s_sub_u32 s{sWave}, s{sWave}, 4")
    k(f"v_lshl_add_u32 v{vWd}, v{vT1}, 4, v{vT0}")
    k(f"v_add_u32 v{vT2}, 64, v{vWd}")
    k(f"s_lshr_b32 s{sTh}, s{sWave}, 1")
    k(f"s_lshl_b32 s{sTT}, s{sTb}, 1")
    k(f"s_add_u32 s{sTT}, s{sTT}, s{sTh}")
    k(f"s_mul_i32 s{sAo}, s{sTT}, {NKS*1024}")
    k(f"s_and_b32 s{sT0}, s{sWave}, 1")
    k(f"s_lshl_b32 s{sT0}, s{sT0}, 11")
    k(f"s_add_u32 s{sAo}, s{sAo}, s{sT0}")
    k(f"s_add_u32 s{sAo}, s{sAo}, {(WS_OF if mode == 3 else WS_UF):#x}")
    k(f"s_lshl_b32 s{sAm}, s{sWave}, 11")
    k(f"s_add_u32 s{sWm}, s{sAm}, 8192")
    k(f"s_lshl_b32 s{sWo}, s{sWave}, 14")
    k(f"s_lshl_b32 s{sT0}, s{sCb}, 7")
    k(f"s_add_u32 s{sWo}, s{sWo}, s{sT0}")
    k(f"s_waitcnt lgkmcnt(0)")
    k.srd(sSW, sPw, sPw+1, NKS*16*1024)
    k.srd(sSWS, sWSp, sWSp+1, WS_END)
    def issue():
        k(f"s_add_u32 m0, s{sSl}, s{sWm}")
        k(f"s_lshl_b32 s{sT0}, s{sSt}, 16")
        k(f"s_add_u32 s{sT0}, s{sT0}, s{sWo}")
        k(f"buffer_load_dwordx4 v{vWd}, {sr(sSW,4)}, s{sT0} offen lds")
        k(f"s_add_u32 m0, m0, 1024")
        k(f"s_lshl_b32 s{sT1}, s{sSt}, 12")
        k(f"buffer_load_dwordx4 v{vT2}, {sr(sSW,4)}, s{sT0} offen lds")
        k(f"s_add_u32 m0, s{sSl}, s{sAm}")
        k(f"s_add_u32 s{sT1}, s{sT1}, s{sAo}")
        k(f"buffer_load_dwordx4 v{vL16}, {sr(sSWS,4)}, s{sT1} offen lds")
        k(f"buffer_load_dwordx4 v{vL16}, {sr(sSWS,4)}, s{sT1} offen offset:1024 lds")
        k(f"s_add_u32 s{sSt}, s{sSt}, 1")
        k(f"s_cmp_eq_u32 s{sSt}, {N}")
        k(f"s_cselect_b32 s{sSt}, 0, s{sSt}")
        for t in slot_adv(sSl, SLOT, NSL): k(t)
    loader_loop(k, N, NSL, 4, issue, sCnt, PRE=3)
    return k
def build3(stamp=False, kidx=0): return build(3, stamp, kidx)
def build6(stamp=False, kidx=0): return build(6, stamp, kidx)
```

```python
from common import *
from ring import *
from k1_qkv import lane_consts, f32
import os

def build(stamp=False, kidx=0):
    SLOT = 32768; NSL = 4; N = 8
    SCR = NSL*SLOT
    k = K("win_kernel", 224, 768, SCR + 16384)
    k.stamps = stamp
    sPw = k.salloc(2, 2); sWSp = k.salloc(2, 2)
    sSW = k.salloc(4, 4); sSWS = k.salloc(4, 4)
    sWave = k.salloc(); sTT = k.salloc(); sNb = k.salloc(); sRb = k.salloc(); sHf = k.salloc(); sTl = k.salloc()
    sT0 = k.salloc(); sT1 = k.salloc(); sAo = k.salloc(); sWo = k.salloc(); sScr = k.salloc(); sCnt = k.salloc()
    sC0 = k.salloc(); sSl = k.salloc(); sAm = k.salloc(); sWm = k.salloc(); sSt = k.salloc()
    vLane = k.valloc(); vL16 = k.valloc(); vT0 = k.valloc(); vT1 = k.valloc(); vT2 = k.valloc(); vT3 = k.valloc()
    vWa0 = k.valloc(4); vAa0 = k.valloc(4); vWa = k.valloc(4); vAa = k.valloc(4)
    vSum = k.valloc(2, 2); vSq = vSum+1
    vCs = k.valloc(2); vOnes = k.valloc(); vSum2 = k.valloc(); vSq2 = k.valloc()
    vW = [k.valloc(32, 4), k.valloc(32, 4)]
    vA = [k.valloc(16, 4), k.valloc(16, 4)]
    vAcc = k.valloc(32, 4)
    vHS = k.valloc(8, 4)
    k.stamp(0)
    k(f"s_load_dwordx2 {sr(sPw,2)}, s[0:1], {KA_WIN}")
    k(f"s_load_dwordx2 {sr(sWSp,2)}, s[0:1], {KA_WS}")
    k(f"v_lshrrev_b32 v{vT0}, 6, v0")
    k(f"v_and_b32 v{vLane}, 63, v0")
    k(f"v_readfirstlane_b32 s{sWave}, v{vT0}")
    k(f"v_lshlrev_b32 v{vL16}, 4, v{vLane}")
    k(f"s_and_b32 s{sT0}, s2, 7")
    k(f"s_lshl_b32 s{sT0}, s{sT0}, 1")
    k(f"s_bfe_u32 s{sT1}, s2, {3 | (1<<16)}")
    k(f"s_add_u32 s{sRb}, s{sT0}, s{sT1}")
    k(f"s_lshr_b32 s{sNb}, s2, 4")
    ROT = int(os.environ.get("K4_ROT", 1))
    k(f"s_lshl_b32 s{sSt}, s{sT1}, 2")
    k(f"s_add_u32 s{sSt}, s{sSt}, s{sNb}")
    k(f"s_and_b32 s{sSt}, s{sSt}, {7 if ROT else 0}")
    k(f"s_and_b32 s{sTl}, s{sWave}, 3")
    k(f"s_lshl_b32 s{sTT}, s{sRb}, 2")
    k(f"s_add_u32 s{sTT}, s{sTT}, s{sTl}")
    k(f"s_mov_b32 s{sSl}, 0")
    k(f"s_cmp_ge_u32 s{sWave}, 8")
    k(f"s_cbranch_scc1 {k.L('loader')}")
    k(f"s_lshr_b32 s{sHf}, s{sWave}, 2")
    k(f"s_lshl_b32 s{sScr}, s{sWave}, 10")
    k(f"s_add_u32 s{sScr}, s{sScr}, {SCR}")
    lane_consts(k, vLane, vT0, vT1, natural=False)
    k(f"s_lshl_b32 s{sT0}, s{sHf}, 11")
    k(f"s_add_u32 s{sT0}, s{sT0}, 16384")
    k(f"v_add_u32 v{vT1}, s{sT0}, v{vT1}")
    k(f"s_lshl_b32 s{sT0}, s{sTl}, 12")
    k(f"v_add_u32 v{vT0}, s{sT0}, v{vL16}")
    k(f"s_lshl_b32 s{sAm}, s{sHf}, 1")
    k(f"s_xor_b32 s{sAm}, s{sAm}, s{sTl}")
    for i in range(4):
        k(f"s_xor_b32 s{sT0}, s{sAm}, {i}")
        k(f"s_lshl_b32 s{sT1}, s{sT0}, 10")
        k(f"v_add_u32 v{vAa0+i}, s{sT1}, v{vT0}")
        k(f"s_lshl_b32 s{sT1}, s{sT0}, 12")
        k(f"v_add_u32 v{vWa0+i}, s{sT1}, v{vT1}")
    for r in [vSum, vSq, vSum2, vSq2, vCs, vCs+1]: k(f"v_mov_b32 v{r}, 0")
    k(f"v_mov_b32 v{vOnes}, 0x3f803f80")
    for i in range(32): k(f"v_mov_b32 v{vAcc+i}, 0")
    k(f"s_waitcnt lgkmcnt(0)")
    k.srd(sSWS, sWSp, sWSp+1, WS_END)
    k(f"s_lshl_b32 s{sT0}, s{sTT}, 11")
    k(f"s_add_u32 s{sT0}, s{sT0}, {WS_HS:#x}")
    k(f"buffer_load_dwordx4 {vr(vHS,4)}, v{vL16}, {sr(sSWS,4)}, s{sT0} offen")
    k(f"buffer_load_dwordx4 {vr(vHS+4,4)}, v{vL16}, {sr(sSWS,4)}, s{sT0} offen offset:1024")
    k.stamp(1)
    def reads(b):
        l = []
        for i in range(4):
            l.append(f"ds_read_b128 {vr(vA[b]+4*i,4)}, v{vAa+i}")
            for c in range(2):
                l.append(f"ds_read_b64_tr_b16 {vr(vW[b]+8*i+4*c,2)}, v{vWa+i} offset:{c*1024}")
                l.append(f"ds_read_b64_tr_b16 {vr(vW[b]+8*i+4*c+2,2)}, v{vWa+i} offset:{c*1024 + 512}")
        return l
    def comp(b):
        dots = [f"v_dot2_f32_bf16 v{vCs+(j&1)}, v{vW[b]+4*(j&1)+(j>>1)}, v{vOnes}, v{vCs+(j&1)}" for j in range(8)]
        g = []
        for i in range(4):
            for c in range(2):
                g.append([f"v_mfma_f32_32x32x16_bf16 {vr(vAcc+16*c,16)}, {vr(vW[b]+8*i+4*c,4)}, {vr(vA[b]+4*i,4)}, {vr(vAcc+16*c,16)}"])
        g.append(dots)
        return g
    def addr():
        return [f"v_add_u32 v{vAa+i}, s{sSl}, v{vAa0+i}" for i in range(4)] + [f"v_add_u32 v{vWa+i}, s{sSl}, v{vWa0+i}" for i in range(4)] + slot_adv(sSl, SLOT, NSL)
    consumer_loop(k, N, reads, comp, addr, sCnt, after_first=lambda: k.stamp(2))
    k.stamp(3)
    k(f"s_nop 2")
    half_combine(k, [vCs, vCs+1], vT0)
    k(f"v_and_b32 v{vT0}, 31, v{vLane}")
    k(f"v_lshlrev_b32 v{vT0}, 2, v{vT0}")
    k(f"v_add_u32 v{vT1}, s{sScr}, v{vT0}")
    k(f"ds_write_b32 v{vT1}, v{vCs}")
    k(f"ds_write_b32 v{vT1}, v{vCs+1} offset:128")
    k(f"s_lshl_b32 s{sT0}, s{sHf}, 12")
    k(f"s_add_u32 s{sT0}, s{sT0}, {SCR}")
    k(f"v_add_u32 v{vT2}, s{sT0}, v{vT0}")
    k(f"s_waitcnt vmcnt(0)")
    k(f"v_add_f32 v{vSum}, v{vHS}, v{vHS+2}")
    k(f"v_add_f32 v{vSq}, v{vHS+1}, v{vHS+3}")
    k(f"v_add_f32 v{vSum2}, v{vHS+4}, v{vHS+6}")
    k(f"v_add_f32 v{vSq2}, v{vHS+5}, v{vHS+7}")
    k(f"v_add_f32 v{vSum}, v{vSum}, v{vSum2}")
    k(f"v_add_f32 v{vSq}, v{vSq}, v{vSq2}")
    assert SCR % 8192 == 0
    k(f"s_waitcnt lgkmcnt(0)")
    k(f"s_barrier")
    vE = vW[0]
    for w in range(4):
        for c in range(2):
            k(f"ds_read_b32 v{vE+2*w+c}, v{vT2} offset:{w*1024 + c*128}")
    half_combine(k, [vSum, vSq], vT3)
    k(f"s_waitcnt lgkmcnt(0)")
    for c in range(2):
        k(f"v_add_f32 v{vCs+c}, v{vE+c}, v{vE+2+c}")
        k(f"v_add_f32 v{vE+4+c}, v{vE+4+c}, v{vE+6+c}")
        k(f"v_add_f32 v{vCs+c}, v{vCs+c}, v{vE+4+c}")
        k(f"ds_write_b32 v{vT1}, v{vCs+c} offset:{512 + c*128}")
    k(f"v_lshrrev_b32 v{vT2}, 5, v{vLane}")
    k(f"v_lshlrev_b32 v{vT2}, 4, v{vT2}")
    k(f"v_add_u32 v{vT2}, s{sScr}, v{vT2}")
    k(f"s_waitcnt lgkmcnt(0)")
    for c in range(2):
        for g in range(4):
            k(f"ds_read_b128 {vr(vE+16*c+4*g,4)}, v{vT2} offset:{512 + c*128 + 32*g}")
    k(f"v_mul_f32 v{vSum}, {f32(1/512):#x}, v{vSum}")
    k(f"v_mul_f32 v{vSq}, {f32(1/512):#x}, v{vSq}")
    k(f"v_fma_f32 v{vSq}, -v{vSum}, v{vSum}, v{vSq}")
    k(f"v_max_f32 v{vSq}, 0, v{vSq}")
    k(f"v_add_f32 v{vSq}, {f32(1e-5):#x}, v{vSq}")
    va, vb = vSum2, vSq2
    k(f"v_rsq_f32 v{va}, v{vSq}")
    C0 = -2*0.7978845608028654*1.4426950408889634
    C1 = C0*0.044715
    k(f"s_mov_b32 s{sC0}, {f32(C0):#x}")
    k(f"v_mul_f32 v{vb}, v{vSum}, v{va}")
    k(f"v_sub_f32 v{vb}, 0, v{vb}")
    k(f"v_mov_b32 v{vT3}, {f32(C1):#x}")
    k(f"v_mov_b32 v{vSum}, 0"); k(f"v_mov_b32 v{vSq}, 0")
    vTm = vW[1]
    vP = vA[0]
    k(f"s_waitcnt lgkmcnt(0)")
    for r in range(32):
        y = vAcc+r
        k(f"v_mul_f32 v{y}, v{y}, v{va}")
        k(f"v_fmac_f32 v{y}, v{vE+r}, v{vb}")
        k(f"v_mul_f32 v{vTm+r}, v{y}, v{y}")
        k(f"v_fma_f32 v{vTm+r}, v{vTm+r}, v{vT3}, s{sC0}")
        k(f"v_mul_f32 v{vTm+r}, v{vTm+r}, v{y}")
    for r in range(32): k(f"v_exp_f32 v{vTm+r}, v{vTm+r}")
    for r in range(32): k(f"v_add_f32 v{vTm+r}, 1.0, v{vTm+r}")
    for r in range(32): k(f"v_rcp_f32 v{vTm+r}, v{vTm+r}")
    for r in range(32): k(f"v_mul_f32 v{vAcc+r}, v{vAcc+r}, v{vTm+r}")
    k(f"s_cmp_eq_u32 s{sHf}, 0")
    k(f"s_cbranch_scc1 {k.L('z2')}")
    k(f"s_mul_i32 s{sT0}, s{sTT}, {56*1024}")
    k(f"s_lshl_b32 s{sT1}, s{sNb}, 12")
    k(f"s_add_u32 s{sT0}, s{sT0}, s{sT1}")
    k(f"s_add_u32 s{sT0}, s{sT0}, {WS_Z1F:#x}")
    for q in range(4):
        for r in range(4):
            k(f"v_cvt_pk_bf16_f32 v{vP+4*q+r}, v{vAcc+8*q+2*r}, v{vAcc+8*q+2*r+1}")
        k(f"buffer_store_dwordx4 {vr(vP+4*q,4)}, v{vL16}, {sr(sSWS,4)}, s{sT0} offen offset:{q*1024}")
    k(f"s_endpgm")
    k.label("z2")
    k(f"v_mov_b32 v{vSum2}, 0"); k(f"v_mov_b32 v{vSq2}, 0")
    for r in range(0, 32, 2):
        k(f"v_add_f32 v{vSum}, v{vSum}, v{vAcc+r}")
        k(f"v_fmac_f32 v{vSq}, v{vAcc+r}, v{vAcc+r}")
        k(f"v_add_f32 v{vSum2}, v{vSum2}, v{vAcc+r+1}")
        k(f"v_fmac_f32 v{vSq2}, v{vAcc+r+1}, v{vAcc+r+1}")
    k(f"v_add_f32 v{vSum}, v{vSum}, v{vSum2}")
    k(f"v_add_f32 v{vSq}, v{vSq}, v{vSq2}")
    half_combine(k, [vSum, vSq], vT0)
    k(f"v_and_b32 v{vSq}, 0x7fffffff, v{vSq}")
    k(f"v_and_b32 v{vT0}, 31, v{vLane}")
    k(f"v_lshlrev_b32 v{vT0}, 3, v{vT0}")
    k(f"s_mul_i32 s{sAo}, s{sTT}, {14*256}")
    k(f"s_add_u32 s{sAo}, s{sAo}, {WS_PS:#x}")
    k(f"s_lshl_b32 s{sT0}, s{sNb}, 8")
    k(f"s_add_u32 s{sT0}, s{sT0}, s{sAo}")
    k(f"buffer_store_dwordx2 {vr(vSum,2)}, v{vT0}, {sr(sSWS,4)}, s{sT0} offen sc0 sc1")
    k.stamp(4)
    vG = vA[1]
    k(f"v_bfe_u32 v{vT2}, v{vLane}, 2, 3")
    k(f"v_lshlrev_b32 v{vT2}, 8, v{vT2}")
    k(f"v_lshrrev_b32 v{vT1}, 5, v{vLane}")
    k(f"v_lshl_add_u32 v{vT2}, v{vT1}, 6, v{vT2}")
    k(f"v_and_b32 v{vT1}, 3, v{vLane}")
    k(f"v_lshl_add_u32 v{vT2}, v{vT1}, 4, v{vT2}")
    k(f"s_lshr_b32 s{sT0}, s{sNb}, 1")
    k(f"s_lshl_b32 s{sT0}, s{sT0}, 6")
    k(f"s_add_u32 s{sT0}, s{sT0}, s{sTT}")
    k(f"s_lshl_b32 s{sT0}, s{sT0}, 13")
    k(f"s_and_b32 s{sT1}, s{sNb}, 1")
    k(f"s_lshl_b32 s{sT1}, s{sT1}, 12")
    k(f"s_add_u32 s{sT0}, s{sT0}, s{sT1}")
    k(f"s_add_u32 s{sT0}, s{sT0}, {WS_Z2I:#x}")
    k(f"v_lshlrev_b32 v{vT0}, 3, v{vLane}")
    k(f"s_mov_b32 s{sCnt}, 20000")
    k.label("poll")
    for i in range(7):
        k(f"buffer_load_dwordx2 {vr(vG+2*i,2)}, v{vT0}, {sr(sSWS,4)}, s{sAo} offen offset:{i*512} sc0 sc1")
    k(f"s_waitcnt vmcnt(0)")
    k(f"v_or_b32 v{vT1}, v{vG+1}, v{vG+3}")
    k(f"v_or3_b32 v{vT1}, v{vT1}, v{vG+5}, v{vG+7}")
    k(f"v_or3_b32 v{vT1}, v{vT1}, v{vG+9}, v{vG+11}")
    k(f"v_or_b32 v{vT1}, v{vT1}, v{vG+13}")
    k(f"v_cmp_gt_i32 vcc, 0, v{vT1}")
    k(f"s_sub_u32 s{sCnt}, s{sCnt}, 1")
    k(f"s_cbranch_scc1 {k.L('polldone')}")
    k(f"s_cbranch_vccnz {k.L('poll')}")
    k.label("polldone")
    k.stamp(5)
    for i in range(1, 7):
        k(f"v_add_f32 v{vG}, v{vG}, v{vG+2*i}")
        k(f"v_add_f32 v{vG+1}, v{vG+1}, v{vG+2*i+1}")
    half_combine(k, [vG, vG+1], vT0)
    k(f"v_mul_f32 v{vG}, {f32(1/896):#x}, v{vG}")
    k(f"v_mul_f32 v{vG+1}, {f32(1/896):#x}, v{vG+1}")
    k(f"v_fma_f32 v{vG+1}, -v{vG}, v{vG}, v{vG+1}")
    k(f"v_max_f32 v{vG+1}, 0, v{vG+1}")
    k(f"v_add_f32 v{vG+1}, {f32(1e-5):#x}, v{vG+1}")
    k(f"v_rsq_f32 v{vG+1}, v{vG+1}")
    k(f"s_nop 0")
    k(f"v_mul_f32 v{vG}, v{vG}, v{vG+1}")
    k(f"v_sub_f32 v{vG}, 0, v{vG}")
    for q in range(4):
        for r in range(8):
            k(f"v_fma_f32 v{vAcc+8*q+r}, v{vAcc+8*q+r}, v{vG+1}, v{vG}")
        for r in range(4):
            k(f"v_cvt_pk_bf16_f32 v{vP+4*q+r}, v{vAcc+8*q+2*r}, v{vAcc+8*q+2*r+1}")
        k(f"buffer_store_dwordx4 {vr(vP+4*q,4)}, v{vT2}, {sr(sSWS,4)}, s{sT0} offen offset:{(q>>1)*2048 + (q&1)*128}")
    k.stamp(6)
    k.stamp_flush(kidx, 7, vT0)
    k(f"s_endpgm")
    k.label("loader")
    k(f"s_lshl_b32 s{sAo}, s{sTT}, 15")
    k(f"s_add_u32 s{sAo}, s{sAo}, {WS_HF:#x}")
    k(f"v_lshrrev_b32 v{vT0}, 2, v{vLane}")
    k(f"v_mul_u32_u24 v{vT0}, 3584, v{vT0}")
    k(f"v_and_b32 v{vT1}, 3, v{vLane}")
    k(f"v_lshl_add_u32 v{vT0}, v{vT1}, 4, v{vT0}")
    BIAS = 4096
    for c in range(4):
        g = (1792 if c < 2 else 0) + (c & 1)*64
        k(f"v_add_u32 v{vWa+c}, {g - c*1024 + BIAS}, v{vT0}")
    k(f"s_mul_i32 s{sWo}, s{sTl}, {16*3584}")
    k(f"s_lshl_b32 s{sT0}, s{sNb}, 7")
    k(f"s_add_u32 s{sWo}, s{sWo}, s{sT0}")
    k(f"s_lshl_b32 s{sAm}, s{sTl}, 12")
    k(f"s_add_u32 s{sWm}, s{sAm}, 16384")
    k(f"s_waitcnt lgkmcnt(0)")
    k(f"s_sub_u32 s{sPw}, s{sPw}, {BIAS}")
    k(f"s_subb_u32 s{sPw+1}, s{sPw+1}, 0")
    k.srd(sSW, sPw, sPw+1, D*F*2 + BIAS)
    k.srd(sSWS, sWSp, sWSp+1, WS_END)
    def issue():
        k(f"s_add_u32 m0, s{sSl}, s{sWm}")
        k(f"s_mul_i32 s{sT0}, s{sSt}, {64*3584}")
        k(f"s_add_u32 s{sT0}, s{sT0}, s{sWo}")
        for c in range(4):
            k(f"buffer_load_dwordx4 v{vWa+c}, {sr(sSW,4)}, s{sT0} offen offset:{c*1024} lds")
        k(f"s_add_u32 m0, s{sSl}, s{sAm}")
        k(f"s_lshl_b32 s{sT1}, s{sSt}, 12")
        k(f"s_add_u32 s{sT1}, s{sT1}, s{sAo}")
        for i in range(4):
            k(f"buffer_load_dwordx4 v{vL16}, {sr(sSWS,4)}, s{sT1} offen offset:{i*1024} lds")
        k(f"s_add_u32 s{sSt}, s{sSt}, 1")
        k(f"s_and_b32 s{sSt}, s{sSt}, 7")
        for t in slot_adv(sSl, SLOT, NSL): k(t)
    loader_loop(k, N, NSL, 8, issue, sCnt, PRE=2)
    return k
```

```python
from common import *
from k1_qkv import f32
import os

def build(stamp=False, kidx=0):
    NSL = int(os.environ.get("K5_NSL", 6)); SLOT = 24576
    MAP = int(os.environ.get("K5_MAP", 0))
    ROT = int(os.environ.get("K5_ROT", 1))
    NC = 4
    k = K("sp_kernel", 224 if MAP == 0 else 256, 512, NSL*SLOT)
    k.stamps = stamp
    sPw = k.salloc(4, 4); sWSp = k.salloc(2, 2)
    sSW = k.salloc(4, 4); sSWS = k.salloc(4, 4); sSB = k.salloc(4, 4)
    sWave = k.salloc(); sTb = k.salloc(); sFb = k.salloc(); sTh = k.salloc(); sFh = k.salloc()
    sT0 = k.salloc(); sT1 = k.salloc(); sWo = k.salloc(); sZo = k.salloc(); sSt = k.salloc(); sSl = k.salloc()
    sCnt = k.salloc(); sUo = k.salloc(); sRd = k.salloc(); sWm = k.salloc(); sZm = k.salloc()
    vLane = k.valloc(); vL16 = k.valloc(); vT0 = k.valloc(); vT1 = k.valloc(); vT2 = k.valloc()
    vWd = k.valloc(2); vWa0 = k.valloc(4); vZa0 = k.valloc(); vWa = k.valloc(4); vZa = k.valloc(); vBias = k.valloc()
    vZ1 = k.valloc(16, 4)
    vWf = [k.valloc(16, 4), k.valloc(16, 4)]
    vZf = [k.valloc(32, 4), k.valloc(32, 4)]
    vAcc = k.valloc(32, 4)
    vE = k.valloc(16, 4)
    k.stamp(0)
    k(f"s_load_dwordx4 {sr(sPw,4)}, s[0:1], {KA_WSP}")
    k(f"s_load_dwordx2 {sr(sWSp,2)}, s[0:1], {KA_WS}")
    k(f"v_lshrrev_b32 v{vT0}, 6, v0")
    k(f"v_and_b32 v{vLane}, 63, v0")
    k(f"v_readfirstlane_b32 s{sWave}, v{vT0}")
    k(f"v_lshlrev_b32 v{vL16}, 4, v{vLane}")
    if MAP == 0:
        k(f"s_and_b32 s{sT0}, s2, 7")
        k(f"s_lshl_b32 s{sT0}, s{sT0}, 2")
        k(f"s_bfe_u32 s{sT1}, s2, {3 | (2<<16)}")
        k(f"s_add_u32 s{sTb}, s{sT0}, s{sT1}")
        k(f"s_lshr_b32 s{sFb}, s2, 5")
        k(f"s_lshl_b32 s{sSt}, s{sT1}, 3")
        k(f"s_add_u32 s{sSt}, s{sSt}, s{sFb}")
    else:
        k(f"s_and_b32 s{sT0}, s2, 3")
        k(f"s_lshl_b32 s{sT0}, s{sT0}, 3")
        k(f"s_bfe_u32 s{sT1}, s2, {3 | (3<<16)}")
        k(f"s_add_u32 s{sTb}, s{sT0}, s{sT1}")
        k(f"s_bfe_u32 s{sT0}, s2, {2 | (1<<16)}")
        k(f"s_lshl_b32 s{sT0}, s{sT0}, 2")
        k(f"s_lshr_b32 s{sFb}, s2, 6")
        k(f"s_lshl_b32 s{sSt}, s{sT1}, 2")
        k(f"s_add_u32 s{sSt}, s{sSt}, s{sFb}")
        k(f"s_add_u32 s{sFb}, s{sFb}, s{sT0}")
        k(f"s_cmp_ge_u32 s{sFb}, 7")
        k(f"s_cbranch_scc1 {k.L('exit')}")
    if ROT == 0: k(f"s_mov_b32 s{sSt}, 0")
    k(f"s_cmp_ge_u32 s{sWave}, {NC}")
    k(f"s_cbranch_scc1 {k.L('loader')}")
    k(f"s_and_b32 s{sTh}, s{sWave}, 1")
    k(f"s_lshr_b32 s{sFh}, s{sWave}, 1")
    k(f"s_lshl_b32 s{sT0}, s{sTb}, 1")
    k(f"s_add_u32 s{sT0}, s{sT0}, s{sTh}")
    k(f"s_mul_i32 s{sUo}, s{sT0}, 56")
    k(f"s_lshl_b32 s{sT1}, s{sFb}, 3")
    k(f"s_add_u32 s{sUo}, s{sUo}, s{sT1}")
    k(f"s_lshl_b32 s{sT1}, s{sFh}, 2")
    k(f"s_add_u32 s{sUo}, s{sUo}, s{sT1}")
    k(f"s_lshl_b32 s{sUo}, s{sUo}, 10")
    k(f"s_lshl_b32 s{sCnt}, s{sT0}, 6")
    k(f"v_and_b32 v{vT2}, 31, v{vLane}")
    k(f"v_lshlrev_b32 v{vBias}, 1, v{vT2}")
    k(f"v_bfe_u32 v{vT0}, v{vLane}, 1, 3")
    k(f"v_lshrrev_b32 v{vT1}, 5, v{vLane}")
    k(f"v_xor_b32 v{vT0}, v{vT0}, v{vT1}")
    k(f"v_lshlrev_b32 v{vT2}, 7, v{vT2}")
    k(f"s_lshl_b32 s{sT0}, s{sTh}, 12")
    k(f"v_add_u32 v{vT2}, s{sT0}, v{vT2}")
    for i in range(4):
        k(f"v_xor_b32 v{vWa0+i}, {2*i}, v{vT0}")
        k(f"v_lshl_add_u32 v{vWa0+i}, v{vWa0+i}, 4, v{vT2}")
    k(f"v_lshlrev_b32 v{vZa0}, 9, v{vT1}")
    k(f"v_bfe_u32 v{vT0}, v{vLane}, 4, 1")
    k(f"v_lshl_add_u32 v{vZa0}, v{vT0}, 7, v{vZa0}")
    k(f"v_and_b32 v{vT0}, 1, v{vLane}")
    k(f"v_lshl_add_u32 v{vZa0}, v{vT0}, 6, v{vZa0}")
    k(f"v_bfe_u32 v{vT0}, v{vLane}, 2, 2")
    k(f"v_lshl_add_u32 v{vZa0}, v{vT0}, 4, v{vZa0}")
    k(f"v_bfe_u32 v{vT0}, v{vLane}, 1, 1")
    k(f"v_lshl_add_u32 v{vZa0}, v{vT0}, 3, v{vZa0}")
    k(f"s_lshl_b32 s{sT0}, s{sFh}, 12")
    k(f"s_add_u32 s{sT0}, s{sT0}, 8192")
    k(f"v_add_u32 v{vZa0}, s{sT0}, v{vZa0}")
    for i in range(32): k(f"v_mov_b32 v{vAcc+i}, 0")
    k(f"s_mov_b32 s{sRd}, 0")
    k(f"s_waitcnt lgkmcnt(0)")
    k.srd(sSB, sPw+2, sPw+3, T*2)
    k.srd(sSWS, sWSp, sWSp+1, WS_END)
    k(f"buffer_load_ushort v{vBias}, v{vBias}, {sr(sSB,4)}, s{sCnt} offen")
    k(f"s_add_u32 s{sT0}, s{sUo}, {WS_Z1F:#x}")
    for i in range(4):
        k(f"buffer_load_dwordx4 {vr(vZ1+4*i,4)}, v{vL16}, {sr(sSWS,4)}, s{sT0} offen offset:{i*1024}")
    def reads(b):
        l = []
        for ks in range(4):
            off = (ks >> 1)*8192 + (ks & 1)*1024
            l.append(f"ds_read_b128 {vr(vWf[b]+4*ks,4)}, v{vWa+ks}")
            for c in range(2):
                l.append(f"ds_read_b64_tr_b16 {vr(vZf[b]+8*ks+4*c,2)}, v{vZa} offset:{off + c*2048}")
                l.append(f"ds_read_b64_tr_b16 {vr(vZf[b]+8*ks+4*c+2,2)}, v{vZa} offset:{off + c*2048 + 256}")
        return l
    def mfmas(b):
        return [f"v_mfma_f32_32x32x16_bf16 {vr(vAcc+16*c,16)}, {vr(vZf[b]+8*ks+4*c,4)}, {vr(vWf[b]+4*ks,4)}, {vr(vAcc+16*c,16)}"
                for ks in range(4) for c in range(2)]
    def addr():
        l = [f"v_add_u32 v{vWa+i}, s{sRd}, v{vWa0+i}" for i in range(4)]
        l.append(f"v_add_u32 v{vZa}, s{sRd}, v{vZa0}")
        l += [f"s_add_u32 s{sRd}, s{sRd}, {SLOT}", f"s_cmp_eq_u32 s{sRd}, {NSL*SLOT}", f"s_cselect_b32 s{sRd}, 0, s{sRd}"]
        return l
    def stage(b, first=False, extra=[]):
        k(f"s_barrier")
        rd = reads(b); mm = [] if first else mfmas(1-b)
        tail = addr() + extra
        while rd or mm:
            if mm: k(mm.pop(0))
            for _ in range(4):
                if rd: k(rd.pop(0))
                elif tail: k(tail.pop(0))
        for t in tail: k(t)
        k(f"s_waitcnt lgkmcnt(0)")
    for t in addr(): k(t)
    k(f"s_mov_b32 s{sCnt}, 15")
    k.stamp(1)
    stage(0, first=True)
    k.label("loop")
    stage(1)
    stage(0, extra=[f"s_sub_u32 s{sCnt}, s{sCnt}, 1", f"s_cmp_lg_u32 s{sCnt}, 0"])
    k(f"s_cbranch_scc1 {k.L('loop')}")
    stage(1)
    for m in mfmas(1): k(m)
    k.stamp(2)
    k(f"s_waitcnt vmcnt(0)")
    k(f"v_lshlrev_b32 v{vBias}, 16, v{vBias}")
    k(f"s_add_u32 s{sT0}, s{sUo}, {WS_UF:#x}")
    k(f"s_nop 8")
    for c in range(2):
        for r in range(8):
            k(f"v_lshlrev_b32 v{vE+2*r}, 16, v{vZ1+8*c+r}")
            k(f"v_and_b32 v{vE+2*r+1}, 0xffff0000, v{vZ1+8*c+r}")
        for r in range(16):
            k(f"v_add_f32 v{vAcc+16*c+r}, v{vAcc+16*c+r}, v{vBias}")
            k(f"v_mul_f32 v{vAcc+16*c+r}, v{vAcc+16*c+r}, v{vE+r}")
        for r in range(8):
            k(f"v_cvt_pk_bf16_f32 v{vZ1+8*c+r}, v{vAcc+16*c+2*r}, v{vAcc+16*c+2*r+1}")
        for m in range(2):
            k(f"buffer_store_dwordx4 {vr(vZ1+8*c+4*m,4)}, v{vL16}, {sr(sSWS,4)}, s{sT0} offen offset:{(2*c+m)*1024}")
    k.stamp(3)
    k.stamp_flush(kidx, 4, vT0)
    k(f"s_endpgm")
    k.label("loader")
    k(f"s_sub_u32 s{sWave}, s{sWave}, {NC}")
    k(f"v_lshrrev_b32 v{vT0}, 4, v{vLane}")
    k(f"v_and_b32 v{vT1}, 7, v{vLane}")
    k(f"v_xor_b32 v{vT1}, v{vT1}, v{vT0}")
    k(f"v_lshrrev_b32 v{vT0}, 3, v{vLane}")
    k(f"v_lshlrev_b32 v{vT0}, 12, v{vT0}")
    k(f"v_lshl_add_u32 v{vWd}, v{vT1}, 4, v{vT0}")
    k(f"v_xor_b32 v{vWd+1}, 64, v{vWd}")
    k(f"v_add_u32 v{vWd+1}, {8*4096}, v{vWd+1}")
    k(f"s_lshl_b32 s{sWo}, s{sTb}, 18")
    k(f"s_lshl_b32 s{sT0}, s{sWave}, 16")
    k(f"s_add_u32 s{sWo}, s{sWo}, s{sT0}")
    k(f"s_lshl_b32 s{sZo}, s{sFb}, 19")
    k(f"s_lshl_b32 s{sT0}, s{sWave}, 12")
    k(f"s_add_u32 s{sZo}, s{sZo}, s{sT0}")
    k(f"s_add_u32 s{sZo}, s{sZo}, {WS_Z2I:#x}")
    k(f"s_lshl_b32 s{sWm}, s{sWave}, 11")
    k(f"s_add_u32 s{sZm}, s{sT0}, 8192")
    k(f"s_mov_b32 s{sSl}, 0")
    k(f"s_waitcnt lgkmcnt(0)")
    k.srd(sSW, sPw, sPw+1, T*T*2)
    k.srd(sSWS, sWSp, sWSp+1, WS_END)
    EXP = os.environ.get("K5_EXP", "")
    def issue():
        k(f"s_lshl_b32 s{sT0}, s{sSt}, 7")
        if "w" in EXP: k(f"s_mov_b32 s{sT0}, 0")
        k(f"s_add_u32 m0, s{sSl}, s{sWm}")
        k(f"s_add_u32 s{sT0}, s{sT0}, s{sWo}")
        k(f"buffer_load_dwordx4 v{vWd}, {sr(sSW,4)}, s{sT0} offen lds")
        k(f"s_add_u32 m0, m0, 1024")
        k(f"s_lshl_b32 s{sT1}, s{sSt}, 14")
        if "z" in EXP: k(f"s_mov_b32 s{sT1}, 0")
        k(f"buffer_load_dwordx4 v{vWd+1}, {sr(sSW,4)}, s{sT0} offen lds")
        k(f"s_add_u32 m0, s{sSl}, s{sZm}")
        k(f"s_add_u32 s{sT1}, s{sT1}, s{sZo}")
        for i in range(4):
            k(f"buffer_load_dwordx4 v{vL16}, {sr(sSWS,4)}, s{sT1} offen offset:{i*1024} lds")
        k(f"s_add_u32 s{sSt}, s{sSt}, 1")
        k(f"s_and_b32 s{sSt}, s{sSt}, 31")
        k(f"s_add_u32 s{sSl}, s{sSl}, {SLOT}")
        k(f"s_cmp_eq_u32 s{sSl}, {NSL*SLOT}")
        k(f"s_cselect_b32 s{sSl}, 0, s{sSl}")
    PRE = 2
    for s in range(PRE): issue()
    issued = PRE
    s = 0
    while issued < s + NSL - 1 + 0:
        k(f"s_waitcnt vmcnt({6*(issued - s - 1)})")
        k(f"s_barrier")
        n = min(2, s + NSL - issued)
        for _ in range(n): issue()
        issued += n
        s += 1
    assert issued == s + NSL - 1, (issued, s)
    k(f"s_mov_b32 s{sCnt}, {32 - issued}")
    k.label("lloop")
    k(f"s_waitcnt vmcnt({6*(NSL-2)})")
    k(f"s_barrier")
    issue()
    k(f"s_sub_u32 s{sCnt}, s{sCnt}, 1")
    k(f"s_cmp_lg_u32 s{sCnt}, 0")
    k(f"s_cbranch_scc1 {k.L('lloop')}")
    for t in range(NSL-1):
        k(f"s_waitcnt vmcnt({6*(NSL-2-t)})")
        k(f"s_barrier")
    return k
```

```python
from common import *

def loader_loop(k, N, NSL, nld, issue, sCnt, PRE=2, name="lloop"):
    PRE = min(PRE, NSL-1, N)
    for s in range(PRE): issue()
    issued = PRE; s = 0
    while issued < min(N, s + NSL - 1):
        k(f"s_waitcnt vmcnt({nld*(issued - s - 1)})")
        k(f"s_barrier")
        n = min(2, s + NSL - issued, N - issued)
        while nld*(issued + n - s - 1) > 63: n -= 1
        for _ in range(n): issue()
        issued += n; s += 1
    rem = N - issued
    if rem > 0:
        assert issued == s + NSL - 1
        if rem > 3:
            k(f"s_mov_b32 s{sCnt}, {rem}")
            k.label(name)
            k(f"s_waitcnt vmcnt({nld*(NSL-2)})")
            k(f"s_barrier")
            issue()
            k(f"s_sub_u32 s{sCnt}, s{sCnt}, 1")
            k(f"s_cmp_lg_u32 s{sCnt}, 0")
            k(f"s_cbranch_scc1 {k.L(name)}")
        else:
            for _ in range(rem):
                k(f"s_waitcnt vmcnt({nld*(NSL-2)})")
                k(f"s_barrier")
                issue()
        s += rem
    while s < N:
        k(f"s_waitcnt vmcnt({nld*(N - s - 1)})")
        k(f"s_barrier")
        s += 1

def consumer_loop(k, N, reads, comp, addr, sCnt, per=4, name="cloop", after_first=None):
    def stage(b, first=False, extra=()):
        k(f"s_barrier")
        if first and after_first: after_first()
        rd = list(reads(b)); mm = [] if first else list(comp(1-b))
        tail = list(addr()) + list(extra)
        while rd or mm:
            if mm:
                for i in mm.pop(0): k(i)
            for _ in range(per):
                if rd: k(rd.pop(0))
                elif tail: k(tail.pop(0))
        for t in tail: k(t)
        k(f"s_waitcnt lgkmcnt(0)")
    for t in addr(): k(t)
    assert N % 2 == 0
    stage(0, first=True)
    it = (N-2)//2
    if it > 0:
        k(f"s_mov_b32 s{sCnt}, {it}")
        k.label(name)
        stage(1)
        stage(0, extra=[f"s_sub_u32 s{sCnt}, s{sCnt}, 1", f"s_cmp_lg_u32 s{sCnt}, 0"])
        k(f"s_cbranch_scc1 {k.L(name)}")
    stage(1)
    for g in comp(1):
        for i in g: k(i)

def slot_adv(sR, SLOT, NSL):
    return [f"s_add_u32 s{sR}, s{sR}, {SLOT}", f"s_cmp_eq_u32 s{sR}, {NSL*SLOT}", f"s_cselect_b32 s{sR}, 0, s{sR}"]

def half_combine(k, regs, vT):
    for r in regs:
        k(f"v_mov_b32 v{vT}, v{r}")
        k(f"s_nop 1")
        k(f"v_permlane32_swap_b32 v{vT}, v{r}")
        k(f"s_nop 1")
        k(f"v_add_f32 v{r}, v{r}, v{vT}")
```

```python
import os, struct
T = 2048; D = 512; H = 32; DH = 16; F = 1792; FH = 896
KA_X, KA_WQKV, KA_WO, KA_BX, KA_WIN, KA_WSP, KA_BSP, KA_WOUT, KA_OUT, KA_DBG, KA_WS = [8*i for i in range(11)]
WS_QF  = 0x000000
WS_KVF = 0x200000
WS_OF  = 0x600000
WS_HF  = 0x800000
WS_Z1F = 0xA00000
WS_Z2I = 0xE00000
WS_UF  = 0x1200000
WS_PS  = 0x1600000
WS_HS  = 0x1680000
WS_FL  = 0x1700000
FS = 128; FSH = 7
NFL = 24576
R3 = 2; R4 = 8
FL2 = 0
FL3 = FL2 + 2048
FL4 = FL3 + R3*1024
FL4B = FL4 + R4*1024
FL5 = FL4B + 1024
R1 = 8
FL1 = FL5 + 2048
assert FL1 + R1*1024 <= NFL
WS_END = 0x1A00000
WS_STAMP = 0x1C00000
LDS_MAX = 163840

def f32(x): return struct.unpack('<I', struct.pack('<f', x))[0]
def vr(a, n=1): return f"v{a}" if n == 1 else f"v[{a}:{a+n-1}]"
def sr(a, n=1): return f"s{a}" if n == 1 else f"s[{a}:{a+n-1}]"
def env(n, d): return type(d)(os.environ.get(n, d))

SCOPE_ST = {0: "", 1: " sc1", 2: " sc0 sc1"}[env("SC_ST", 1)]
SCOPE_LD = {0: "", 1: " sc1", 2: " sc0 sc1"}[env("SC_LD", 1)]
SCOPE_PL = {1: " sc1", 2: " sc0 sc1"}[env("SC_PL", 1)]
SLEEP = env("POLL_SLEEP", 2)
PW = env('POLL_WAVE', 0)
THR = env("PRE_THR", 0)

class K:
    def __init__(self, name, stamps=False, kidx=0):
        self.name = name; self.grid = 256; self.block = 768; self.lds = LDS_MAX
        self.lines = []; self.vnext = 1; self.snext = 3; self.vmax = 1; self.smax = 3
        self.stamps = stamps; self.kidx = kidx; self.pfx = ""; self.nst = 0; self.stnames = []
    def __call__(self, s):
        for ln in s.strip("\n").split("\n"): self.lines.append("  " + ln.strip())
    def many(self, l):
        for s in l: self(s)
    def L(self, l): return f"L_{self.name}_{self.pfx}{l}"
    def label(self, l): self.lines.append(f"{self.L(l)}:")
    def v(self, n=1, align=1):
        a = (self.vnext + align - 1)//align*align
        self.vnext = a + n; self.vmax = max(self.vmax, self.vnext); return a
    def s(self, n=1, align=1):
        a = (self.snext + align - 1)//align*align
        self.snext = a + n; self.smax = max(self.smax, self.snext); assert self.snext <= 100; return a
    def mark(self): return (self.vnext, self.snext)
    def reset(self, m): self.vnext, self.snext = m
    def srd(self, s, lo, size, bias=0):
        if bias:
            self(f"s_sub_u32 s{s}, s{lo}, {bias}")
            self(f"s_subb_u32 s{s+1}, s{lo+1}, 0")
            self(f"s_and_b32 s{s+1}, s{s+1}, 0xffff")
        else:
            self(f"s_mov_b32 s{s}, s{lo}")
            self(f"s_and_b32 s{s+1}, s{lo+1}, 0xffff")
        self(f"s_mov_b32 s{s+2}, {size+bias:#x}")
        self(f"s_mov_b32 s{s+3}, 0x20000")
    def prologue(self):
        k = self
        k.sIn = k.s(16, 4)
        k.sP2 = k.s(4, 4)
        k.sWSp = k.s(2, 2)
        k.sWS = k.s(4, 4)
        k.sT0 = k.s(2, 2); k.sT1 = k.sT0 + 1; k.sWave = k.s(); k.sX = k.s(); k.sJ = k.s(); k.sCnt = k.s()
        k.sNon = k.s(2, 2)
        k.vLane = k.v(); k.vL16 = k.v()
        if k.stamps:
            k.sSt = k.s(2, 2); k.vSt = k.v()
            k(f"s_memrealtime s[{k.sSt}:{k.sSt+1}]")
            k(f"v_mov_b32 v{k.vSt}, 0")
            k(f"s_waitcnt lgkmcnt(0)")
            k(f"v_writelane_b32 v{k.vSt}, s{k.sSt}, 62")
            k.stamp("start")
        k(f"s_load_dwordx2 {sr(k.sWSp,2)}, s[0:1], {KA_WS}")
        k(f"s_load_dwordx16 {sr(k.sIn,16)}, s[0:1], 0")
        k(f"s_load_dwordx4 {sr(k.sP2,4)}, s[0:1], {KA_OUT}")
        k(f"v_lshrrev_b32 v{k.vL16}, 6, v0")
        k(f"v_and_b32 v{k.vLane}, 63, v0")
        k(f"v_readfirstlane_b32 s{k.sWave}, v{k.vL16}")
        k(f"v_lshlrev_b32 v{k.vL16}, 4, v{k.vLane}")
        k(f"s_and_b32 s{k.sX}, s2, 7")
        k(f"s_lshr_b32 s{k.sJ}, s2, 3")
    def ptrs_ready(self):
        self(f"s_waitcnt lgkmcnt(0)")
        self.srd(self.sWS, self.sWSp, WS_END)
    def ptr(self, ka):
        return self.sIn + ka//4 if ka < 64 else self.sP2 + (ka-64)//4
    def stamp(self, name):
        if not self.stamps: return
        i = self.nst; self.nst += 1; self.stnames.append(self.pfx + name)
        self(f"{'s_memrealtime' if env('STAMP_RT', 1) else 's_memtime'} s[{self.sSt}:{self.sSt+1}]")
        self(f"s_waitcnt lgkmcnt(0)")
        self(f"v_writelane_b32 v{self.vSt}, s{self.sSt}, {i}")
    def stamp_flush(self):
        if not self.stamps: return
        k = self
        w = env("STAMP_WAVE", 0)
        k(f"s_cmp_lg_u32 s{k.sWave}, {w}")
        k(f"s_cbranch_scc1 {k.L('nostamp')}")
        k(f"s_waitcnt vmcnt(0)")
        k(f"s_memrealtime s[{k.sSt}:{k.sSt+1}]")
        k(f"s_waitcnt lgkmcnt(0)")
        k(f"v_writelane_b32 v{k.vSt}, s{k.sSt}, 63")
        k(f"s_add_u32 s{k.sSt}, s{k.sWSp}, {WS_STAMP + k.kidx*65536}")
        k(f"s_addc_u32 s{k.sSt+1}, s{k.sWSp+1}, 0")
        k(f"s_lshl_b32 s{k.sT0}, s2, 8")
        k(f"v_lshl_add_u32 v{k.vL16}, v{k.vLane}, 2, s{k.sT0}")
        k(f"global_store_dword v{k.vL16}, v{k.vSt}, s[{k.sSt}:{k.sSt+1}]")
        k.label('nostamp')
    def header(self):
        if env("PLAIN", 0): return f"; @launch grid=({self.grid},1,1) block=({self.block},1,1) lds={self.lds}"
        return f"; @launch kernel={self.name} grid=({self.grid},1,1) block=({self.block},1,1) lds={self.lds}"
    def text(self):
        nv = (max(self.vmax, 8) + 3)//4*4
        assert nv <= 168, (self.name, nv)
        body = "\n".join(self.lines)
        return f"""
.text
.globl {self.name}
.p2align 8
.type {self.name},@function
{self.name}:
{body}
.section .rodata,"a"
.p2align 6
.amdhsa_kernel {self.name}
  .amdhsa_next_free_vgpr {nv}
  .amdhsa_next_free_sgpr {max(self.smax, 16)}
  .amdhsa_accum_offset {nv}
  .amdhsa_group_segment_fixed_size 0
  .amdhsa_kernarg_size 88
  .amdhsa_user_sgpr_count 2
  .amdhsa_user_sgpr_kernarg_segment_ptr 1
  .amdhsa_system_sgpr_workgroup_id_x 1
.end_amdhsa_kernel
"""

HEADER = """; Kernarg layout for this problem (88 bytes, ptrs only, base s[0:1]):
"""
def emit(kernels, path):
    s = HEADER + "\n".join(k.header() for k in kernels) + "\n"
    s += '.amdgcn_target "amdgcn-amd-amdhsa--gfx950"\n'
    for k in kernels: s += k.text()
    open(path, "w").write(s)
    import json
    json.dump([k.stnames for k in kernels], open(path + ".stn", "w"))

def tr_base(k, vTr, vTmp, natural):
    L = k.vLane
    k(f"v_lshrrev_b32 v{vTmp}, 5, v{L}")
    k(f"v_lshlrev_b32 v{vTr}, {9 if natural else 8}, v{vTmp}")
    k(f"v_bfe_u32 v{vTmp}, v{L}, 2, 2")
    k(f"v_lshl_add_u32 v{vTr}, v{vTmp}, 6, v{vTr}")
    k(f"v_bfe_u32 v{vTmp}, v{L}, 4, 1")
    k(f"v_lshl_add_u32 v{vTr}, v{vTmp}, 5, v{vTr}")
    k(f"v_and_b32 v{vTmp}, 3, v{L}")
    k(f"v_lshl_add_u32 v{vTr}, v{vTmp}, 3, v{vTr}")

def half_combine(k, regs, vT, op="v_add_f32"):
    for r, t in zip(regs, vT): k(f"v_mov_b32 v{t}, v{r}")
    k("s_nop 1")
    for r, t in zip(regs, vT): k(f"v_permlane32_swap_b32 v{t}, v{r}")
    k("s_nop 1")
    for r, t in zip(regs, vT): k(f"{op} v{r}, v{r}, v{t}")

def interleave(k, mm, rd, tail=(), per=4):
    mm = list(mm); rd = list(rd); tail = list(tail)
    while rd or mm:
        if mm:
            g = mm.pop(0)
            if isinstance(g, str): k(g)
            elif callable(g): g()
            else: k.many(g)
        for _ in range(per):
            if rd: k(rd.pop(0))
            elif tail: k(tail.pop(0))
    k.many(tail)

class Win:
    def __init__(self, k, vbase, wins):
        self.regs = {}
        for w in wins:
            if w == 0: self.regs[0] = vbase
            else:
                r = k.v(); k(f"v_add_u32 v{r}, {w*65536}, v{vbase}"); self.regs[w] = r
    def at(self, off):
        w = off >> 16
        return f"v{self.regs[w]} offset:{off & 0xffff}"

def nonce_publish(k, vA):
    m = k.mark(); sD = k.s(4, 4)
    k(f"s_cmp_lg_u32 s2, 0")
    k(f"s_cbranch_scc1 {k.L('nopub')}")
    k(f"s_cmp_lg_u32 s{k.sWave}, 7")
    k(f"s_cbranch_scc1 {k.L('nopub')}")
    k(f"s_memrealtime {sr(k.sNon,2)}")
    k.srd(sD, k.ptr(KA_DBG), 256)
    k(f"s_waitcnt lgkmcnt(0)")
    k(f"s_or_b32 s{k.sNon+1}, s{k.sNon+1}, 0x80000000")
    k(f"v_mov_b32 v{vA}, s{k.sNon}")
    k(f"v_mov_b32 v{vA+1}, s{k.sNon+1}")
    k(f"v_mov_b32 v{vA+2}, 0")
    k(f"s_mov_b64 exec, 1")
    k(f"buffer_store_dwordx2 {vr(vA,2)}, v{vA+2}, {sr(sD,4)}, 0 offen{SCOPE_PL}")
    k(f"s_mov_b64 exec, -1")
    k.label("nopub")
    k.reset(m)

def nonce_fetch(k, vA, name="nf"):
    m = k.mark(); sD = k.s(4, 4)
    k.srd(sD, k.ptr(KA_DBG), 256)
    k(f"v_mov_b32 v{vA+2}, 0")
    k(f"s_mov_b32 s{k.sCnt}, 100000")
    k.label(name)
    k(f"buffer_load_dwordx2 {vr(vA,2)}, v{vA+2}, {sr(sD,4)}, 0 offen{SCOPE_PL}")
    k(f"s_waitcnt vmcnt(0)")
    k(f"v_readfirstlane_b32 s{k.sNon+1}, v{vA+1}")
    k(f"v_readfirstlane_b32 s{k.sNon}, v{vA}")
    k(f"s_sub_u32 s{k.sCnt}, s{k.sCnt}, 1")
    k(f"s_cbranch_scc1 {k.L(name+'x')}")
    k(f"s_cmp_lt_u32 s{k.sNon+1}, 0x80000000")
    k(f"s_cbranch_scc1 {k.L(name)}")
    k.label(name+'x')
    k.reset(m)

def poll(k, name, sIdx, vA, vD, n=64, spin=100000, sleep=None):
    if sleep is None: sleep = SLEEP
    k(f"s_lshl_b32 s{sIdx}, s{sIdx}, {FSH}")
    k(f"s_add_u32 s{sIdx}, s{sIdx}, {WS_FL:#x}")
    if n < 64:
        k(f"v_min_u32 v{vA}, {n-1}, v{k.vLane}")
        k(f"v_lshlrev_b32 v{vA}, {FSH}, v{vA}")
    else:
        k(f"v_lshlrev_b32 v{vA}, {FSH + (n == 128)}, v{k.vLane}")
    k(f"s_mov_b32 s{k.sCnt}, {spin}")
    if n < 64: k(f"s_mov_b64 exec, {(1 << n) - 1:#x}" if n <= 31 else f"s_mov_b32 exec_hi, {(1 << (n-32)) - 1:#x}")
    k(f"s_branch {k.L(name+'g')}")
    k.label(name)
    k(f"s_sleep {sleep}")
    k.label(name+'g')
    k(f"buffer_load_dwordx2 {vr(vD,2)}, v{vA}, {sr(k.sWS,4)}, s{sIdx} offen{SCOPE_PL}")
    if n == 128:
        k(f"buffer_load_dwordx2 {vr(vD+2,2)}, v{vA}, {sr(k.sWS,4)}, s{sIdx} offen offset:{FS}{SCOPE_PL}")
    k(f"s_waitcnt vmcnt(0)")
    k(f"v_cmp_ne_u64 vcc, {sr(k.sNon,2)}, {vr(vD,2)}")
    if n == 128:
        m = k.mark(); sM = k.s(2, 2)
        k(f"v_cmp_ne_u64 {sr(sM,2)}, {sr(k.sNon,2)}, {vr(vD+2,2)}")
        k(f"s_or_b64 vcc, vcc, {sr(sM,2)}")
        k.reset(m)
    k(f"s_sub_u32 s{k.sCnt}, s{k.sCnt}, 1")
    k(f"s_cbranch_scc1 {k.L(name+'x')}")
    k(f"s_and_b64 exec, exec, vcc")
    k(f"s_cbranch_scc1 {k.L(name)}")
    k.label(name+'x')
    k(f"s_mov_b64 exec, -1")

def set_flag(k, sIdx, vA, vD, rep=1, sExec=None):
    k(f"s_lshl_b32 s{sIdx}, s{sIdx}, {FSH}")
    k(f"s_add_u32 s{sIdx}, s{sIdx}, {WS_FL:#x}")
    k(f"v_lshlrev_b32 v{vA}, {10 + FSH}, v{k.vLane}")
    k(f"v_mov_b32 v{vD}, s{k.sNon}")
    k(f"v_mov_b32 v{vD+1}, s{k.sNon+1}")
    k(f"s_mov_b32 exec_hi, 0")
    k(f"s_mov_b32 exec_lo, {(1 << rep) - 1 if sExec is None else 's%d' % sExec}")
    k(f"s_waitcnt vmcnt(0)")
    k(f"buffer_store_dwordx2 {vr(vD,2)}, v{vA}, {sr(k.sWS,4)}, s{sIdx} offen{SCOPE_PL}")
    k(f"s_mov_b64 exec, -1")

def sel16(k, vSel, vT):
    k(f"v_and_b32 v{vT}, 31, v{k.vLane}")
    k(f"v_cmp_eq_u32 vcc, 0, v{vT}")
    k(f"v_cmp_eq_u32 {sr(k.sT0 if k.sT0 % 2 == 0 else k.sT0+1,2)}, 17, v{vT}")
    k(f"v_mov_b32 v{vT}, 0x3f803f80")
    k(f"s_or_b64 vcc, vcc, {sr(k.sT0 if k.sT0 % 2 == 0 else k.sT0+1,2)}")
    k(f"s_nop 0")
    for i in range(4): k(f"v_cndmask_b32 v{vSel+i}, 0, v{vT}, vcc")

def code_touch(k, vA, vD):
    if not env("CODE_PF", 1): return
    m = k.mark(); sP = k.s(2, 2)
    k(f"s_lshl_b32 s{k.sT0}, s{k.sJ}, 2")
    k(f"s_add_u32 s{k.sT0}, s{k.sT0}, s{k.sWave}")
    k(f"s_sub_u32 s{k.sT0}, s{k.sT0}, 4")
    k(f"s_lshl_b32 s{k.sT0}, s{k.sT0}, 13")
    k(f"s_cmp_ge_u32 s{k.sT0}, L_{k.name}_codeend-{k.name}")
    k(f"s_cbranch_scc1 {k.L('noct')}")
    k(f"s_getpc_b64 {sr(sP,2)}")
    k.label("pc")
    k(f"s_sub_u32 s{sP}, s{sP}, {k.L('pc')}-{k.name}")
    k(f"s_subb_u32 s{sP+1}, s{sP+1}, 0")
    k(f"v_lshl_add_u32 v{vA}, v{k.vLane}, 7, s{k.sT0}")
    k(f"v_min_u32 v{vA}, L_{k.name}_codeend-{k.name}-4, v{vA}")
    k(f"global_load_dword v{vD}, v{vA}, {sr(sP,2)}")
    k(f"s_waitcnt vmcnt(0)")
    k.label("noct")
    k.reset(m)

def warm(k, vA, vD, what):
    T0, T1 = k.sT0, k.sT1; WSr = sr(k.sWS, 4)
    def fl(n=1):
        k(f"s_lshl_b32 s{T0}, s{T0}, {FSH}")
        k(f"s_add_u32 s{T0}, s{T0}, {WS_FL:#x}")
        for i in range(n):
            k(f"buffer_load_dword v{vD}, v{vA}, {WSr}, s{T0} offen{SCOPE_PL}")
            if i < n-1: k(f"s_add_u32 s{T0}, s{T0}, {64*FS}")
    if "t" in what:
        k(f"v_lshlrev_b32 v{vA}, 19, v{k.vLane}")
        k(f"buffer_load_dword v{vD}, v{vA}, {WSr}, 0 offen")
    k(f"v_lshlrev_b32 v{vA}, {FSH}, v{k.vLane}")
    if "1" in what:
        k(f"s_lshr_b32 s{T0}, s{k.sJ}, 4")
        k(f"s_lshl_b32 s{T1}, s{k.sX}, 1")
        k(f"s_add_u32 s{T0}, s{T0}, s{T1}")
        k(f"s_lshl_b32 s{T0}, s{T0}, 6")
        k(f"s_and_b32 s{T1}, s{k.sJ}, 7")
        k(f"s_lshl_b32 s{T1}, s{T1}, 10")
        k(f"s_add_u32 s{T0}, s{T0}, s{T1}")
        k(f"s_add_u32 s{T0}, s{T0}, {FL1}")
        fl()
    if "a" in what:
        k(f"s_lshl_b32 s{T0}, s2, 6")
        fl()
        k(f"s_lshl_b32 s{T0}, s2, 12")
        k(f"s_add_u32 s{T0}, s{T0}, {WS_PS:#x}")
        k(f"v_lshlrev_b32 v{vA}, 6, v{k.vLane}")
        k(f"buffer_load_dword v{vD}, v{vA}, {WSr}, s{T0} offen")
```

```python
from base import *

class P1:
    N = 8; SLOT = 32768; NSL = 4; SCR = 147456
    def roles(self, k):
        self.sRb = k.s(); self.sHq = k.s()
        k(f"s_and_b32 s{k.sT0}, s{k.sX}, 3")
        k(f"s_lshl_b32 s{k.sT0}, s{k.sT0}, 3")
        k(f"s_and_b32 s{k.sT1}, s{k.sJ}, 7")
        k(f"s_add_u32 s{self.sRb}, s{k.sT0}, s{k.sT1}")
        k(f"s_lshr_b32 s{k.sT0}, s{k.sX}, 2")
        k(f"s_lshl_b32 s{k.sT0}, s{k.sT0}, 2")
        k(f"s_lshr_b32 s{self.sHq}, s{k.sJ}, 3")
        k(f"s_add_u32 s{self.sHq}, s{self.sHq}, s{k.sT0}")

    def c(self, k, first, last):
        k.pfx = "p1c_"; m = k.mark()
        SC = SCOPE_ST
        N, SLOT, NSL, SCR = self.N, self.SLOT, self.NSL, self.SCR
        T0, T1 = k.sT0, k.sT1; WSr = sr(k.sWS, 4); vLane = k.vLane
        self.roles(k)
        sSl = k.s()
        vT = k.v(6, 2)
        k(f"s_mov_b32 s{sSl}, 0")
        k(f"s_cmp_ge_u32 s{k.sWave}, 4")
        k(f"s_cbranch_scc1 {k.L('stat')}")
        m2 = k.mark()
        sTl = k.s(); sCh = k.s(); sTT = k.s(); sQo = k.s(); sKo = k.s(); sFl = k.s()
        vXa0 = k.v(4); vWa0 = k.v(2); vXa = k.v(4); vWa = k.v(2)
        vSel = k.v(4, 4); vCs = k.v(12, 4)
        vX = [k.v(8, 4), k.v(8, 4)]
        vW = [k.v(24, 4), k.v(24, 4)]
        vAcc = k.v(48, 4)
        k(f"s_and_b32 s{sTl}, s{k.sWave}, 1")
        k(f"s_lshr_b32 s{sCh}, s{k.sWave}, 1")
        k(f"s_lshl_b32 s{sTT}, s{self.sRb}, 1")
        k(f"s_add_u32 s{sTT}, s{sTT}, s{sTl}")
        tr_base(k, vT+1, vT, natural=True)
        k(f"s_lshl_b32 s{T0}, s{sCh}, 10")
        k(f"s_add_u32 s{T0}, s{T0}, 8192")
        k(f"v_add_u32 v{vT+1}, s{T0}, v{vT+1}")
        for i in range(2):
            k(f"s_xor_b32 s{T0}, s{sTl}, {i}")
            k(f"s_mul_i32 s{T0}, s{T0}, 6144")
            k(f"v_add_u32 v{vWa0+i}, s{T0}, v{vT+1}")
        k(f"v_and_b32 v{vT}, 31, v{vLane}")
        k(f"v_bfe_u32 v{vT+2}, v{vLane}, 1, 3")
        k(f"v_lshrrev_b32 v{vT+3}, 5, v{vLane}")
        k(f"v_xor_b32 v{vT+2}, v{vT+2}, v{vT+3}")
        k(f"v_lshlrev_b32 v{vT}, 7, v{vT}")
        k(f"s_lshl_b32 s{T0}, s{sTl}, 12")
        k(f"v_add_u32 v{vT}, s{T0}, v{vT}")
        for i in range(4):
            k(f"s_xor_b32 s{T0}, s{sTl}, {i}")
            k(f"s_lshl_b32 s{T0}, s{T0}, 1")
            k(f"v_xor_b32 v{vT+3}, s{T0}, v{vT+2}")
            k(f"v_lshl_add_u32 v{vXa0+i}, v{vT+3}, 4, v{vT}")
        sel16(k, vSel, vT)
        for r in range(12): k(f"v_mov_b32 v{vCs+r}, 0")
        for i in range(48): k(f"v_mov_b32 v{vAcc+i}, 0")
        for r in range(8): k(f"v_mov_b32 v{vX[1]+r}, 0")
        for r in range(24): k(f"v_mov_b32 v{vW[1]+r}, 0")
        k(f"s_lshl_b32 s{T0}, s{self.sHq}, 8")
        k(f"s_lshl_b32 s{T1}, s{sCh}, 7")
        k(f"s_add_u32 s{T0}, s{T0}, s{T1}")
        k(f"s_add_u32 s{T0}, s{T0}, s{sTT}")
        k(f"s_lshl_b32 s{sQo}, s{T0}, 10")
        k(f"s_lshl_b32 s{sKo}, s{T0}, 11")
        k(f"s_add_u32 s{sKo}, s{sKo}, {WS_KVF:#x}")
        k(f"s_lshl_b32 s{sFl}, s{self.sHq}, 7")
        k(f"s_lshl_b32 s{T1}, s{sCh}, 6")
        k(f"s_add_u32 s{sFl}, s{sFl}, s{T1}")
        k(f"s_add_u32 s{sFl}, s{sFl}, s{sTT}")
        k(f"s_add_u32 s{sFl}, s{sFl}, {FL1}")
        k.ptrs_ready()
        def reads(b):
            l = []
            for i in range(2):
                l.append(f"ds_read_b128 {vr(vX[b]+4*i,4)}, v{vXa+2*b+i}")
                for c in range(3):
                    o = b*12288 + c*2048
                    l.append(f"ds_read_b64_tr_b16 {vr(vW[b]+12*i+4*c,2)}, v{vWa+i} offset:{o}")
                    l.append(f"ds_read_b64_tr_b16 {vr(vW[b]+12*i+4*c+2,2)}, v{vWa+i} offset:{o + 256}")
            return l
        def comp(b):
            g = []
            for i in range(2):
                X = vr(vX[b]+4*i, 4)
                for c in range(3):
                    W_ = vr(vW[b]+12*i+4*c, 4)
                    a_, b_ = (W_, X) if c < 2 else (X, W_)
                    g.append(f"v_mfma_f32_32x32x16_bf16 {vr(vAcc+16*c,16)}, {a_}, {b_}, {vr(vAcc+16*c,16)}")
            for c in range(3):
                g.append(f"v_mfma_f32_16x16x32_bf16 {vr(vCs+4*c,4)}, {vr(vSel,4)}, {vr(vW[b]+4*c,4)}, {vr(vCs+4*c,4)}")
            return g
        def addr():
            return ([f"v_add_u32 v{vXa+i}, s{sSl}, v{vXa0+i}" for i in range(4)] + [f"v_add_u32 v{vWa+i}, s{sSl}, v{vWa0+i}" for i in range(2)]
                    + [f"s_add_u32 s{sSl}, s{sSl}, {SLOT}", f"s_and_b32 s{sSl}, s{sSl}, {NSL*SLOT-1}"])
        k.many(addr())
        k(f"s_mov_b32 s{k.sCnt}, {N}")
        k.stamp("setup")
        k.label("loop")
        k(f"s_barrier")
        interleave(k, comp(1), reads(0), per=4)
        k(f"s_waitcnt lgkmcnt(0)")
        c0 = comp(0)
        interleave(k, c0[:7], reads(1), addr() + [f"s_sub_u32 s{k.sCnt}, s{k.sCnt}, 1", f"s_cmp_lg_u32 s{k.sCnt}, 0"], per=4)
        k(f"s_waitcnt lgkmcnt(0)")
        k.many(c0[7:])
        k(f"s_cbranch_scc1 {k.L('loop')}")
        g = comp(1)
        k.many(g[6:]); k.many(g[:6])
        k.stamp("loopend")
        k(f"v_lshlrev_b32 v{vT}, 2, v{vLane}")
        k(f"s_lshl_b32 s{T0}, s{k.sWave}, 9")
        k(f"s_add_u32 s{T0}, s{T0}, {SCR}")
        k(f"v_add_u32 v{vT}, s{T0}, v{vT}")
        k(f"s_mov_b64 exec, 0xffff")
        for c in range(3):
            k(f"ds_write2_b32 v{vT}, v{vCs+4*c}, v{vCs+4*c+1} offset0:{c*32} offset1:{c*32+16}")
        k(f"s_mov_b64 exec, -1")
        vKo = vXa; vVo = vXa+1; vAq = vXa+2; vBq = vXa+3; vRl = vXa0; vLl = vXa0+1; vRs = vXa0+2; vLs = vXa0+3
        k(f"s_lshl_b32 s{T0}, s{sCh}, 10")
        k(f"s_add_u32 s{T0}, s{T0}, {SCR}")
        k(f"v_lshrrev_b32 v{vT+3}, 5, v{vLane}")
        k(f"v_lshlrev_b32 v{vT+2}, 4, v{vT+3}")
        k(f"v_add_u32 v{vRl}, s{T0}, v{vT+2}")
        k(f"v_and_b32 v{vT+1}, 31, v{vLane}")
        k(f"v_lshlrev_b32 v{vT+1}, 2, v{vT+1}")
        k(f"v_add_u32 v{vLl}, s{T0}, v{vT+1}")
        k(f"s_lshl_b32 s{T0}, s{sTl}, 8")
        k(f"s_add_u32 s{T0}, s{T0}, {SCR + 2048}")
        k(f"v_add_u32 v{vRs}, s{T0}, v{vT+2}")
        k(f"v_add_u32 v{vLs}, s{T0}, v{vT+1}")
        k(f"s_waitcnt lgkmcnt(0)")
        k(f"s_barrier")
        vE = vW[0]
        vE2 = vX[0]
        va, vb = vWa, vWa+1
        if not last:
            k(f"v_mov_b32 v{vSel+2}, {SCR + 3072}")
            k(f"ds_read_b64 {vr(vSel,2)}, v{vSel+2}")
        k(f"ds_read2_b32 {vr(vT+4,2)}, v{vLs} offset0:0 offset1:32")
        for g_ in range(4): k(f"ds_read_b128 {vr(vE+4*g_,4)}, v{vRl} offset:{128 + 32*g_}")
        for g_ in range(4): k(f"ds_read_b128 {vr(vE+16+4*g_,4)}, v{vRl} offset:{512 + 128 + 32*g_}")
        for g_ in range(4): k(f"ds_read_b128 {vr(vE+32+4*g_,4)}, v{vRl} offset:{32*g_}")
        k(f"v_and_b32 v{vKo}, 0x33, v{vLane}")
        k(f"v_bfe_u32 v{vT}, v{vLane}, 2, 1")
        k(f"v_lshl_add_u32 v{vKo}, v{vT}, 3, v{vKo}")
        k(f"v_bfe_u32 v{vT}, v{vLane}, 3, 1")
        k(f"v_lshl_add_u32 v{vKo}, v{vT}, 2, v{vKo}")
        k(f"v_lshlrev_b32 v{vKo}, 4, v{vKo}")
        k(f"v_bfe_u32 v{vT}, v{vLane}, 4, 1")
        k(f"v_lshlrev_b32 v{vVo}, 17, v{vT}")
        k(f"v_lshl_add_u32 v{vVo}, v{vT+3}, 8, v{vVo}")
        k(f"v_and_b32 v{vT}, 15, v{vLane}")
        k(f"v_lshl_add_u32 v{vVo}, v{vT}, 4, v{vVo}")
        p2 = lambda r: vr(r, 2)
        vP = vCs
        k(f"s_waitcnt lgkmcnt(4)")
        for g_ in range(4): k(f"ds_read_b128 {vr(vE2+4*g_,4)}, v{vRl} offset:{512 + 32*g_}")
        A2 = "op_sel_hi:[1,0,1]"
        B2 = "op_sel:[0,1,0] op_sel_hi:[1,1,1]"
        def fin(acc, e0, e1, ab, dst):
            for r in range(0, 16, 2): k(f"v_pk_add_f32 {p2(e0+r)}, {p2(e0+r)}, {p2(e1+r)}")
            for r in range(0, 16, 2): k(f"v_pk_mul_f32 {p2(e0+r)}, {p2(e0+r)}, {p2(ab)} op_sel:[0,1] op_sel_hi:[1,1]")
            for r in range(0, 16, 2): k(f"v_pk_fma_f32 {p2(acc+r)}, {p2(acc+r)}, {p2(ab)}, {p2(e0+r)} {A2}")
            for r in range(8): k(f"v_cvt_pk_bf16_f32 v{dst+r}, v{acc+2*r}, v{acc+2*r+1}")
        fin(vAcc+16, vE, vE+16, vT+4, vP)
        k(f"buffer_store_dwordx4 {vr(vP,4)}, v{vKo}, {WSr}, s{sKo} offen{SC}")
        k(f"s_add_u32 s{T0}, s{sKo}, 131072")
        k(f"buffer_store_dwordx4 {vr(vP+4,4)}, v{vKo}, {WSr}, s{T0} offen{SC}")
        for g_ in range(4): k(f"ds_read_b128 {vr(vE+4*g_,4)}, v{vRs} offset:{32*g_}")
        for g_ in range(4): k(f"ds_read_b128 {vr(vE+16+4*g_,4)}, v{vRs} offset:{128 + 32*g_}")
        k(f"ds_read2_b32 {vr(vT,2)}, v{vLl} offset0:64 offset1:192")
        CQ = 0.25*1.4426950408889634
        k(f"v_mul_f32 v{vT+4}, {f32(CQ):#x}, v{vT+4}")
        k(f"v_mul_f32 v{vT+5}, {f32(CQ):#x}, v{vT+5}")
        k(f"s_waitcnt lgkmcnt(0)")
        k(f"v_add_f32 v{vT}, v{vT}, v{vT+1}")
        for r in range(0, 16, 2): k(f"v_pk_mul_f32 {p2(vE+16+r)}, {p2(vE+16+r)}, {p2(vT)} op_sel_hi:[1,0]")
        for r in range(0, 16, 2): k(f"v_pk_fma_f32 {p2(vAcc+32+r)}, {p2(vAcc+32+r)}, {p2(vE+r)}, {p2(vE+16+r)}")
        for r in range(8): k(f"v_cvt_pk_bf16_f32 v{vAcc+16+r}, v{vAcc+32+2*r}, v{vAcc+32+2*r+1}")
        k(f"buffer_store_dwordx4 {vr(vAcc+16,4)}, v{vVo}, {WSr}, s{sKo} offen offset:1024{SC}")
        k(f"buffer_store_dwordx4 {vr(vAcc+20,4)}, v{vVo}, {WSr}, s{sKo} offen offset:1536{SC}")
        fin(vAcc, vE+32, vE2, vT+4, vAcc+24)
        k(f"buffer_store_dwordx4 {vr(vAcc+24,4)}, v{k.vL16}, {WSr}, s{sQo} offen{SC}")
        k(f"s_add_u32 s{sQo}, s{sQo}, 65536")
        k(f"buffer_store_dwordx4 {vr(vAcc+28,4)}, v{k.vL16}, {WSr}, s{sQo} offen{SC}")
        k.stamp("stored")
        if not last:
            k(f"v_readfirstlane_b32 s{k.sNon}, v{vSel}")
            k(f"v_readfirstlane_b32 s{k.sNon+1}, v{vSel+1}")
            set_flag(k, sFl, vT+2, vT, rep=R1)
            k.stamp("flag")
        k(f"s_branch {k.L('end')}")
        k.label("stat")
        k.reset(m2)
        vRa0 = k.v(2); vRa = k.v(2); vS = k.v(4); vD = k.v(8, 4); vU = k.v(4)
        k(f"s_lshl_b32 s{T0}, s{k.sWave}, 11")
        k(f"s_sub_u32 s{T0}, s{T0}, 8192")
        k(f"v_and_b32 v{vT}, 15, v{vLane}")
        k(f"v_lshlrev_b32 v{vT+1}, 7, v{vT}")
        k(f"v_add_u32 v{vT+1}, s{T0}, v{vT+1}")
        k(f"v_lshrrev_b32 v{vT+2}, 1, v{vT}")
        k(f"v_lshrrev_b32 v{vT+3}, 4, v{vLane}")
        k(f"v_lshlrev_b32 v{vT+3}, 1, v{vT+3}")
        k(f"v_xor_b32 v{vT+2}, v{vT+2}, v{vT+3}")
        k(f"v_lshl_add_u32 v{vRa0}, v{vT+2}, 4, v{vT+1}")
        k(f"v_xor_b32 v{vRa0+1}, 16, v{vRa0}")
        for r in range(4): k(f"v_mov_b32 v{vS+r}, 0")
        k.ptrs_ready()
        if not last: nonce_publish(k, vT)
        if not last:
            vDump = k.v()
            k(f"s_cmp_lg_u32 s{k.sWave}, 6")
            k(f"s_cbranch_scc1 {k.L('nowarm')}")
            warm(k, vT, vDump, env("WARM1", "t1"))
            k.label("nowarm")
        code_touch(k, vT, vU)
        k(f"s_mov_b32 s{k.sCnt}, {N}")
        k.label("sloop")
        k(f"v_add_u32 v{vRa}, s{sSl}, v{vRa0}")
        k(f"v_add_u32 v{vRa+1}, s{sSl}, v{vRa0+1}")
        k(f"s_add_u32 s{sSl}, s{sSl}, {SLOT}")
        k(f"s_and_b32 s{sSl}, s{sSl}, {NSL*SLOT-1}")
        k(f"s_barrier")
        k(f"ds_read_b128 {vr(vD,4)}, v{vRa}")
        k(f"ds_read_b128 {vr(vD+4,4)}, v{vRa+1}")
        for r in range(8):
            if r % 4 == 0: k(f"s_waitcnt lgkmcnt({1 - r//4})")
            u = vU + 2*(r & 1)
            k(f"v_lshlrev_b32 v{u}, 16, v{vD+r}")
            k(f"v_and_b32 v{u+1}, 0xffff0000, v{vD+r}")
            k(f"v_add_f32 v{vS}, v{vS}, v{u}")
            k(f"v_fmac_f32 v{vS+1}, v{u}, v{u}")
            k(f"v_add_f32 v{vS+2}, v{vS+2}, v{u+1}")
            k(f"v_fmac_f32 v{vS+3}, v{u+1}, v{u+1}")
        k(f"s_sub_u32 s{k.sCnt}, s{k.sCnt}, 1")
        k(f"s_cmp_lg_u32 s{k.sCnt}, 0")
        k(f"s_cbranch_scc1 {k.L('sloop')}")
        k(f"v_add_f32 v{vS}, v{vS}, v{vS+2}")
        k(f"v_add_f32 v{vS+1}, v{vS+1}, v{vS+3}")
        half_combine(k, [vS, vS+1], [vU, vU+1])
        k(f"v_mov_b32 v{vU}, v{vS}"); k(f"v_mov_b32 v{vU+1}, v{vS+1}")
        k(f"s_nop 1")
        k(f"v_permlane16_swap_b32 v{vU}, v{vS}")
        k(f"v_permlane16_swap_b32 v{vU+1}, v{vS+1}")
        k(f"s_nop 1")
        k(f"v_add_f32 v{vS}, v{vS}, v{vU}")
        k(f"v_add_f32 v{vS+1}, v{vS+1}, v{vU+1}")
        k(f"v_mul_f32 v{vS}, {f32(1/512):#x}, v{vS}")
        k(f"v_mul_f32 v{vS+1}, {f32(1/512):#x}, v{vS+1}")
        k(f"v_fma_f32 v{vS+1}, -v{vS}, v{vS}, v{vS+1}")
        k(f"v_max_f32 v{vS+1}, 0, v{vS+1}")
        k(f"v_add_f32 v{vS+1}, {f32(1e-5):#x}, v{vS+1}")
        k(f"v_rsq_f32 v{vS+1}, v{vS+1}")
        k(f"s_lshr_b32 s{T0}, s{k.sWave}, 1")
        k(f"s_lshl_b32 s{T0}, s{T0}, 8")
        k(f"s_and_b32 s{T1}, s{k.sWave}, 1")
        k(f"s_lshl_b32 s{T1}, s{T1}, 6")
        k(f"s_add_u32 s{T0}, s{T0}, s{T1}")
        k(f"s_add_u32 s{T0}, s{T0}, {SCR + 2048 - 512}")
        k(f"v_and_b32 v{vT}, 15, v{vLane}")
        k(f"v_lshl_add_u32 v{vT}, v{vT}, 2, s{T0}")
        k(f"v_mul_f32 v{vS}, v{vS}, v{vS+1}")
        k(f"v_sub_f32 v{vS}, 0, v{vS}")
        k(f"ds_write2_b32 v{vT}, v{vS+1}, v{vS} offset0:0 offset1:32")
        k(f"s_waitcnt lgkmcnt(0)")
        k(f"s_barrier")
        if not last:
            k(f"v_mov_b32 v{vT+2}, {SCR + 3072}")
            k(f"ds_read_b64 {vr(vT,2)}, v{vT+2}")
            k(f"s_waitcnt vmcnt(0) lgkmcnt(0)")
            k(f"v_readfirstlane_b32 s{k.sNon}, v{vT}")
            k(f"v_readfirstlane_b32 s{k.sNon+1}, v{vT+1}")
        k.label("end")
        k.reset(m)

    def l_pre(self, k): k.reset(k.lbase)
    def l(self, k, first, last, next_pre):
        k.pfx = "p1l_"
        N, SLOT, NSL = self.N, self.SLOT, self.NSL
        T0, T1 = k.sT0, k.sT1
        self.roles(k)
        sLw = k.sLw
        sSX = k.s(4, 4); sSW = k.s(4, 4)
        sXo = k.s(); sWo = k.s(); sXm = k.s(); sWm = k.s(); sSl = k.s(); sSt = k.s()
        vT = k.v(2); vXd = k.v(2); vWd = k.v(2)
        k(f"s_lshr_b32 s{T0}, s{k.sJ}, 3")
        k(f"s_lshl_b32 s{T0}, s{T0}, 1")
        k(f"s_add_u32 s{sSt}, s{T0}, s{k.sJ}")
        k(f"s_and_b32 s{sSt}, s{sSt}, {7 if env('P1_ROT', 1) else 0}")
        k(f"v_lshrrev_b32 v{vT}, 4, v{k.vLane}")
        k(f"v_and_b32 v{vT+1}, 7, v{k.vLane}")
        k(f"v_xor_b32 v{vT+1}, v{vT+1}, v{vT}")
        k(f"v_lshrrev_b32 v{vT}, 3, v{k.vLane}")
        k(f"v_lshlrev_b32 v{vT}, 10, v{vT}")
        k(f"v_lshl_add_u32 v{vXd}, v{vT+1}, 4, v{vT}")
        k(f"v_xor_b32 v{vXd+1}, 64, v{vXd}")
        k(f"v_add_u32 v{vXd+1}, {8192-1024}, v{vXd+1}")
        k(f"v_lshrrev_b32 v{vT}, 2, v{k.vLane}")
        k(f"v_mul_u32_u24 v{vT}, 3072, v{vT}")
        k(f"v_and_b32 v{vT+1}, 3, v{k.vLane}")
        k(f"v_lshl_add_u32 v{vWd}, v{vT+1}, 4, v{vT}")
        BIAS = 1024
        k(f"v_add_u32 v{vWd+1}, {64 - 1024 + BIAS}, v{vWd}")
        k(f"v_add_u32 v{vWd}, {BIAS}, v{vWd}")
        k(f"s_lshl_b32 s{sXo}, s{self.sRb}, 16")
        k(f"s_lshl_b32 s{T0}, s{sLw}, 14")
        k(f"s_add_u32 s{sXo}, s{sXo}, s{T0}")
        k(f"s_lshl_b32 s{sXm}, s{sLw}, 11")
        k(f"s_mul_i32 s{sWo}, s{sLw}, {16*3072}")
        k(f"s_lshl_b32 s{T0}, s{self.sHq}, 7")
        k(f"s_add_u32 s{sWo}, s{sWo}, s{T0}")
        k(f"s_mul_i32 s{sWm}, s{sLw}, 6144")
        k(f"s_add_u32 s{sWm}, s{sWm}, 8192")
        k(f"s_mov_b32 s{sSl}, 0")
        k(f"s_waitcnt lgkmcnt(0)")
        k.srd(sSX, k.ptr(KA_X), T*D*2)
        k.srd(sSW, k.ptr(KA_WQKV), D*3*D*2, bias=BIAS)
        def issue():
            k(f"s_add_u32 m0, s{sSl}, s{sXm}")
            k(f"s_lshl_b32 s{T0}, s{sSt}, 7")
            k(f"s_add_u32 s{T0}, s{T0}, s{sXo}")
            k(f"buffer_load_dwordx4 v{vXd}, {sr(sSX,4)}, s{T0} offen lds")
            k(f"buffer_load_dwordx4 v{vXd+1}, {sr(sSX,4)}, s{T0} offen offset:1024 lds")
            k(f"s_add_u32 m0, s{sSl}, s{sWm}")
            k(f"s_mul_i32 s{T0}, s{sSt}, {64*3072}")
            k(f"s_add_u32 s{T0}, s{T0}, s{sWo}")
            for c in range(3):
                k(f"buffer_load_dwordx4 v{vWd}, {sr(sSW,4)}, s{T0} offen lds")
                k(f"buffer_load_dwordx4 v{vWd+1}, {sr(sSW,4)}, s{T0} offen offset:1024 lds")
                if c < 2:
                    k(f"s_add_u32 m0, m0, 2048")
                    k(f"s_add_u32 s{T0}, s{T0}, 1024")
            k(f"s_add_u32 s{sSt}, s{sSt}, 1")
            k(f"s_and_b32 s{sSt}, s{sSt}, 7")
            k(f"s_add_u32 s{sSl}, s{sSl}, {SLOT}")
            k(f"s_and_b32 s{sSl}, s{sSl}, {NSL*SLOT-1}")
        issue(); issue()
        k.srd(k.sWS, k.sWSp, WS_END)
        k(f"s_mov_b32 s{k.sCnt}, 6")
        k.label("loop")
        k(f"s_waitcnt vmcnt(8)"); k(f"s_barrier"); issue()
        k(f"s_sub_u32 s{k.sCnt}, s{k.sCnt}, 1")
        k(f"s_cmp_lg_u32 s{k.sCnt}, 0")
        k(f"s_cbranch_scc1 {k.L('loop')}")
        if not last:
            vN = k.v(4, 2); sD = k.s(4, 4)
            k.srd(sD, k.ptr(KA_DBG), 256)
            k(f"v_mov_b32 v{vN+2}, 0")
            k(f"s_lshl_b32 s{T0}, s{sLw}, 8")
            k(f"buffer_load_dwordx2 {vr(vN,2)}, v{vN+2}, {sr(sD,4)}, s{T0} offen{SCOPE_PL}")
        for w in ((8, 0) if last else (9, 0)):
            k(f"s_waitcnt vmcnt({w})"); k(f"s_barrier")
        if not last:
            k(f"s_cmp_lg_u32 s{sLw}, 0")
            k(f"s_cbranch_scc1 {k.L('non')}")
            k(f"v_readfirstlane_b32 s{k.sNon+1}, v{vN+1}")
            k(f"s_cmp_ge_u32 s{k.sNon+1}, 0x80000000")
            k(f"s_cbranch_scc1 {k.L('nok')}")
            nonce_fetch(k, vN)
            k.label("nok")
            k(f"v_mov_b32 v{vN+2}, {self.SCR + 3072}")
            k(f"ds_write_b64 v{vN+2}, {vr(vN,2)}")
            k(f"s_waitcnt lgkmcnt(0)")
            k.label("non")
            k(f"s_barrier")
            next_pre(k)
```

```python
from base import *

class P2:
    PAD = 131072
    XCH = 131072 + 12288
    def roles(self, k):
        self.sHead = k.s(); self.sQb = k.s()
        k(f"s_lshl_b32 s{k.sT0}, s{k.sX}, 2")
        k(f"s_lshr_b32 s{k.sT1}, s{k.sJ}, 3")
        k(f"s_add_u32 s{self.sHead}, s{k.sT0}, s{k.sT1}")
        k(f"s_and_b32 s{self.sQb}, s{k.sJ}, 7")

    def c(self, k, first, last):
        k.pfx = "p2c_"; m = k.mark()
        SC = "" if last else SCOPE_ST
        LD = "" if first else SCOPE_LD
        U = 4; PAD = self.PAD; XCH = self.XCH
        T0, T1 = k.sT0, k.sT1; WSr = sr(k.sWS, 4); vL16 = k.vL16; vLane = k.vLane
        self.roles(k)
        sHead, sQb = self.sHead, self.sQb
        sOoff = k.s(); sQo = k.s(); sKh = k.s(); sFl = k.s()
        vKa = k.v(); vVa = k.v(); vVinc = k.v(); vIdx = k.v(); vT0 = k.v(); vT1 = k.v(); vVa0 = k.v()
        vQ = [k.v(4, 4), k.v(4, 4)]
        vKf = [k.v(4, 4), k.v(4, 4)]
        vV0 = k.v(4, 4)
        vV1 = [k.v(4, 4), k.v(4, 4)]
        vS = [k.v(16, 4), k.v(16, 4)]
        vNM = [k.v(16, 4), k.v(16, 4)]
        vO = [k.v(16, 4), k.v(16, 4)]
        QK = lambda d, kf, q, c: k(f"v_mfma_f32_32x32x16_bf16 {vr(d,16)}, {vr(kf,4)}, {vr(q,4)}, {c}")
        PV = lambda o, v, s: k(f"v_smfmac_f32_32x32x32_bf16 {vr(o,16)}, {vr(v,4)}, {vr(s,8)}, v{vIdx}")
        if not first:
            k(f"s_cmp_lg_u32 s{k.sWave}, {PW}")
            k(f"s_cbranch_scc1 {k.L('setup')}")
            k(f"s_lshr_b32 s{T0}, s{sHead}, 1")
            k(f"s_lshl_b32 s{T0}, s{T0}, 6")
            k(f"s_lshl_b32 s{T1}, s{sQb}, 10")
            k(f"s_add_u32 s{T0}, s{T0}, s{T1}")
            k(f"s_add_u32 s{T0}, s{T0}, {FL1}")
            poll(k, "poll", T0, vT0, vQ[0])
            k(f"s_barrier")
            k.label("setup")
        k(f"s_lshr_b32 s{sKh}, s{k.sWave}, 2")
        k(f"s_and_b32 s{T0}, s{k.sWave}, 3")
        k(f"s_lshl_b32 s{T0}, s{T0}, 1")
        k(f"s_lshl_b32 s{T1}, s{sQb}, 3")
        k(f"s_add_u32 s{T0}, s{T0}, s{T1}")
        k(f"s_add_u32 s{sOoff}, s{T0}, s{sKh}")
        k(f"s_lshl_b32 s{sOoff}, s{sOoff}, 5")
        k(f"s_add_u32 s{sOoff}, s{sOoff}, s{sHead}")
        k(f"s_add_u32 s{sFl}, s{sOoff}, {FL2}")
        k(f"s_lshl_b32 s{sOoff}, s{sOoff}, 10")
        k(f"s_add_u32 s{sOoff}, s{sOoff}, {WS_OF:#x}")
        k(f"s_lshl_b32 s{T1}, s{sHead}, 6")
        k(f"s_add_u32 s{sQo}, s{T0}, s{T1}")
        k(f"s_lshl_b32 s{sQo}, s{sQo}, 10")
        k(f"v_lshrrev_b32 v{vT0}, 5, v{vLane}")
        k(f"v_and_b32 v{vVa0}, 15, v{vLane}")
        k(f"v_lshl_add_u32 v{vVa0}, v{vT0}, 4, v{vVa0}")
        k(f"v_lshlrev_b32 v{vVa0}, 4, v{vVa0}")
        k(f"v_add_u32 v{vVa0}, 1024, v{vVa0}")
        k(f"v_and_b32 v{vT0}, 27, v{vLane}")
        k(f"v_cmp_eq_u32 vcc, 16, v{vT0}")
        k(f"v_mov_b32 v{vT1}, {PAD + 1024 + 16}")
        k(f"v_mov_b32 v{vKa}, {PAD + 1024}")
        k(f"v_cndmask_b32 v{vT1}, v{vT1}, v{vKa}, vcc")
        k(f"v_and_b32 v{vT0}, 16, v{vLane}")
        k(f"v_cmp_eq_u32 vcc, 0, v{vT0}")
        k(f"s_lshl_b32 s{T0}, s{sKh}, 16")
        k(f"v_mov_b32 v{vKa}, {U*2048}")
        k(f"v_cndmask_b32 v{vVinc}, 0, v{vKa}, vcc")
        k(f"v_add_u32 v{vVa}, s{T0}, v{vVa0}")
        k(f"v_cndmask_b32 v{vVa}, v{vT1}, v{vVa}, vcc")
        k(f"v_add_u32 v{vKa}, s{T0}, v{vL16}")
        k(f"v_mov_b32 v{vIdx}, 0xdddddddd")
        k(f"v_lshrrev_b32 v{vT0}, 1, v{vLane}")
        k(f"v_min_u32 v{vT0}, 23, v{vT0}")
        k(f"v_lshlrev_b32 v{vT0}, 9, v{vT0}")
        k(f"v_and_b32 v{vT1}, 1, v{vLane}")
        k(f"v_lshl_add_u32 v{vT0}, v{vT1}, 4, v{vT0}")
        k(f"v_add_u32 v{vT0}, {PAD}, v{vT0}")
        k(f"v_cmp_eq_u32 vcc, 0, v{vT1}")
        k(f"v_mov_b32 v{vT1}, 0x3f803f80")
        k(f"s_nop 0")
        for i in range(4): k(f"v_cndmask_b32 v{vV0+i}, 0, v{vT1}, vcc")
        k(f"ds_write_b128 v{vT0}, {vr(vV0,4)}")
        for t in range(2):
            for i in range(16): k(f"v_mov_b32 v{vO[t]+i}, 0")
        for i in range(8, 16): k(f"v_mov_b32 v{vS[1]+i}, 0")
        for i in range(4): k(f"v_mov_b32 v{vV1[1]+i}, 0")
        if first:
            k.ptrs_ready()
            if not last: nonce_publish(k, vS[0])
        else:
            k(f"s_cmp_eq_u32 s{k.sWave}, {PW}")
            k(f"s_cbranch_scc1 {k.L('rdy')}")
            k(f"s_barrier")
            k.label("rdy")
            k.stamp("ready")
        k(f"buffer_load_dwordx4 {vr(vQ[0],4)}, v{vL16}, {WSr}, s{sQo} offen{LD}")
        k(f"buffer_load_dwordx4 {vr(vQ[1],4)}, v{vL16}, {WSr}, s{sQo} offen offset:1024{LD}")
        k(f"s_waitcnt lgkmcnt(0)")
        k(f"s_barrier")
        k.stamp("data")
        k(f"ds_read_b128 {vr(vV0,4)}, v{vL16}")
        k(f"ds_read_b128 {vr(vKf[0],4)}, v{vKa}")
        k(f"ds_read_b128 {vr(vKf[1],4)}, v{vKa} offset:2048")
        k(f"s_waitcnt vmcnt(0) lgkmcnt(2)")
        QK(vNM[0], vV0, vQ[0], "0")
        QK(vNM[1], vV0, vQ[1], "0")
        k(f"ds_read_b128 {vr(vV0,4)}, v{vVa}")
        k(f"ds_read_b128 {vr(vV1[0],4)}, v{vVa} offset:512")
        k(f"s_nop 9")
        for t in range(2):
            N_ = vNM[t]
            k(f"v_max3_f32 v{vT0}, v{N_}, v{N_+1}, v{N_+2}")
            for i in range(3, 15, 2):
                k(f"v_max3_f32 v{vT0}, v{vT0}, v{N_+i}, v{N_+i+1}")
            k(f"v_max_f32 v{vT0}, v{vT0}, v{N_+15}")
            half_combine(k, [vT0], [vT1], op="v_max_f32")
            for i in range(16): k(f"v_sub_f32 v{N_+i}, 0, v{vT0}")
            if t == 0:
                k(f"s_waitcnt lgkmcnt(0)")
                k(f"s_nop 0")
                QK(vS[0], vKf[0], vQ[0], vr(vNM[0],16))
        e = lambda S, i, w="": k(f"v_exp_f32{w} v{S+i}, v{S+i}")
        A, B = vS[0], vS[1]
        LOOP = env("P2_LOOP", 32)
        FIX = "_e64" if env("P2_FIX", 1) else ""
        sPh = k.s()
        def step(st, unrolled, lastu):
            u = st % U; p = st & 1
            e(A,0); e(A,1)
            PV(vO[1], vV1[1-p], B+8)
            for i in range(2, 6): e(A,i)
            QK(B, vKf[p], vQ[1], vr(vNM[1],16))
            for i in range(6, 9): e(A,i)
            e(A, 9, FIX)
            k(f"s_waitcnt lgkmcnt(0)") if not FIX else None
            if FIX:
                k.lines.insert(len(k.lines)-1, "  s_waitcnt lgkmcnt(0)")
            PV(vO[0], vV0, A)
            for i in range(10, 16): e(A,i)
            e(B,0); e(B,1)
            PV(vO[0], vV1[p], A+8)
            for i in range(2, 6): e(B,i)
            if not (unrolled and st == 31): QK(A, vKf[1-p], vQ[0], vr(vNM[0],16))
            for i in range(6, 10): e(B,i)
            PV(vO[1], vV0, B)
            if not (unrolled and st == 31):
                k(f"ds_read_b128 {vr(vV0,4)}, v{vVa} offset:{(u+1)*2048}")
                k(f"ds_read_b128 {vr(vV1[1-p],4)}, v{vVa} offset:{(u+1)*2048+512}")
            if not (unrolled and st >= 30):
                k(f"ds_read_b128 {vr(vKf[p],4)}, v{vKa} offset:{(st+2)*2048}")
            elif st == 30:
                k(f"s_nop 0"); k(f"s_nop 0")
            for i in range(10, 12): e(B,i)
            if u == U-1: k(f"v_add_u32{FIX} v{vVa}, v{vVinc}, v{vVa}")
            if lastu:
                k(f"v_add_u32 v{vKa}, {LOOP*2048}, v{vKa}")
                k(f"s_sub_u32 s{k.sCnt}, s{k.sCnt}, 1")
                k(f"s_cmp_lg_u32 s{k.sCnt}, 0")
            for i in range(12, 16): e(B,i)
        if LOOP == 32:
            k(".p2align 3")
            for st in range(32):
                if st in self.BARS: k(f"s_barrier"); k("s_nop 0")
                step(st, True, False)
        else:
            k(f"s_mov_b32 s{sPh}, 0")
            k(f"s_mov_b32 s{k.sCnt}, {self.BARS[0]//LOOP}")
            k(".p2align 3")
            k.label("loop")
            for st in range(LOOP): step(st, False, st == LOOP-1)
            k(f"s_cbranch_scc1 {k.L('loop')}")
            cn = [(b_ - a_)//LOOP for a_, b_ in zip(self.BARS, self.BARS[1:] + (32,))]
            k(f"s_cmp_ge_u32 s{sPh}, 3")
            k(f"s_cbranch_scc1 {k.L('fin')}")
            k(f"s_cmp_eq_u32 s{sPh}, 0")
            k(f"s_cselect_b32 s{k.sCnt}, {cn[0]}, {cn[1]}")
            k(f"s_cmp_eq_u32 s{sPh}, 2")
            k(f"s_cselect_b32 s{k.sCnt}, {cn[2]}, s{k.sCnt}")
            k(f"s_add_u32 s{sPh}, s{sPh}, 1")
            k(f"s_barrier")
            k(f"s_branch {k.L('loop')}")
            k.label("fin")
            k(f"s_waitcnt lgkmcnt(0)")
        k.stamp("loopend")
        k(f"s_mul_i32 s{T0}, s{k.sWave}, 2304")
        k(f"s_add_u32 s{T0}, s{T0}, {XCH}")
        PV(vO[1], vV1[1], vS[1]+8)
        k(f"v_add_u32 v{vT0}, s{T0}, v{vL16}")
        k(f"v_lshlrev_b32 v{vKa}, 2, v{vLane}")
        k(f"v_add_u32 v{vKa}, s{T0}, v{vKa}")
        k(f"s_xor_b32 s{T1}, s{k.sWave}, 4")
        k(f"s_mul_i32 s{T1}, s{T1}, 2304")
        k(f"s_add_u32 s{T1}, s{T1}, {XCH}")
        k(f"v_add_u32 v{vT1}, s{T1}, v{vL16}")
        k(f"v_lshlrev_b32 v{vVa}, 2, v{vLane}")
        k(f"v_add_u32 v{vVa}, s{T1}, v{vVa}")
        k(f"s_nop 2")
        k(f"s_cmp_eq_u32 s{sKh}, 0")
        k(f"s_cbranch_scc1 {k.L('kh0')}")
        k(f"ds_write_b128 v{vT0}, {vr(vO[0],4)}")
        k(f"ds_write_b128 v{vT0}, {vr(vO[0]+4,4)} offset:1024")
        k(f"ds_write_b32 v{vKa}, v{vO[0]+8} offset:2048")
        k(f"s_waitcnt lgkmcnt(0)")
        for i in range(9): k(f"v_mov_b32 v{vO[0]+i}, v{vO[1]+i}")
        for i in range(4): k(f"v_mov_b32 v{vQ[0]+i}, v{vQ[1]+i}")
        k(f"s_branch {k.L('xch')}")
        k.label("kh0")
        k(f"ds_write_b128 v{vT0}, {vr(vO[1],4)}")
        k(f"ds_write_b128 v{vT0}, {vr(vO[1]+4,4)} offset:1024")
        k(f"ds_write_b32 v{vKa}, v{vO[1]+8} offset:2048")
        k(f"s_waitcnt lgkmcnt(0)")
        k.label("xch")
        k(f"s_barrier")
        k.stamp("xch")
        k(f"ds_read_b128 {vr(vS[0],4)}, v{vT1}")
        k(f"ds_read_b128 {vr(vS[0]+4,4)}, v{vT1} offset:1024")
        k(f"ds_read_b32 v{vS[0]+8}, v{vVa} offset:2048")
        k(f"s_waitcnt lgkmcnt(0)")
        O = vO[0]
        for i in range(9): k(f"v_add_f32 v{O+i}, v{O+i}, v{vS[0]+i}")
        k(f"v_add_f32 v{vT0}, abs(v{O}), v{O+8}")
        for i in range(1, 8): k(f"v_add_f32 v{vT0}, abs(v{O+i}), v{vT0}")
        k(f"s_mov_b32 s{T0}, 0x71800000")
        k(f"v_cmp_gt_f32 vcc, s{T0}, v{vT0}")
        k(f"s_cmp_eq_u64 vcc, -1")
        k(f"s_cbranch_scc1 {k.L('store')}")
        sKV = sQo
        k(f"s_lshl_b32 s{sKV}, s{sHead}, 17")
        k(f"s_add_u32 s{sKV}, s{sKV}, {WS_KVF:#x}")
        k(f"s_mov_b32 s{k.sCnt}, 64")
        k(f"s_mov_b32 s{T1}, s{sKV}")
        k(f"v_mov_b32 v{vT0}, 0xff800000")
        k.label("fb1")
        k(f"buffer_load_dwordx4 {vr(vKf[0],4)}, v{vL16}, {WSr}, s{T1} offen{LD}")
        k(f"s_add_u32 s{T1}, s{T1}, 2048")
        k(f"s_waitcnt vmcnt(0)")
        QK(vS[0], vKf[0], vQ[0], "0")
        k(f"s_nop 15")
        for i in range(0, 16, 2): k(f"v_max3_f32 v{vT0}, v{vT0}, v{vS[0]+i}, v{vS[0]+i+1}")
        k(f"s_sub_u32 s{k.sCnt}, s{k.sCnt}, 1")
        k(f"s_cmp_lg_u32 s{k.sCnt}, 0")
        k(f"s_cbranch_scc1 {k.L('fb1')}")
        half_combine(k, [vT0], [vT1], op="v_max_f32")
        for i in range(16):
            k(f"v_sub_f32 v{vNM[0]+i}, 0, v{vT0}")
            k(f"v_mov_b32 v{O+i}, 0")
        for i in range(4):
            k(f"v_mov_b32 v{vV0+i}, 0x3f803f80")
            k(f"v_mov_b32 v{vV1[0]+i}, 0x3f803f80")
        k(f"s_mov_b32 s{k.sCnt}, 64")
        k.label("fb2")
        k(f"buffer_load_dwordx4 {vr(vKf[0],4)}, v{vL16}, {WSr}, s{sKV} offen{LD}")
        k(f"s_mov_b32 exec_lo, 0xffff")
        k(f"s_mov_b32 exec_hi, 0xffff")
        k(f"buffer_load_dwordx4 {vr(vV0,4)}, v{vVa0}, {WSr}, s{sKV} offen{LD}")
        k(f"buffer_load_dwordx4 {vr(vV1[0],4)}, v{vVa0}, {WSr}, s{sKV} offen offset:512{LD}")
        k(f"s_mov_b64 exec, -1")
        k(f"s_add_u32 s{sKV}, s{sKV}, 2048")
        k(f"s_waitcnt vmcnt(0)")
        QK(vS[0], vKf[0], vQ[0], vr(vNM[0],16))
        k(f"s_nop 15")
        for i in range(16): e(vS[0], i)
        k(f"s_nop 1")
        PV(O, vV0, vS[0])
        PV(O, vV1[0], vS[0]+8)
        k(f"s_nop 15")
        k(f"s_sub_u32 s{k.sCnt}, s{k.sCnt}, 1")
        k(f"s_cmp_lg_u32 s{k.sCnt}, 0")
        k(f"s_cbranch_scc1 {k.L('fb2')}")
        k.label("store")
        k(f"v_rcp_f32 v{vT1}, v{O+8}")
        k(f"s_nop 0")
        for i in range(8): k(f"v_mul_f32 v{O+i}, v{O+i}, v{vT1}")
        for i in range(4): k(f"v_cvt_pk_bf16_f32 v{vKf[0]+i}, v{O+2*i}, v{O+2*i+1}")
        k(f"buffer_store_dwordx4 {vr(vKf[0],4)}, v{vL16}, {WSr}, s{sOoff} offen{SC}")
        k.stamp("stored")
        if not last:
            if first: nonce_fetch(k, vS[0])
            set_flag(k, sFl, vT0, vS[0])
            k.stamp("flag")
        k.reset(m)
    BARS = {32: (2, 10, 16), 4: (4, 12, 16), 8: (8, 16, 24)}[env('P2_LOOP', 32)]

    def l_pre(self, k): k.reset(k.lbase)
    def l(self, k, first, last, next_pre):
        k.pfx = "p2l_"
        LD = "" if first else SCOPE_LD
        T0, T1 = k.sT0, k.sT1; WSr = sr(k.sWS, 4); vL16 = k.vL16; sLw = k.sLw
        self.roles(k)
        sKV = k.s(); sOff = k.s(); sPF = k.s(4, 4); sId = k.s()
        vT0 = k.v(); vT1 = k.v()
        k(f"s_lshl_b32 s{sKV}, s{self.sHead}, 17")
        k(f"s_and_b32 s{T0}, s{sLw}, 1")
        k(f"s_lshl_b32 s{T0}, s{T0}, 10")
        k(f"s_add_u32 s{sKV}, s{sKV}, s{T0}")
        k(f"s_add_u32 s{sKV}, s{sKV}, {WS_KVF:#x}")
        k(f"s_lshr_b32 s{T1}, s{sLw}, 1")
        k(f"s_lshl_b32 s{T1}, s{T1}, 16")
        k(f"s_add_u32 m0, s{T1}, s{T0}")
        k(f"s_lshl_b32 s{sOff}, s{self.sQb}, 14")
        k(f"s_add_u32 s{sOff}, s{sOff}, s{T1}")
        if first: k.ptrs_ready()
        else: k(f"s_barrier")
        def issue2():
            k(f"s_and_b32 s{sOff}, s{sOff}, 0x1ffff")
            k(f"s_add_u32 s{T0}, s{sOff}, s{sKV}")
            k(f"buffer_load_dwordx4 v{vL16}, {WSr}, s{T0} offen{LD} lds")
            k(f"buffer_load_dwordx4 v{vL16}, {WSr}, s{T0} offen offset:2048{LD} lds")
            k(f"s_add_u32 m0, m0, 4096")
            k(f"s_add_u32 s{sOff}, s{sOff}, 4096")
        n0 = self.BARS[0] + 2; n1 = self.BARS[1] + 2
        i0 = n0//2 + 1; i1 = min(16, n1//2 + 2)
        for i in range(i0): issue2()
        k(f"s_waitcnt vmcnt({2*i0 - n0})")
        k(f"s_barrier")
        for i in range(i1 - i0): issue2()
        k(f"s_waitcnt vmcnt({2*i1 - n1})")
        k(f"s_barrier")
        for i in range(16 - i1): issue2()
        nt = [0]
        PF = env("P2_PF", "sUixo")
        k(f"s_lshl_b32 s{sId}, s{k.sJ}, 2")
        k(f"s_add_u32 s{sId}, s{sId}, s{sLw}")
        def touch(ka, size, per_wave, xcd_stride):
            k.srd(sPF, k.ptr(ka), size)
            k(f"s_mul_i32 s{T0}, s{sId}, {per_wave}")
            if xcd_stride:
                k(f"s_mul_i32 s{T1}, s{k.sX}, {xcd_stride}")
                k(f"s_add_u32 s{T0}, s{T0}, s{T1}")
            stride = min(128, per_wave//64)
            n = -(-per_wave//(64*stride))
            k(f"v_mul_u32_u24 v{vT0}, {stride}, v{k.vLane}")
            for i in range(n):
                k(f"buffer_load_dword v{k.vDump}, v{vT0}, {sr(sPF,4)}, s{T0} offen")
                nt[0] += 1
                if i < n-1: k(f"s_add_u32 s{T0}, s{T0}, {64*stride}")
        k(f"s_waitcnt vmcnt(0)")
        k(f"s_barrier")
        k(f"s_barrier")
        if self.p4:
            self.p4.stage_regs(k)
            k.pfx = "p2l_"
        if "s" in PF: touch(KA_WSP, T*T*2, 8192, 1048576)
        if "u" in PF: touch(KA_WOUT, FH*D*2, 1024, 131072)
        if "U" in PF: touch(KA_WOUT, FH*D*2, 8192, 0)
        if "i" in PF and not self.p4: touch(KA_WIN, D*F*2, 16384, 0)
        if "x" in PF: touch(KA_X, T*D*2, 2048, 262144)
        if "o" in PF and last: touch(KA_WO, D*D*2, 4096, 0)
        if not last:
            k(f"s_cmp_lg_u32 s{sLw}, 3")
            k(f"s_cbranch_scc1 {k.L('nowarm')}")
            warm(k, vT0, k.vDump, env("WARM2", "ta"))
            k.label("nowarm")
            next_pre(k)
            k(f"s_barrier")
    p4 = None
```

```python
from base import *
from sched import Sched, run_sched

class Proj:
    def __init__(self, mode):
        self.mode = mode
        self.NKS = 32 if mode == 3 else 56
        self.N = self.NKS//4
        self.XR = 131072
    def plan(self, first):
        KB = 1024
        G = 2
        if self.mode == 3:
            w = [i*8*KB for i in range(4)] + [64*KB + i*8*KB for i in range(4)]
            a = [32*KB + i*8*KB for i in range(4)] + [96*KB + i*8*KB for i in range(4)]
            self.S = Sched(8, w + a, 0 if first else 8, 2, 2, look=6, group=G)
        else:
            slots = [i*8*KB for i in range(20)]
            self.S = Sched(14, slots, 0 if first else 14, 2, 2, look=6, group=G)
    def roles(self, k):
        self.sTb = k.s(); self.sCb = k.s()
        k(f"s_lshl_b32 s{k.sT0}, s{k.sX}, 2")
        k(f"s_and_b32 s{k.sT1}, s{k.sJ}, 3")
        k(f"s_add_u32 s{self.sTb}, s{k.sT0}, s{k.sT1}")
        k(f"s_lshr_b32 s{self.sCb}, s{k.sJ}, 2")

    def c(self, k, first, last):
        mode = self.mode; N = self.N; XR = self.XR
        k.pfx = f"p{mode}c_"; m = k.mark()
        self.plan(first); S = self.S
        SC = "" if last else SCOPE_ST
        LD = "" if first else SCOPE_LD
        T0, T1 = k.sT0, k.sT1; WSr = sr(k.sWS, 4); vL16 = k.vL16; vLane = k.vLane
        self.roles(k)
        sTb, sCb = self.sTb, self.sCb
        vT0 = k.v(); vT1 = k.v(); vT2 = k.v(2, 2); vT3 = vT2+1
        k(f"s_cmp_ge_u32 s{k.sWave}, 4")
        k(f"s_cbranch_scc1 {k.L('idle')}")
        sTh = k.s(); sCt = k.s(); sTT = k.s(); sHo = k.s(); sXo = k.s(); sFl = k.s(); sSX = k.s(4, 4)
        vWa = k.v(); vAa = k.v()
        vR = k.v(8, 4)
        vW = [k.v(16, 4), k.v(16, 4)]
        vA = [k.v(16, 4), k.v(16, 4)]
        vAcc = k.v(16, 4)
        vE = k.v(16, 4)
        k(f"s_and_b32 s{sTh}, s{k.sWave}, 1")
        k(f"s_lshr_b32 s{sCt}, s{k.sWave}, 1")
        k(f"s_lshl_b32 s{sTT}, s{sTb}, 1")
        k(f"s_add_u32 s{sTT}, s{sTT}, s{sTh}")
        k(f"s_lshl_b32 s{sFl}, s{sTT}, 4")
        k(f"s_lshl_b32 s{T1}, s{sCb}, 1")
        k(f"s_add_u32 s{sFl}, s{sFl}, s{T1}")
        k(f"s_add_u32 s{sFl}, s{sFl}, s{sCt}")
        k(f"s_lshl_b32 s{sHo}, s{sFl}, 11")
        k(f"s_add_u32 s{sHo}, s{sHo}, {WS_HF:#x}")
        k(f"s_lshl_b32 s{sXo}, s{sTT}, 15")
        k(f"s_lshl_b32 s{T1}, s{sCb}, 7")
        k(f"s_add_u32 s{sXo}, s{sXo}, s{T1}")
        k(f"s_lshl_b32 s{T1}, s{sCt}, 6")
        k(f"s_add_u32 s{sXo}, s{sXo}, s{T1}")
        tr_base(k, vWa, vT0, natural=False)
        k(f"s_lshl_b32 s{T0}, s{sCt}, 10")
        k(f"v_add_u32 v{vWa}, s{T0}, v{vWa}")
        k(f"s_lshl_b32 s{T0}, s{sTh}, 12")
        k(f"v_add_u32 v{vAa}, s{T0}, v{vL16}")
        wins = sorted({a >> 16 for a in S.addr.values()})
        Ww = Win(k, vWa, wins); Aw = Win(k, vAa, wins)
        for i in range(16): k(f"v_mov_b32 v{vAcc+i}, 0")
        if mode == 3:
            k(f"v_and_b32 v{vT0}, 31, v{vLane}")
            k(f"v_lshlrev_b32 v{vT0}, 6, v{vT0}")
            k(f"v_lshrrev_b32 v{vT2}, 5, v{vLane}")
            k(f"v_lshl_add_u32 v{vT0}, v{vT2}, 3, v{vT0}")
            k(f"s_lshl_b32 s{T0}, s{k.sWave}, 11")
            k(f"s_add_u32 s{T0}, s{T0}, {XR}")
            k(f"v_add_u32 v{vT0}, s{T0}, v{vT0}")
            k(f"v_bfe_u32 v{vT2}, v{vLane}, 2, 2")
            for p in range(4):
                k(f"v_xor_b32 v{vE+p}, {p}, v{vT2}")
                k(f"v_lshl_add_u32 v{vE+p}, v{vE+p}, 4, v{vT0}")
        else:
            k(f"v_and_b32 v{vT0}, 31, v{vLane}")
            k(f"v_lshlrev_b32 v{vT0}, 10, v{vT0}")
            k(f"v_lshrrev_b32 v{vT2}, 5, v{vLane}")
            k(f"v_lshl_add_u32 v{vT0}, v{vT2}, 4, v{vT0}")
        if first:
            k.ptrs_ready()
            if not last: nonce_fetch(k, vW[0])
        if mode == 6:
            k.srd(sSX, k.ptr(KA_OUT), T*D*2)
            k(f"buffer_load_dwordx4 {vr(vR,4)}, v{vL16}, {WSr}, s{sHo} offen{LD}")
            k(f"buffer_load_dwordx4 {vr(vR+4,4)}, v{vL16}, {WSr}, s{sHo} offen offset:1024{LD}")
        if not first:
            k(f"s_cmp_lg_u32 s{k.sWave}, {PW}")
            k(f"s_cbranch_scc1 {k.L('nopoll')}")
            if mode == 6:
                k(f"s_cmp_lt_u32 s{k.sJ}, 28")
                k(f"s_cbranch_scc1 {k.L('nolong')}")
                k(f"s_lshl_b32 s{T0}, s{sTb}, 6")
                k(f"s_add_u32 s{T0}, s{T0}, {FL5}")
                poll(k, "poll0", T0, vT1, vT2, n=1, sleep=8)
                k.label("nolong")
            k(f"s_lshl_b32 s{T0}, s{sTb}, 6")
            k(f"s_add_u32 s{T0}, s{T0}, {FL2 if mode == 3 else FL5}")
            poll(k, "poll", T0, vT1, vT2, n=64 if mode == 3 else 56)
            k.label("nopoll")
            k(f"s_barrier")
            k.stamp("ready")
        def reads(u):
            b = u & 1; l = []
            for i in range(4):
                l.append(f"ds_read_b128 {vr(vA[b]+4*i,4)}, {Aw.at(S.addr[('A',u)] + i*1024)}")
                l.append(f"ds_read_b64_tr_b16 {vr(vW[b]+4*i,2)}, {Ww.at(S.addr[('W',u)] + i*2048)}")
                l.append(f"ds_read_b64_tr_b16 {vr(vW[b]+4*i+2,2)}, {Ww.at(S.addr[('W',u)] + i*2048 + 512)}")
            return l
        def comp(u):
            b = u & 1
            return [f"v_mfma_f32_32x32x16_bf16 {vr(vAcc,16)}, {vr(vW[b]+4*i,4)}, {vr(vA[b]+4*i,4)}, {vr(vAcc,16)}" for i in range(4)]
        G = S.group
        for u in range(N):
            if u % G == 0:
                k(f"s_barrier")
                if u == 0: k.stamp("data")
            rd = reads(u)
            if u == 1 and mode == 3:
                rd += [f"ds_read_b64 {vr(vR+2*p,2)}, v{vE+p}" for p in range(4)]
            if u == 0 or u % G == 0:
                interleave(k, comp(u-1) if u else [], rd, per=4)
            else:
                cp = comp(u-1)
                for i in range(4):
                    k.many(rd[3*i:3*i+3])
                    k(f"s_waitcnt lgkmcnt({min(15, 9 - 3*i + 3*(i+1))})")
                    k(cp[i])
                k.many(rd[12:])
            if u < N-1 and (u+1) % G == 0: k(f"s_waitcnt lgkmcnt(0)")
            if u == 3:
                if mode == 6: k(f"s_waitcnt vmcnt(0)")
                for r in range(8):
                    k(f"v_lshlrev_b32 v{vE+2*r}, 16, v{vR+r}")
                    k(f"v_and_b32 v{vE+2*r+1}, 0xffff0000, v{vR+r}")
        last_c = comp(N-1)
        for i in range(4):
            k(f"s_waitcnt lgkmcnt({9-3*i})")
            k(last_c[i])
        if not last: k(f"s_barrier")
        k.stamp("loopend")
        k(f"s_nop {10 if last else 9}")
        for r in range(16): k(f"v_add_f32 v{vAcc+r}, v{vAcc+r}, v{vE+r}")
        for r in range(8): k(f"v_cvt_pk_bf16_f32 v{vR+r}, v{vAcc+2*r}, v{vAcc+2*r+1}")
        if mode == 3:
            k(f"buffer_store_dwordx4 {vr(vR,4)}, v{vL16}, {WSr}, s{sHo} offen{SC}")
            k(f"buffer_store_dwordx4 {vr(vR+4,4)}, v{vL16}, {WSr}, s{sHo} offen offset:1024{SC}")
            vS = vW[0]
            k(f"v_add_f32 v{vS}, v{vAcc}, v{vAcc+1}")
            k(f"v_mul_f32 v{vS+1}, v{vAcc}, v{vAcc}")
            k(f"v_add_f32 v{vS+2}, v{vAcc+2}, v{vAcc+3}")
            k(f"v_mul_f32 v{vS+3}, v{vAcc+1}, v{vAcc+1}")
            for r in range(2, 16):
                if r >= 4: k(f"v_add_f32 v{vS+2*(r&1)}, v{vS+2*(r&1)}, v{vAcc+r}")
                k(f"v_fmac_f32 v{vS+1+2*(r&1)}, v{vAcc+r}, v{vAcc+r}")
            k(f"v_add_f32 v{vS}, v{vS}, v{vS+2}")
            k(f"v_add_f32 v{vS+1}, v{vS+1}, v{vS+3}")
            half_combine(k, [vS, vS+1], [vT1, vT2])
            k(f"v_lshlrev_b32 v{vT0}, 3, v{vLane}")
            k(f"s_lshl_b32 s{T0}, s{sFl}, 8")
            k(f"s_add_u32 s{T0}, s{T0}, {WS_HS:#x}")
            k(f"s_mov_b32 exec_hi, 0")
            k(f"buffer_store_dwordx2 {vr(vS,2)}, v{vT0}, {WSr}, s{T0} offen{SC}")
            k(f"s_mov_b32 exec_hi, -1")
            k.stamp("stored")
            if not last:
                k(f"s_add_u32 s{sFl}, s{sFl}, {FL3}")
                set_flag(k, sFl, vT0, vT2, rep=R3)
                k.stamp("flag")
        else:
            k(f"s_nop 1")
            for m_ in range(2):
                k(f"v_permlane32_swap_b32 v{vR+4*m_}, v{vR+4*m_+2}")
                k(f"v_permlane32_swap_b32 v{vR+4*m_+1}, v{vR+4*m_+3}")
            k(f"buffer_store_dwordx4 {vr(vR,4)}, v{vT0}, {sr(sSX,4)}, s{sXo} offen")
            k(f"buffer_store_dwordx4 {vr(vR+4,4)}, v{vT0}, {sr(sSX,4)}, s{sXo} offen offset:32")
            k.stamp("stored")
        k(f"s_branch {k.L('end')}")
        k.label("idle")
        if first and not last:
            k.ptrs_ready()
            nonce_publish(k, vW[0])
            nonce_fetch(k, vW[0], "nf2")
        if not first: k(f"s_barrier")
        if last: k(f"s_endpgm")
        else:
            for _ in range(S.NB+1): k(f"s_barrier")
        k.label("end")
        k.reset(m)

    def l_setup(self, k):
        mode = self.mode; T0, T1 = k.sT0, k.sT1; sLw = k.sLw
        k.pfx = f"p{mode}l_"
        self.roles(k)
        self.sSW = k.s(4, 4); self.sAo = k.s(); self.sWo = k.s(); self.sM = k.s(); self.sRot = k.s()
        self.vWd = k.v(2); self.vT = k.v(2)
        vT = self.vT
        k(f"s_lshl_b32 s{self.sRot}, s{T1}, 1")
        k(f"s_add_u32 s{self.sRot}, s{self.sRot}, s{self.sCb}")
        k(f"s_and_b32 s{self.sRot}, s{self.sRot}, {7 if env('P36_ROT', 1) else 0}")
        if mode == 6:
            k(f"s_mul_i32 s{self.sRot}, s{self.sRot}, 7")
            k(f"s_lshr_b32 s{self.sRot}, s{self.sRot}, 2")
        k(f"v_lshrrev_b32 v{vT}, 2, v{k.vLane}")
        k(f"v_lshlrev_b32 v{vT}, 10, v{vT}")
        k(f"v_and_b32 v{vT+1}, 3, v{k.vLane}")
        k(f"v_lshl_add_u32 v{self.vWd}, v{vT+1}, 4, v{vT}")
        k(f"v_add_u32 v{self.vWd+1}, 64, v{self.vWd}")
        k(f"v_add_u32 v{self.vWd}, 1024, v{self.vWd}")
        k(f"s_lshr_b32 s{T0}, s{sLw}, 1")
        k(f"s_lshl_b32 s{T1}, s{self.sTb}, 1")
        k(f"s_add_u32 s{T0}, s{T0}, s{T1}")
        k(f"s_mul_i32 s{self.sAo}, s{T0}, {self.NKS*1024}")
        k(f"s_and_b32 s{T0}, s{sLw}, 1")
        k(f"s_lshl_b32 s{T0}, s{T0}, 11")
        k(f"s_add_u32 s{self.sAo}, s{self.sAo}, s{T0}")
        k(f"s_add_u32 s{self.sAo}, s{self.sAo}, {(WS_OF if mode == 3 else WS_UF):#x}")
        k(f"s_lshl_b32 s{self.sM}, s{sLw}, 11")
        k(f"s_lshl_b32 s{self.sWo}, s{sLw}, 14")
        k(f"s_lshl_b32 s{T0}, s{self.sCb}, 7")
        k(f"s_add_u32 s{self.sWo}, s{self.sWo}, s{T0}")
    def l_srd(self, k):
        k.srd(self.sSW, k.ptr(KA_WO if self.mode == 3 else KA_WOUT), self.NKS*16*1024, bias=1024)
    def issue(self, k, kind, u, a, LD):
        T0 = k.sT0; N = self.N
        k(f"s_add_u32 s{T0}, s{self.sRot}, {u}")
        if N == 8: k(f"s_and_b32 s{T0}, s{T0}, 7")
        else:
            k(f"s_sub_u32 s{k.sT1}, s{T0}, {N}")
            k(f"s_cselect_b32 s{T0}, s{T0}, s{k.sT1}")
        k(f"s_add_u32 m0, s{self.sM}, {a}")
        if kind == 'W':
            k(f"s_lshl_b32 s{T0}, s{T0}, 16")
            k(f"s_add_u32 s{T0}, s{T0}, s{self.sWo}")
            k(f"buffer_load_dwordx4 v{self.vWd}, {sr(self.sSW,4)}, s{T0} offen lds")
            k(f"buffer_load_dwordx4 v{self.vWd+1}, {sr(self.sSW,4)}, s{T0} offen offset:1024 lds")
        else:
            k(f"s_lshl_b32 s{T0}, s{T0}, 12")
            k(f"s_add_u32 s{T0}, s{T0}, s{self.sAo}")
            k(f"buffer_load_dwordx4 v{k.vL16}, {sr(k.sWS,4)}, s{T0} offen{LD} lds")
            k(f"buffer_load_dwordx4 v{k.vL16}, {sr(k.sWS,4)}, s{T0} offen offset:1024{LD} lds")
    def stage_regs(self, k):
        m = k.mark()
        self.l_setup(k); self.l_srd(k)
        out = []
        for u in range(self.N):
            def f(u=u, sRot=self.sRot, sWo=self.sWo, vWd=self.vWd, sSW=self.sSW):
                T0 = k.sT0
                k(f"s_add_u32 s{T0}, s{sRot}, {u}")
                k(f"s_sub_u32 s{k.sT1}, s{T0}, {self.N}")
                k(f"s_cselect_b32 s{T0}, s{T0}, s{k.sT1}")
                k(f"s_lshl_b32 s{T0}, s{T0}, 16")
                k(f"s_add_u32 s{T0}, s{T0}, s{sWo}")
                k(f"buffer_load_dwordx4 {vr(k.vStage+8*u,4)}, v{vWd}, {sr(sSW,4)}, s{T0} offen")
                k(f"buffer_load_dwordx4 {vr(k.vStage+8*u+4,4)}, v{vWd+1}, {sr(sSW,4)}, s{T0} offen offset:1024")
            out.append(f)
        self.staged = True
        return out
    staged = False
    def l_pre(self, k):
        k.reset(k.lbase)
        self.plan(False)
        self.l_setup(k); self.l_srd(k)
        if self.staged:
            vD = k.v()
            k(f"v_add_u32 v{vD}, s{self.sM}, v{k.vL16}")
            Wn = Win(k, vD, [0, 1])
            k(f"s_waitcnt vmcnt(0)")
            for kd, u, a in self.S.pre:
                for i in range(2):
                    ad = Wn.at(a + i*1024).split(" ")
                    k(f"ds_write_b128 {ad[0]}, {vr(k.vStage+8*u+4*i,4)} {ad[1]}")
            k(f"s_waitcnt lgkmcnt(0)")
        else:
            for kd, u, a in self.S.pre: self.issue(k, kd, u, a, "")
    def xres(self, k):
        T0, T1 = k.sT0, k.sT1; vT = self.vT; sLw = k.sLw
        sSX = k.s(4, 4); vX = k.v()
        k.srd(sSX, k.ptr(KA_X), T*D*2)
        k(f"v_lshrrev_b32 v{vX}, 4, v{k.vLane}")
        k(f"v_xor_b32 v{vX}, v{vT+1}, v{vX}")
        k(f"v_lshl_add_u32 v{vX}, v{vX}, 4, v{vT}")
        k(f"s_lshl_b32 s{T0}, s{self.sTb}, 16")
        k(f"s_and_b32 s{T1}, s{sLw}, 1")
        k(f"s_lshl_b32 s{T1}, s{T1}, 15")
        k(f"s_add_u32 s{T0}, s{T0}, s{T1}")
        k(f"s_lshl_b32 s{T1}, s{self.sCb}, 7")
        k(f"s_add_u32 s{T0}, s{T0}, s{T1}")
        k(f"s_lshr_b32 s{T1}, s{sLw}, 1")
        k(f"s_lshl_b32 s{T1}, s{T1}, 6")
        k(f"s_add_u32 m0, s{self.sM}, {self.XR}")
        k(f"s_add_u32 s{T0}, s{T0}, s{T1}")
        k(f"buffer_load_dwordx4 v{vX}, {sr(sSX,4)}, s{T0} offen lds")
        k(f"s_add_u32 m0, m0, 1024")
        k(f"s_add_u32 s{T0}, s{T0}, 16384")
        k(f"buffer_load_dwordx4 v{vX}, {sr(sSX,4)}, s{T0} offen lds")
    def l(self, k, first, last, next_pre):
        LD = "" if first else SCOPE_LD
        if first:
            self.plan(True)
            self.l_setup(k); k.ptrs_ready(); self.l_srd(k)
        k.pfx = f"p{self.mode}l_"
        if self.mode == 3: self.xres(k)
        if not first: k(f"s_barrier")
        run_sched(k, self.S, lambda kd, u, a: self.issue(k, kd, u, a, LD), {'W': 2, 'A': 2})
        if not last:
            k(f"s_barrier")
            next_pre(k)
```

```python
from base import *
from sched import Sched, run_sched

class P4:
    N = 8; SCR = 9*16384
    staged = False
    def plan(self, first):
        slots = [i*16384 for i in range(9)]
        if first or not self.staged:
            self.S = Sched(8, slots, 0 if first else 6, 4, 4, look=3)
        else:
            self.S = Sched(8, slots, env("P4_PW", 5), 4, 4, look=3, wreg=True, avoid=lambda u, a: u >= env("P4_AV", 6) and a < 65536)
    def roles(self, k):
        self.sRb = k.s(); self.sNb = k.s()
        k(f"s_lshl_b32 s{k.sT0}, s{k.sX}, 1")
        k(f"s_and_b32 s{k.sT1}, s{k.sJ}, 1")
        k(f"s_add_u32 s{self.sRb}, s{k.sT0}, s{k.sT1}")
        k(f"s_lshr_b32 s{self.sNb}, s{k.sJ}, 1")

    def c(self, k, first, last):
        k.pfx = "p4c_"; m = k.mark()
        self.plan(first); S = self.S; N = self.N; SCR = self.SCR
        SC = "" if last else SCOPE_ST
        LD = "" if first else SCOPE_LD
        T0, T1 = k.sT0, k.sT1; WSr = sr(k.sWS, 4); vL16 = k.vL16; vLane = k.vLane
        if first and not last: k.ptrs_ready()
        k(f"s_cmp_ge_u32 s{k.sJ}, 28")
        k(f"s_cbranch_scc1 {k.L('end')}")
        self.roles(k)
        sNb = self.sNb
        sTl = k.s(); sHf = k.s(); sTT = k.s(); sScr = k.s(); sC0 = k.s(); sPs = k.s(); sFl = k.s()
        vT0 = k.v(); vT1 = k.v(); vT2 = k.v(2, 2); vT3 = vT2+1
        vSum = k.v(2, 2); vSq = vSum+1
        vWa = k.v(); vAa = k.v()
        if not first:
            k(f"s_cmp_lg_u32 s{k.sWave}, {PW}")
            k(f"s_cbranch_scc1 {k.L('nopoll')}")
            k(f"s_lshl_b32 s{T0}, s{self.sRb}, 6")
            k(f"s_and_b32 s{T1}, s{sNb}, {R3-1}")
            k(f"s_lshl_b32 s{T1}, s{T1}, 10")
            k(f"s_add_u32 s{T0}, s{T0}, s{T1}")
            k(f"s_add_u32 s{T0}, s{T0}, {FL3}")
            poll(k, "poll", T0, vT0, vT2)
            k(f"s_barrier")
            k.label("nopoll")
        k(f"s_and_b32 s{sTl}, s{k.sWave}, 3")
        k(f"s_lshr_b32 s{sHf}, s{k.sWave}, 2")
        k(f"s_lshl_b32 s{sTT}, s{self.sRb}, 2")
        k(f"s_add_u32 s{sTT}, s{sTT}, s{sTl}")
        k(f"s_lshl_b32 s{sScr}, s{k.sWave}, 10")
        k(f"s_add_u32 s{sScr}, s{sScr}, {SCR}")
        tr_base(k, vWa, vT0, natural=False)
        k(f"s_lshl_b32 s{T0}, s{sHf}, 11")
        k(f"v_add_u32 v{vWa}, s{T0}, v{vWa}")
        k(f"s_lshl_b32 s{T0}, s{sTl}, 12")
        k(f"v_add_u32 v{vAa}, s{T0}, v{vL16}")
        Ww = Win(k, vWa, sorted({a >> 16 for (kd, u), a in S.addr.items() if kd == 'W'}))
        Aw = Win(k, vAa, sorted({a >> 16 for (kd, u), a in S.addr.items() if kd == 'A'}))
        vW = [k.v(32, 4), k.v(32, 4)]
        vA = [k.v(16, 4), k.v(16, 4)]
        vAcc = k.v(32, 4)
        vSel = k.v(4, 4); vCs = k.v(8, 4)
        vHS = k.v(8, 4)
        sel16(k, vSel, vT0)
        for r in range(8): k(f"v_mov_b32 v{vCs+r}, 0")
        for i in range(32): k(f"v_mov_b32 v{vAcc+i}, 0")
        k(f"s_lshr_b32 s{T0}, s{sNb}, 1")
        k(f"s_lshl_b32 s{T0}, s{T0}, 6")
        k(f"s_add_u32 s{T0}, s{T0}, s{sTT}")
        k(f"s_lshl_b32 s{T0}, s{T0}, 1")
        k(f"s_and_b32 s{T1}, s{sNb}, 1")
        k(f"s_add_u32 s{sFl}, s{T0}, s{T1}")
        if first and last: k.ptrs_ready()
        if first:
            nonce_publish(k, vW[0])
            nonce_fetch(k, vW[0])
        if not first:
            k(f"s_cmp_eq_u32 s{k.sWave}, {PW}")
            k(f"s_cbranch_scc1 {k.L('rdy')}")
            k(f"s_barrier")
            k.label("rdy")
            k.stamp("ready")
        k(f"s_lshl_b32 s{T0}, s{sTT}, 12")
        k(f"s_add_u32 s{T0}, s{T0}, {WS_HS:#x}")
        def hsload(h):
            if h == 0: k(f"v_lshlrev_b32 v{vT3}, 3, v{vLane}")
            for i in range(4):
                k(f"buffer_load_dwordx2 {vr(vHS+2*i,2)}, v{vT3}, {WSr}, s{T0} offen offset:{h*2048 + i*512}{LD}")
        def hsacc(h):
            k(f"s_waitcnt vmcnt(0)")
            for j in range(2):
                k(f"v_add_f32 v{vHS+j}, v{vHS+j}, v{vHS+2+j}")
                k(f"v_add_f32 v{vHS+4+j}, v{vHS+4+j}, v{vHS+6+j}")
                if h == 0: k(f"v_add_f32 v{vSum+j}, v{vHS+j}, v{vHS+4+j}")
                else:
                    k(f"v_add_f32 v{vHS+j}, v{vHS+j}, v{vHS+4+j}")
                    k(f"v_add_f32 v{vSum+j}, v{vSum+j}, v{vHS+j}")
        def stats():
            half_combine(k, [vSum, vSq], [vT0, vT1])
            k(f"v_mul_f32 v{vSum}, {f32(1/512):#x}, v{vSum}")
            k(f"v_mul_f32 v{vSq}, {f32(1/512):#x}, v{vSq}")
            k(f"v_fma_f32 v{vSq}, -v{vSum}, v{vSum}, v{vSq}")
            k(f"v_max_f32 v{vSq}, 0, v{vSq}")
            k(f"v_add_f32 v{vSq}, {f32(1e-5):#x}, v{vSq}")
            k(f"v_rsq_f32 v{vHS}, v{vSq}")
            C0 = -2*0.7978845608028654*1.4426950408889634
            k(f"v_mov_b32 v{vHS+2}, {f32(C0):#x}")
            k(f"v_mov_b32 v{vHS+3}, {f32(C0*0.044715):#x}")
            k(f"v_mul_f32 v{vHS+1}, v{vSum}, v{vHS}")
            k(f"v_sub_f32 v{vHS+1}, 0, v{vHS+1}")
        def reads(u):
            b = u & 1; l = []
            for i in range(4):
                l.append(f"ds_read_b128 {vr(vA[b]+4*i,4)}, {Aw.at(S.addr[('A',u)] + i*1024)}")
                for c in range(2):
                    o = S.addr[('W',u)] + i*4096 + c*1024
                    l.append(f"ds_read_b64_tr_b16 {vr(vW[b]+8*i+4*c,2)}, {Ww.at(o)}")
                    l.append(f"ds_read_b64_tr_b16 {vr(vW[b]+8*i+4*c+2,2)}, {Ww.at(o + 512)}")
            return l
        def dots(u):
            b = u & 1
            def f():
                for i in range(4):
                    if i < 3:
                        k(f"s_cmp_lg_u32 s{sTl}, {i}")
                        k(f"s_cbranch_scc1 {k.L(f'd{u}_{i+1}')}")
                    for c in range(2):
                        k(f"v_mfma_f32_16x16x32_bf16 {vr(vCs+4*c,4)}, {vr(vSel,4)}, {vr(vW[b]+8*i+4*c,4)}, {vr(vCs+4*c,4)}")
                    if i < 3:
                        k(f"s_branch {k.L(f'd{u}_e')}")
                        k.label(f"d{u}_{i+1}")
                k.label(f"d{u}_e")
            return f
        def comp(u):
            b = u & 1
            return [f"v_mfma_f32_32x32x16_bf16 {vr(vAcc+16*c,16)}, {vr(vW[b]+8*i+4*c,4)}, {vr(vA[b]+4*i,4)}, {vr(vAcc+16*c,16)}"
                    for i in range(4) for c in range(2)]
        for u in range(N):
            k(f"s_barrier")
            if u == 0: k.stamp("data")
            interleave(k, (comp(u-1) + [dots(u-1)]) if u else [], reads(u), per=3)
            if u == 1: hsload(0)
            if u == 3: hsacc(0); hsload(1)
            if u == 5: hsacc(1); stats()
            k(f"s_waitcnt lgkmcnt(0)")
        dots(N-1)()
        k.many(comp(N-1))
        k.stamp("loopend")
        k(f"v_lshlrev_b32 v{vT0}, 2, v{vLane}")
        k(f"v_add_u32 v{vT0}, s{sScr}, v{vT0}")
        k(f"s_mov_b64 exec, 0xffff")
        for c in range(2):
            k(f"ds_write2_b32 v{vT0}, v{vCs+4*c}, v{vCs+4*c+1} offset0:{c*32} offset1:{c*32+16}")
        k(f"s_mov_b64 exec, -1")
        k(f"s_lshl_b32 s{T0}, s{sHf}, 12")
        k(f"s_add_u32 s{T0}, s{T0}, {SCR}")
        k(f"v_lshlrev_b32 v{vT1}, 2, v{vLane}")
        k(f"v_add_u32 v{vT1}, s{T0}, v{vT1}")
        k(f"v_lshrrev_b32 v{vT2}, 5, v{vLane}")
        k(f"v_lshlrev_b32 v{vT2}, 4, v{vT2}")
        k(f"v_add_u32 v{vT2}, s{sScr}, v{vT2}")
        k(f"s_waitcnt lgkmcnt(0)")
        k(f"s_barrier")
        vE = vW[0]
        for w in range(4): k(f"ds_read_b32 v{vE+w}, v{vT1} offset:{w*1024}")
        p2 = lambda r: vr(r, 2)
        vab, vcc_ = vHS, vHS+2
        LO = "op_sel_hi:[1,0]"; HI = "op_sel:[0,1] op_sel_hi:[1,1]"
        for r in range(0, 32, 2): k(f"v_pk_mul_f32 {p2(vAcc+r)}, {p2(vAcc+r)}, {p2(vab)} {LO}")
        k(f"s_waitcnt lgkmcnt(0)")
        k(f"v_add_f32 v{vE}, v{vE}, v{vE+1}")
        k(f"v_add_f32 v{vE+2}, v{vE+2}, v{vE+3}")
        k(f"v_add_f32 v{vE}, v{vE}, v{vE+2}")
        k(f"ds_write_b32 v{vT0}, v{vE} offset:512")
        k(f"s_waitcnt lgkmcnt(0)")
        for c in range(2):
            for g in range(4):
                k(f"ds_read_b128 {vr(vE+16*c+4*g,4)}, v{vT2} offset:{512 + c*128 + 32*g}")
        vTm = vW[1]; vP = vA[0]
        for r in range(0, 32, 2):
            if r % 4 == 0: k(f"s_waitcnt lgkmcnt({7 - r//4})")
            k(f"v_pk_fma_f32 {p2(vAcc+r)}, {p2(vE+r)}, {p2(vab)}, {p2(vAcc+r)} op_sel:[0,1,0] op_sel_hi:[1,1,1]")
        for r in range(0, 32, 2):
            k(f"v_pk_mul_f32 {p2(vTm+r)}, {p2(vAcc+r)}, {p2(vAcc+r)}")
        for r in range(0, 32, 2):
            k(f"v_pk_fma_f32 {p2(vTm+r)}, {p2(vTm+r)}, {p2(vcc_)}, {p2(vcc_)} op_sel:[0,1,0] op_sel_hi:[1,1,0]")
        for r in range(0, 32, 2):
            k(f"v_pk_mul_f32 {p2(vTm+r)}, {p2(vTm+r)}, {p2(vAcc+r)}")
        for r in range(32): k(f"v_exp_f32 v{vTm+r}, v{vTm+r}")
        for r in range(0, 32, 2):
            k(f"v_pk_add_f32 {p2(vTm+r)}, {p2(vTm+r)}, 1.0 op_sel_hi:[1,0]")
        for r in range(32): k(f"v_rcp_f32 v{vTm+r}, v{vTm+r}")
        for r in range(0, 32, 2):
            k(f"v_pk_mul_f32 {p2(vAcc+r)}, {p2(vAcc+r)}, {p2(vTm+r)}")
        k(f"s_cmp_eq_u32 s{sHf}, 0")
        k(f"s_cbranch_scc1 {k.L('z2')}")
        k(f"s_mul_i32 s{T0}, s{sTT}, {56*1024}")
        k(f"s_lshl_b32 s{T1}, s{sNb}, 12")
        k(f"s_add_u32 s{T0}, s{T0}, s{T1}")
        k(f"s_add_u32 s{T0}, s{T0}, {WS_Z1F:#x}")
        for q in range(4):
            for r in range(4):
                k(f"v_cvt_pk_bf16_f32 v{vP+4*q+r}, v{vAcc+8*q+2*r}, v{vAcc+8*q+2*r+1}")
            k(f"buffer_store_dwordx4 {vr(vP+4*q,4)}, v{vL16}, {WSr}, s{T0} offen offset:{q*1024}{SC}")
        if last: k(f"s_endpgm")
        else:
            k(f"s_add_u32 s{sFl}, s{sFl}, {FL4B}")
            k(f"s_mov_b32 s{T1}, 1")
            k(f"s_branch {k.L('flag')}")
        k.label("z2")
        vS2 = vHS+4; vQ2 = vHS+6
        k(f"v_pk_add_f32 {p2(vS2)}, {p2(vAcc)}, {p2(vAcc+2)}")
        k(f"v_pk_mul_f32 {p2(vQ2)}, {p2(vAcc)}, {p2(vAcc)}")
        k(f"v_pk_fma_f32 {p2(vQ2)}, {p2(vAcc+2)}, {p2(vAcc+2)}, {p2(vQ2)}")
        for r in range(4, 32, 2):
            k(f"v_pk_add_f32 {p2(vS2)}, {p2(vS2)}, {p2(vAcc+r)}")
            k(f"v_pk_fma_f32 {p2(vQ2)}, {p2(vAcc+r)}, {p2(vAcc+r)}, {p2(vQ2)}")
        vGr = vCs
        k(f"v_add_f32 v{vGr}, v{vS2}, v{vS2+1}")
        k(f"v_add_f32 v{vGr+1}, v{vQ2}, v{vQ2+1}")
        k(f"v_mov_b32 v{vGr+2}, s{k.sNon}")
        k(f"v_mov_b32 v{vGr+3}, s{k.sNon+1}")
        half_combine(k, [vGr, vGr+1], [vT0, vT1])
        k(f"s_mul_i32 s{sPs}, s{sTT}, {14*512}")
        k(f"s_add_u32 s{sPs}, s{sPs}, {WS_PS:#x}")
        k(f"s_lshl_b32 s{T0}, s{sNb}, 9")
        k(f"s_add_u32 s{T0}, s{T0}, s{sPs}")
        k(f"s_mov_b32 exec_hi, 0")
        k(f"buffer_store_dwordx4 {vr(vGr,4)}, v{vL16}, {WSr}, s{T0} offen{SCOPE_PL}")
        k(f"s_mov_b32 exec_hi, -1")
        k.stamp("pub")
        vG = vW[0]
        k(f"v_bfe_u32 v{vT2}, v{vLane}, 2, 3")
        k(f"v_lshlrev_b32 v{vT2}, 8, v{vT2}")
        k(f"v_lshrrev_b32 v{vT1}, 5, v{vLane}")
        k(f"v_lshl_add_u32 v{vT2}, v{vT1}, 6, v{vT2}")
        k(f"v_and_b32 v{vT1}, 3, v{vLane}")
        k(f"v_lshl_add_u32 v{vT2}, v{vT1}, 4, v{vT2}")
        k(f"s_lshl_b32 s{T0}, s{sFl}, 12")
        k(f"s_add_u32 s{T0}, s{T0}, {WS_Z2I:#x}")
        k(f"s_mov_b32 s{k.sCnt}, 100000")
        k(f"s_add_u32 s{sC0}, s{sPs}, 4096")
        sM = k.s(14, 2)
        for i in range(7): k(f"s_mov_b64 {sr(sM+2*i,2)}, -1")
        k.label("spoll")
        k(f"s_sleep {env('PS_SLEEP', 4)}")
        for i in range(7):
            k(f"s_mov_b64 exec, {sr(sM+2*i,2)}")
            k(f"s_cbranch_execz {k.L(f'sk{i}')}")
            k(f"buffer_load_dwordx4 {vr(vG+4*i,4)}, v{vL16}, {WSr}, s{sPs if i < 4 else sC0} offen offset:{(i%4)*1024}{SCOPE_PL}")
            k.label(f"sk{i}")
        k(f"s_mov_b64 exec, -1")
        k(f"s_sub_u32 s{k.sCnt}, s{k.sCnt}, 1")
        k(f"s_cbranch_scc1 {k.L('spolldone')}")
        k(f"s_waitcnt vmcnt(0)")
        for i in range(7):
            k(f"v_cmp_ne_u64 {sr(sM+2*i,2)}, {sr(k.sNon,2)}, {vr(vG+4*i+2,2)}")
        k(f"s_or_b64 vcc, {sr(sM,2)}, {sr(sM+2,2)}")
        for i in range(2, 7):
            k(f"s_or_b64 vcc, vcc, {sr(sM+2*i,2)}")
        k(f"s_cbranch_scc1 {k.L('spoll')}")
        k.label("spolldone")
        k(f"s_waitcnt vmcnt(0)")
        k.stamp("got")
        for i in range(1, 7):
            k(f"v_pk_add_f32 {p2(vG)}, {p2(vG)}, {p2(vG+4*i)}")
        half_combine(k, [vG, vG+1], [vT0, vT1])
        k(f"v_mul_f32 v{vG}, {f32(1/896):#x}, v{vG}")
        k(f"v_mul_f32 v{vG+1}, {f32(1/896):#x}, v{vG+1}")
        k(f"v_fma_f32 v{vG+1}, -v{vG}, v{vG}, v{vG+1}")
        k(f"v_max_f32 v{vG+1}, 0, v{vG+1}")
        k(f"v_add_f32 v{vG+1}, {f32(1e-5):#x}, v{vG+1}")
        k(f"v_rsq_f32 v{vG+2}, v{vG+1}")
        k(f"s_nop 0")
        k(f"v_mul_f32 v{vG}, v{vG}, v{vG+2}")
        k(f"v_mov_b32 v{vG+3}, v{vG+2}")
        k(f"v_sub_f32 v{vG}, 0, v{vG}")
        k(f"v_mov_b32 v{vG+1}, v{vG}")
        for q in range(4):
            for r in range(0, 8, 2):
                k(f"v_pk_fma_f32 {p2(vAcc+8*q+r)}, {p2(vAcc+8*q+r)}, {p2(vG+2)}, {p2(vG)}")
            for r in range(4):
                k(f"v_cvt_pk_bf16_f32 v{vP+4*q+r}, v{vAcc+8*q+2*r}, v{vAcc+8*q+2*r+1}")
            k(f"buffer_store_dwordx4 {vr(vP+4*q,4)}, v{vT2}, {WSr}, s{T0} offen offset:{(q>>1)*2048 + (q&1)*128}{SC}")
        k.stamp("stored")
        if not last:
            k(f"s_add_u32 s{sFl}, s{sFl}, {FL4}")
            k(f"s_mov_b32 s{T1}, {(1 << R4) - 1}")
            k.label("flag")
            set_flag(k, sFl, vT0, vSum, sExec=T1)
            k.stamp("flag")
        k.label("end")
        k.reset(m)

    def l_setup(self, k):
        T0, T1 = k.sT0, k.sT1; sLw = k.sLw
        k.pfx = "p4l_"
        self.roles(k)
        self.sSW = k.s(4, 4); self.sAo = k.s(); self.sWo = k.s(); self.sM = k.s(); self.sRot = k.s()
        self.vWd = k.v(4); vT = k.v(2)
        k(f"s_lshl_b32 s{self.sRot}, s{T1}, 2")
        k(f"s_add_u32 s{self.sRot}, s{self.sRot}, s{self.sNb}")
        k(f"s_and_b32 s{self.sRot}, s{self.sRot}, {7 if env('P4_ROT', 1) else 0}")
        k(f"s_lshl_b32 s{T0}, s{self.sRb}, 2")
        k(f"s_add_u32 s{T0}, s{T0}, s{sLw}")
        k(f"s_lshl_b32 s{self.sAo}, s{T0}, 15")
        k(f"s_add_u32 s{self.sAo}, s{self.sAo}, {WS_HF:#x}")
        k(f"v_lshrrev_b32 v{vT}, 2, v{k.vLane}")
        k(f"v_mul_u32_u24 v{vT}, 3584, v{vT}")
        k(f"v_and_b32 v{vT+1}, 3, v{k.vLane}")
        k(f"v_lshl_add_u32 v{vT}, v{vT+1}, 4, v{vT}")
        for c in range(4):
            g = (1792 if c < 2 else 0) + (c & 1)*64
            k(f"v_add_u32 v{self.vWd+c}, {g - c*1024 + 4096}, v{vT}")
        k(f"s_mul_i32 s{self.sWo}, s{sLw}, {16*3584}")
        k(f"s_lshl_b32 s{T0}, s{self.sNb}, 7")
        k(f"s_add_u32 s{self.sWo}, s{self.sWo}, s{T0}")
        k(f"s_lshl_b32 s{self.sM}, s{sLw}, 12")
    def l_srd(self, k): k.srd(self.sSW, k.ptr(KA_WIN), D*F*2, bias=4096)
    def stage_regs(self, k):
        self.l_setup(k); self.l_srd(k)
        k(f"s_cmp_ge_u32 s{k.sJ}, 28")
        k(f"s_cbranch_scc1 {k.L('skipstage')}")
        T0 = k.sT0
        for u in range(8):
            k(f"s_add_u32 s{T0}, s{self.sRot}, {u}")
            k(f"s_and_b32 s{T0}, s{T0}, 7")
            k(f"s_mul_i32 s{T0}, s{T0}, {64*3584}")
            k(f"s_add_u32 s{T0}, s{T0}, s{self.sWo}")
            for c in range(4):
                k(f"buffer_load_dwordx4 {vr(k.vStage+16*u+4*c,4)}, v{self.vWd+c}, {sr(self.sSW,4)}, s{T0} offen offset:{c*1024}")
        k.label("skipstage")
    def issue(self, k, kind, u, a, LD):
        T0 = k.sT0
        if kind == 'W' and self.staged:
            for c in range(4):
                ad = self.Wn.at(a + c*1024).split(" ")
                k(f"ds_write_b128 {ad[0]}, {vr(k.vStage+16*u+4*c,4)} {ad[1]}")
            return
        k(f"s_add_u32 s{T0}, s{self.sRot}, {u}")
        k(f"s_and_b32 s{T0}, s{T0}, 7")
        k(f"s_add_u32 m0, s{self.sM}, {a}")
        if kind == 'W':
            k(f"s_mul_i32 s{T0}, s{T0}, {64*3584}")
            k(f"s_add_u32 s{T0}, s{T0}, s{self.sWo}")
            for c in range(4):
                k(f"buffer_load_dwordx4 v{self.vWd+c}, {sr(self.sSW,4)}, s{T0} offen offset:{c*1024} lds")
        else:
            k(f"s_lshl_b32 s{T0}, s{T0}, 12")
            k(f"s_add_u32 s{T0}, s{T0}, s{self.sAo}")
            for i in range(4):
                k(f"buffer_load_dwordx4 v{k.vL16}, {sr(k.sWS,4)}, s{T0} offen offset:{i*1024}{LD} lds")
    def l_pre(self, k):
        k.reset(k.lbase)
        self.plan(False)
        self.l_setup(k); self.l_srd(k)
        if self.staged:
            vD = k.v()
            k(f"v_add_u32 v{vD}, s{self.sM}, v{k.vL16}")
            self.Wn = Win(k, vD, [0, 1, 2])
        k(f"s_cmp_ge_u32 s{k.sJ}, 28")
        k(f"s_cbranch_scc1 {k.L('skippre')}")
        for kd, u, a in self.S.pre: self.issue(k, kd, u, a, "")
        if self.staged: k(f"s_waitcnt lgkmcnt(0)")
        k.label("skippre")
    p5 = None; p6 = None
    def l(self, k, first, last, next_pre):
        LD = "" if first else SCOPE_LD
        if first:
            self.plan(True)
            self.l_setup(k); k.ptrs_ready(); self.l_srd(k)
        st6 = self.p6.stage_regs(k) if self.p6 else []
        if self.p5: self.p5.l_setup(k); self.p5.l_srd(k); self.p5.early = 0
        k.pfx = "p4l_"
        k(f"s_cmp_ge_u32 s{k.sJ}, 28")
        k(f"s_cbranch_scc1 {k.L('idle')}")
        if not first: k(f"s_barrier")
        dumped = set(u for _, u, _ in self.S.pre)
        todo = list(range(len(st6)))
        def iss(kd, u, a):
            self.issue(k, kd, u, a, LD)
            if kd == 'W': dumped.add(u)
        safe = set(dumped)
        def extra(s, free, remaining):
            n = 0
            for _ in range(env("P4_X6", 2)):
                if todo and (not self.staged or todo[0]//2 in safe):
                    st6[todo.pop(0)](); n += 2
            safe.update(dumped)
            if self.p5 and remaining == 0:
                while self.p5.early < self.p5.NW and (self.p5.early//2)*16384 in free:
                    self.p5.iw(k); self.p5.early += 1; n += 2
            return n
        run_sched(k, self.S, iss, {'W': 0 if self.staged else 4, 'A': 4}, extra)
        for v in todo: st6[v]()
        if not last: k(f"s_barrier")
        if st6:
            k(f"s_branch {k.L('end')}")
        k.label("idle")
        for f in st6: f()
        k.label("end")
        if not last: next_pre(k)
```

```python
from base import *

class P5:
    N = 32
    NW = 8; NZ = 6
    ZB = 65536
    def roles(self, k):
        self.sTb = k.s(); self.sFb = k.s()
        k(f"s_lshl_b32 s{k.sT0}, s{k.sX}, 2")
        k(f"s_and_b32 s{k.sT1}, s{k.sJ}, 3")
        k(f"s_add_u32 s{self.sTb}, s{k.sT0}, s{k.sT1}")
        k(f"s_lshr_b32 s{self.sFb}, s{k.sJ}, 2")

    def c(self, k, first, last):
        k.pfx = "p5c_"; m = k.mark()
        N = self.N; ZB = self.ZB
        SC = "" if last else SCOPE_ST
        LD = "" if first else SCOPE_LD
        T0, T1 = k.sT0, k.sT1; WSr = sr(k.sWS, 4); vL16 = k.vL16; vLane = k.vLane
        if first and not last:
            k.ptrs_ready()
            vN = k.v(4, 2)
            nonce_publish(k, vN); nonce_fetch(k, vN)
        k(f"s_cmp_ge_u32 s{k.sJ}, 28")
        k(f"s_cbranch_scc1 {k.L('end')}")
        self.roles(k)
        sTb, sFb = self.sTb, self.sFb
        sTh = k.s(); sFt = k.s(); sUo = k.s(); sRw = k.s(); sRz = k.s(); sBo = k.s(); sFl = k.s(); sSB = k.s(4, 4)
        vT0 = k.v(4, 2); vT1 = vT0+1; vT2 = k.v()
        vWa0 = k.v(4); vZa0 = k.v(); vWa = k.v(4); vZa = k.v(); vBias = k.v()
        vZ1 = k.v(8, 4)
        vWf = [k.v(16, 4), k.v(16, 4)]
        vZf = [k.v(16, 4), k.v(16, 4)]
        vAcc = k.v(16, 4)
        vE = k.v(16, 4)
        if not first:
            k(f"s_cmp_lg_u32 s{k.sWave}, {PW}")
            k(f"s_cbranch_scc1 {k.L('nopoll')}")
            k(f"s_lshl_b32 s{T0}, s{sFb}, 7")
            k(f"s_lshl_b32 s{T1}, s{sTb}, 2")
            k(f"s_add_u32 s{T1}, s{T1}, s{T0}")
            k(f"s_add_u32 s{T1}, s{T1}, {FL4B}")
            poll(k, "poll1", T1, vT2, vT0, n=4)
            k(f"s_and_b32 s{T1}, s{k.sX}, {R4-1}")
            k(f"s_lshl_b32 s{T1}, s{T1}, 10")
            k(f"s_add_u32 s{T0}, s{T0}, s{T1}")
            k(f"s_add_u32 s{T0}, s{T0}, {FL4}")
            poll(k, "poll", T0, vT2, vT0, n=128)
            k(f"s_barrier")
            k.label("nopoll")
        k(f"s_and_b32 s{sTh}, s{k.sWave}, 1")
        k(f"s_lshr_b32 s{sFt}, s{k.sWave}, 1")
        k(f"s_lshl_b32 s{T0}, s{sTb}, 1")
        k(f"s_add_u32 s{T0}, s{T0}, s{sTh}")
        k(f"s_lshl_b32 s{sBo}, s{T0}, 6")
        k(f"s_mul_i32 s{sUo}, s{T0}, 28")
        k(f"s_lshl_b32 s{T1}, s{sFb}, 2")
        k(f"s_add_u32 s{T1}, s{T1}, s{sFt}")
        k(f"s_add_u32 s{sUo}, s{sUo}, s{T1}")
        k(f"s_lshl_b32 s{sUo}, s{sUo}, 11")
        k(f"s_mul_i32 s{sFl}, s{sTh}, 28")
        k(f"s_add_u32 s{sFl}, s{sFl}, s{T1}")
        k(f"s_lshl_b32 s{T1}, s{sTb}, 6")
        k(f"s_add_u32 s{sFl}, s{sFl}, s{T1}")
        k(f"s_add_u32 s{sFl}, s{sFl}, {FL5}")
        k(f"v_and_b32 v{vT2}, 31, v{vLane}")
        k(f"v_lshlrev_b32 v{vBias}, 1, v{vT2}")
        k(f"v_bfe_u32 v{vT0}, v{vLane}, 1, 3")
        k(f"v_lshrrev_b32 v{vT1}, 5, v{vLane}")
        k(f"v_xor_b32 v{vT0}, v{vT0}, v{vT1}")
        k(f"v_lshlrev_b32 v{vT2}, 7, v{vT2}")
        k(f"s_lshl_b32 s{T0}, s{sTh}, 12")
        k(f"v_add_u32 v{vT2}, s{T0}, v{vT2}")
        for i in range(4):
            k(f"v_xor_b32 v{vWa0+i}, {2*i}, v{vT0}")
            k(f"v_lshl_add_u32 v{vWa0+i}, v{vWa0+i}, 4, v{vT2}")
        k(f"v_lshlrev_b32 v{vZa0}, 9, v{vT1}")
        k(f"v_bfe_u32 v{vT0}, v{vLane}, 4, 1")
        k(f"v_lshl_add_u32 v{vZa0}, v{vT0}, 7, v{vZa0}")
        k(f"v_and_b32 v{vT0}, 1, v{vLane}")
        k(f"v_lshl_add_u32 v{vZa0}, v{vT0}, 6, v{vZa0}")
        k(f"v_bfe_u32 v{vT0}, v{vLane}, 2, 2")
        k(f"v_lshl_add_u32 v{vZa0}, v{vT0}, 4, v{vZa0}")
        k(f"v_bfe_u32 v{vT0}, v{vLane}, 1, 1")
        k(f"v_lshl_add_u32 v{vZa0}, v{vT0}, 3, v{vZa0}")
        k(f"s_lshl_b32 s{T0}, s{sFt}, 11")
        k(f"s_add_u32 s{T0}, s{T0}, {ZB}")
        k(f"v_add_u32 v{vZa0}, s{T0}, v{vZa0}")
        for i in range(16): k(f"v_mov_b32 v{vAcc+i}, 0")
        k(f"s_mov_b32 s{sRw}, 0"); k(f"s_mov_b32 s{sRz}, 0")
        if first and last: k.ptrs_ready()
        k.srd(sSB, k.ptr(KA_BSP), T*2)
        k(f"buffer_load_ushort v{vBias}, v{vBias}, {sr(sSB,4)}, s{sBo} offen")
        if not first:
            k(f"s_cmp_eq_u32 s{k.sWave}, {PW}")
            k(f"s_cbranch_scc1 {k.L('rdy')}")
            k(f"s_barrier")
            k.label("rdy")
            k.stamp("ready")
        def reads(b):
            l = []
            for ks in range(4):
                off = (ks >> 1)*8192 + (ks & 1)*1024
                l.append(f"ds_read_b128 {vr(vWf[b]+4*ks,4)}, v{vWa+ks}")
                l.append(f"ds_read_b64_tr_b16 {vr(vZf[b]+4*ks,2)}, v{vZa} offset:{off}")
                l.append(f"ds_read_b64_tr_b16 {vr(vZf[b]+4*ks+2,2)}, v{vZa} offset:{off + 256}")
            return l
        def comp(b):
            return [f"v_mfma_f32_32x32x16_bf16 {vr(vAcc,16)}, {vr(vZf[b]+4*ks,4)}, {vr(vWf[b]+4*ks,4)}, {vr(vAcc,16)}" for ks in range(4)]
        def addr():
            return ([f"v_add_u32 v{vWa+i}, s{sRw}, v{vWa0+i}" for i in range(4)] + [f"v_add_u32 v{vZa}, s{sRz}, v{vZa0}",
                    f"s_add_u32 s{sRw}, s{sRw}, 8192", f"s_and_b32 s{sRw}, s{sRw}, {self.NW*8192-1}",
                    f"s_add_u32 s{sRz}, s{sRz}, 16384", f"s_cmp_eq_u32 s{sRz}, {self.NZ*16384}", f"s_cselect_b32 s{sRz}, 0, s{sRz}"])
        def stage(b, firsts=False, extra=()):
            k(f"s_barrier")
            if firsts: k.stamp("data")
            interleave(k, [] if firsts else comp(1-b), reads(b), addr() + list(extra), per=4)
            k(f"s_waitcnt lgkmcnt(0)")
        k.many(addr())
        stage(0, firsts=True)
        k(f"s_mov_b32 s{k.sCnt}, {(N-2)//2 - 2}")
        k.label("loop")
        stage(1)
        stage(0, extra=[f"s_sub_u32 s{k.sCnt}, s{k.sCnt}, 1", f"s_cmp_lg_u32 s{k.sCnt}, 0"])
        k(f"s_cbranch_scc1 {k.L('loop')}")
        k(f"s_add_u32 s{T0}, s{sUo}, {WS_Z1F:#x}")
        for i in range(2):
            k(f"buffer_load_dwordx4 {vr(vZ1+4*i,4)}, v{vL16}, {WSr}, s{T0} offen offset:{i*1024}{LD}")
        stage(1); stage(0); stage(1); stage(0)
        stage(1)
        k.many(comp(1))
        if not last: k(f"s_barrier")
        k.stamp("loopend")
        k(f"s_waitcnt vmcnt(0)")
        k(f"v_lshlrev_b32 v{vBias}, 16, v{vBias}")
        k(f"s_add_u32 s{T0}, s{sUo}, {WS_UF:#x}")
        for r in range(8):
            k(f"v_lshlrev_b32 v{vE+2*r}, 16, v{vZ1+r}")
            k(f"v_and_b32 v{vE+2*r+1}, 0xffff0000, v{vZ1+r}")
        for r in range(16):
            k(f"v_add_f32 v{vAcc+r}, v{vAcc+r}, v{vBias}")
            k(f"v_mul_f32 v{vAcc+r}, v{vAcc+r}, v{vE+r}")
        for r in range(8):
            k(f"v_cvt_pk_bf16_f32 v{vZ1+r}, v{vAcc+2*r}, v{vAcc+2*r+1}")
        for m_ in range(2):
            k(f"buffer_store_dwordx4 {vr(vZ1+4*m_,4)}, v{vL16}, {WSr}, s{T0} offen offset:{m_*1024}{SC}")
        k.stamp("stored")
        if not last:
            set_flag(k, sFl, vT2, vT0)
            k.stamp("flag")
        k.label("end")
        k.reset(m)

    def l_setup(self, k):
        T0, T1 = k.sT0, k.sT1; sLw = k.sLw
        k.pfx = "p5l_"
        self.roles(k)
        self.sSW = k.s(4, 4); self.sWo = k.s(); self.sZo = k.s(); self.sWm = k.s(); self.sZm = k.s()
        self.vWd = k.v(2); vT = k.v(2)
        k(f"v_lshrrev_b32 v{vT}, 4, v{k.vLane}")
        k(f"v_and_b32 v{vT+1}, 7, v{k.vLane}")
        k(f"v_xor_b32 v{vT+1}, v{vT+1}, v{vT}")
        k(f"v_lshrrev_b32 v{vT}, 3, v{k.vLane}")
        k(f"v_lshlrev_b32 v{vT}, 12, v{vT}")
        k(f"v_lshl_add_u32 v{self.vWd}, v{vT+1}, 4, v{vT}")
        k(f"v_xor_b32 v{self.vWd+1}, 64, v{self.vWd}")
        k(f"v_add_u32 v{self.vWd+1}, {8*4096 - 1024}, v{self.vWd+1}")
        k(f"s_lshl_b32 s{self.sWo}, s{self.sTb}, 18")
        k(f"s_lshl_b32 s{T0}, s{sLw}, 16")
        k(f"s_add_u32 s{self.sWo}, s{self.sWo}, s{T0}")
        k(f"s_lshl_b32 s{self.sZo}, s{self.sFb}, 19")
        k(f"s_lshl_b32 s{T0}, s{sLw}, 12")
        k(f"s_add_u32 s{self.sZo}, s{self.sZo}, s{T0}")
        k(f"s_add_u32 s{self.sZo}, s{self.sZo}, {WS_Z2I:#x}")
        k(f"s_lshl_b32 s{self.sWm}, s{sLw}, 11")
        k(f"s_add_u32 s{self.sZm}, s{T0}, {self.ZB}")
        self.sZend = k.s()
        k(f"s_add_u32 s{self.sZend}, s{self.sZm}, {self.NZ*16384}")
    def l_srd(self, k): k.srd(self.sSW, k.ptr(KA_WSP), T*T*2)
    def iw(self, k):
        k(f"s_mov_b32 m0, s{self.sWm}")
        k(f"s_add_u32 s{self.sWm}, s{self.sWm}, 8192")
        k(f"buffer_load_dwordx4 v{self.vWd}, {sr(self.sSW,4)}, s{self.sWo} offen lds")
        k(f"buffer_load_dwordx4 v{self.vWd+1}, {sr(self.sSW,4)}, s{self.sWo} offen offset:1024 lds")
        k(f"s_and_b32 s{self.sWm}, s{self.sWm}, {self.NW*8192-1}")
        k(f"s_add_u32 s{self.sWo}, s{self.sWo}, 128")
    def iz(self, k, LD):
        k(f"s_mov_b32 m0, s{self.sZm}")
        k(f"s_add_u32 s{self.sZm}, s{self.sZm}, 16384")
        for i in range(4):
            k(f"buffer_load_dwordx4 v{k.vL16}, {sr(k.sWS,4)}, s{self.sZo} offen offset:{i*1024}{LD} lds")
        k(f"s_add_u32 s{self.sZo}, s{self.sZo}, 16384")
        k(f"s_sub_u32 s{k.sT0}, s{self.sZm}, {self.NZ*16384}")
        k(f"s_cmp_eq_u32 s{self.sZm}, s{self.sZend}")
        k(f"s_cselect_b32 s{self.sZm}, s{k.sT0}, s{self.sZm}")
    early = None
    def l_pre(self, k):
        if self.early is None:
            k.reset(k.lbase)
            self.l_setup(k); self.l_srd(k)
            self.early = 0
        k.pfx = "p5l_"
        k(f"s_cmp_ge_u32 s{k.sJ}, 28")
        k(f"s_cbranch_scc1 {k.L('skippre')}")
        self.npre = max(self.early, env('P5_PRE', 8))
        for _ in range(self.npre - self.early): self.iw(k)
        k.label("skippre")
    def l(self, k, first, last, next_pre):
        LD = "" if first else SCOPE_LD
        N, NW, NZ = self.N, self.NW, self.NZ
        if first:
            self.l_setup(k); k.ptrs_ready(); self.l_srd(k)
        k.pfx = "p5l_"
        k(f"s_cmp_ge_u32 s{k.sJ}, 28")
        k(f"s_cbranch_scc1 {k.L('end')}")
        if not first: k(f"s_barrier")
        issued = []; nw = 0 if first else self.npre; nz = 0
        def W():
            nonlocal nw; self.iw(k); issued.append(('W', nw)); nw += 1
        def Z():
            nonlocal nz; self.iz(k, LD); issued.append(('Z', nz)); nz += 1
        def waitfor(s):
            lastq = max(i for i, (kd, u) in enumerate(issued) if u <= s)
            return sum(2 if kd == 'W' else 4 for kd, u in issued[lastq+1:])
        def fill(s, budget):
            n = 0
            while n < budget:
                cw = nw < min(N, s + NW); cz = nz < min(N, s + NZ)
                if cw and (nw <= nz or not cz): W()
                elif cz: Z()
                else: break
                n += 1
        if nw == 0: W(); Z(); W(); Z()
        else: Z(); Z(); Z()
        s = 0
        while not (nw == s + NW - 1 and nz == s + NZ - 1 and [x[0] for x in issued[-2*(NZ-1):]] == ['Z', 'W']*(NZ-1)):
            k(f"s_waitcnt vmcnt({waitfor(s)})"); k(f"s_barrier")
            fill(s, 4); s += 1
            assert s < 20
        it = N - nw
        wv = waitfor(s)
        k(f"s_mov_b32 s{k.sCnt}, {it}")
        k.label("loop")
        k(f"s_waitcnt vmcnt({wv})"); k(f"s_barrier")
        self.iz(k, LD); self.iw(k)
        k(f"s_sub_u32 s{k.sCnt}, s{k.sCnt}, 1")
        k(f"s_cmp_lg_u32 s{k.sCnt}, 0")
        k(f"s_cbranch_scc1 {k.L('loop')}")
        for _ in range(it):
            assert waitfor(s) == wv
            issued.append(('Z', nz)); nz += 1; issued.append(('W', nw)); nw += 1; s += 1
        while s < N:
            k(f"s_waitcnt vmcnt({waitfor(s)})"); k(f"s_barrier")
            fill(s, 4); s += 1
        if not last: k(f"s_barrier")
        k.label("end")
        if not last: next_pre(k)
```

```python
class Sched:
    def __init__(self, N, slots, PW, nW, nA, look=3, wreg=False, group=1, avoid=None, look0=None):
        self.N = N; self.addr = {}; self.group = group
        free = list(slots)
        self.pre = []
        for u in range(PW):
            a = free.pop(0); self.addr[('W', u)] = a; self.pre.append(('W', u, a))
        order = []
        for u in range(N):
            if u >= PW: order.append(('W', u))
            order.append(('A', u))
        cnt = {'W': 0 if wreg else nW, 'A': nA}
        ev = []; issued = []
        def try_issue(need_unit, look=look):
            while order and free:
                kd, u = order[0]
                ahead = sum(1 for k2, u2 in issued if u2 > need_unit and cnt[k2])
                if u > need_unit and cnt[kd] and ahead >= look: break
                cand = [a for a in free if not (avoid and avoid(u, a))]
                if not cand: break
                order.pop(0)
                a = cand[0]; free.remove(a); self.addr[(kd, u)] = a
                ev.append(('issue', kd, u, a)); issued.append((kd, u))
        G = group; NB = N//G
        try_issue(G-1, look if look0 is None else look0)
        self.freed_at = {}
        for s in range(NB):
            hi = (s+1)*G - 1
            for u in range(hi+1): assert ('A', u) in self.addr and ('W', u) in self.addr, (s, u)
            last = max([i for i, (kd, u) in enumerate(issued) if u <= hi and cnt[kd]])
            w = sum(cnt[kd] for kd, u in issued[last+1:])
            assert w <= 40
            ev.append(('wait', w)); ev.append(('bar', s))
            if s >= 1:
                for u in range((s-1)*G, s*G):
                    free.append(self.addr[('W', u)]); free.append(self.addr[('A', u)])
            try_issue(hi + G)
            ev.append(('post', s, sorted(free), len(order)))
        assert not order
        self.ev = ev; self.NB = NB

def run_sched(k, S, issue, cnt, extra=None, after_bar=None):
    log = []
    dirty = False
    for e in S.ev:
        if e[0] == 'issue':
            issue(e[1], e[2], e[3])
            if cnt[e[1]]: log.append((e[2], cnt[e[1]]))
            else: dirty = True
        elif e[0] == 'bar':
            hi = (e[1]+1)*S.group - 1
            idx = [i for i, (u, n) in enumerate(log) if u is not None and u <= hi]
            w = sum(n for u, n in log[idx[-1]+1:])
            assert w <= 60, w
            k(f"s_waitcnt vmcnt({w})" + (" lgkmcnt(0)" if dirty else ""))
            dirty = False
            k(f"s_barrier")
            if after_bar: after_bar(e[1])
        elif e[0] == 'post' and extra:
            n = extra(e[1], e[2], e[3])
            if n: log.append((None, n))
```

```python
import sys
from base import *
from p1 import P1
from p2 import P2
from p36 import Proj
from p4 import P4
from p5 import P5
st = env("STAMP", 0) == 1
groups = [[int(c) for c in g] for g in env("GRP", "1,2,3,4,5,6").split(",")]
mk = {1: P1, 2: P2, 3: lambda: Proj(3), 4: P4, 5: P5, 6: lambda: Proj(6)}
NAME = "sequential_preLN__mha_block__mixer_gmlp__prompt_kernel"
ks = []
for gi, g in enumerate(groups):
    k = K(NAME if len(groups) == 1 else "ph" + "".join(map(str, g)) + "_kernel", stamps=st, kidx=gi)
    ph = [mk[p]() for p in g]
    d = dict(zip(g, ph))
    if env("REGSTAGE", 1):
        if 2 in d and 4 in d: d[2].p4 = d[4]; d[4].staged = True
        if 4 in d and 6 in d and env('ST6', 1): d[4].p6 = d[6]
        if 4 in d and 5 in d and env('EARLY5', 1): d[4].p5 = d[5]
    k(f"s_cmp_ge_u32 s2, 256")
    k(f"s_cbranch_scc1 L_{k.name}_exit")
    k.prologue()
    k.sLw = k.s()
    k(f"s_sub_u32 s{k.sLw}, s{k.sWave}, 8")
    k(f"s_cbranch_scc0 L_{k.name}_loader")
    k.lbase = k.mark()
    for i, p in enumerate(ph):
        p.c(k, i == 0, i == len(ph)-1)
    k.pfx = ""
    k.stamp_flush()
    k.label("exit")
    k("s_endpgm")
    k.label("loader")
    k("s_setprio 3")
    k.reset(k.lbase)
    k.vDump = k.v()
    k.vStage = k.v(128, 4)
    k.lbase = k.mark()
    for i, p in enumerate(ph):
        def pre(k, q=ph[i+1] if i+1 < len(ph) else None):
            k.stamp("pre0"); q.l_pre(k); k.stamp("pre1")
        p.l(k, i == 0, i == len(ph)-1, pre)
    k.pfx = "l_"
    k.stamp_flush()
    k("s_endpgm")
    k.pfx = ""
    k.label("codeend")
    ks.append(k)
emit(ks, sys.argv[1] if len(sys.argv) > 1 else "cur.s")
for k in ks: print(k.name, "vgpr", k.vmax, "sgpr", k.smax, "lines", len(k.lines))
```

```python
import os, struct
T = 2048; D = 512; H = 32; DH = 16; F = 1792; FH = 896
KA_X, KA_WQKV, KA_WO, KA_BX, KA_WIN, KA_WSP, KA_BSP, KA_WOUT, KA_OUT, KA_DBG, KA_WS = [8*i for i in range(11)]
WS_QF  = 0x000000
WS_KVF = 0x200000
WS_OF  = 0x600000
WS_HF  = 0x800000
WS_Z1F = 0xA00000
WS_Z2I = 0xE00000
WS_UF  = 0x1200000
WS_PS  = 0x1600000
WS_HS  = 0x1680000
WS_FL  = 0x1700000
FS = 128; FSH = 7
NFL = 24576
R3 = 2; R4 = 8
FL2 = 0
FL3 = FL2 + 2048
FL4 = FL3 + R3*1024
FL4B = FL4 + R4*1024
FL5 = FL4B + 1024
R1 = 8
FL1 = FL5 + 2048
assert FL1 + R1*1024 <= NFL
WS_END = 0x1A00000
WS_STAMP = 0x1C00000
LDS_MAX = 163840

def f32(x): return struct.unpack('<I', struct.pack('<f', x))[0]
def vr(a, n=1): return f"v{a}" if n == 1 else f"v[{a}:{a+n-1}]"
def sr(a, n=1): return f"s{a}" if n == 1 else f"s[{a}:{a+n-1}]"
def env(n, d): return type(d)(os.environ.get(n, d))

SCOPE_ST = {0: "", 1: " sc1", 2: " sc0 sc1"}[env("SC_ST", 1)]
SCOPE_LD = {0: "", 1: " sc1", 2: " sc0 sc1"}[env("SC_LD", 1)]
SCOPE_PL = {1: " sc1", 2: " sc0 sc1"}[env("SC_PL", 1)]
SLEEP = env("POLL_SLEEP", 2)
PW = env('POLL_WAVE', 0)
THR = env("PRE_THR", 0)

class K:
    def __init__(self, name, stamps=False, kidx=0):
        self.name = name; self.grid = 256; self.block = 768; self.lds = LDS_MAX
        self.lines = []; self.vnext = 1; self.snext = 3; self.vmax = 1; self.smax = 3
        self.stamps = stamps; self.kidx = kidx; self.pfx = ""; self.nst = 0; self.stnames = []
    def __call__(self, s):
        for ln in s.strip("\n").split("\n"): self.lines.append("  " + ln.strip())
    def many(self, l):
        for s in l: self(s)
    def L(self, l): return f"L_{self.name}_{self.pfx}{l}"
    def label(self, l): self.lines.append(f"{self.L(l)}:")
    def v(self, n=1, align=1):
        a = (self.vnext + align - 1)//align*align
        self.vnext = a + n; self.vmax = max(self.vmax, self.vnext); return a
    def s(self, n=1, align=1):
        a = (self.snext + align - 1)//align*align
        self.snext = a + n; self.smax = max(self.smax, self.snext); assert self.snext <= 100; return a
    def mark(self): return (self.vnext, self.snext)
    def reset(self, m): self.vnext, self.snext = m
    def srd(self, s, lo, size, bias=0):
        if bias:
            self(f"s_sub_u32 s{s}, s{lo}, {bias}")
            self(f"s_subb_u32 s{s+1}, s{lo+1}, 0")
            self(f"s_and_b32 s{s+1}, s{s+1}, 0xffff")
        else:
            self(f"s_mov_b32 s{s}, s{lo}")
            self(f"s_and_b32 s{s+1}, s{lo+1}, 0xffff")
        self(f"s_mov_b32 s{s+2}, {size+bias:#x}")
        self(f"s_mov_b32 s{s+3}, 0x20000")
    def prologue(self):
        k = self
        k.sIn = k.s(16, 4)
        k.sP2 = k.s(4, 4)
        k.sWSp = k.s(2, 2)
        k.sWS = k.s(4, 4)
        k.sT0 = k.s(2, 2); k.sT1 = k.sT0 + 1; k.sWave = k.s(); k.sX = k.s(); k.sJ = k.s(); k.sCnt = k.s()
        k.sNon = k.s(2, 2)
        k.vLane = k.v(); k.vL16 = k.v()
        if k.stamps:
            k.sSt = k.s(2, 2); k.vSt = k.v()
            k(f"s_memrealtime s[{k.sSt}:{k.sSt+1}]")
            k(f"v_mov_b32 v{k.vSt}, 0")
            k(f"s_waitcnt lgkmcnt(0)")
            k(f"v_writelane_b32 v{k.vSt}, s{k.sSt}, 62")
            k.stamp("start")
        k(f"s_load_dwordx2 {sr(k.sWSp,2)}, s[0:1], {KA_WS}")
        k(f"s_load_dwordx16 {sr(k.sIn,16)}, s[0:1], 0")
        k(f"s_load_dwordx4 {sr(k.sP2,4)}, s[0:1], {KA_OUT}")
        k(f"v_lshrrev_b32 v{k.vL16}, 6, v0")
        k(f"v_and_b32 v{k.vLane}, 63, v0")
        k(f"v_readfirstlane_b32 s{k.sWave}, v{k.vL16}")
        k(f"v_lshlrev_b32 v{k.vL16}, 4, v{k.vLane}")
        k(f"s_and_b32 s{k.sX}, s2, 7")
        k(f"s_lshr_b32 s{k.sJ}, s2, 3")
    def ptrs_ready(self):
        self(f"s_waitcnt lgkmcnt(0)")
        self.srd(self.sWS, self.sWSp, WS_END)
    def ptr(self, ka):
        return self.sIn + ka//4 if ka < 64 else self.sP2 + (ka-64)//4
    def stamp(self, name):
        if not self.stamps: return
        if env("STAMP_DBG", -1) >= 0 and self.pfx + name not in ("start p1c_loopend p1c_flag p2c_data p2c_xch p3c_data p3c_flag p4c_data p4c_loopend p4c_flag p5c_data p5c_loopend p6c_data p6c_stored").split(): return
        i = self.nst; self.nst += 1; self.stnames.append(self.pfx + name)
        self(f"{'s_memrealtime' if env('STAMP_RT', 1) else 's_memtime'} s[{self.sSt}:{self.sSt+1}]")
        self(f"s_waitcnt lgkmcnt(0)")
        self(f"v_writelane_b32 v{self.vSt}, s{self.sSt}, {i}")
    def stamp_flush(self):
        if not self.stamps: return
        k = self
        w = env("STAMP_WAVE", 0)
        k(f"s_cmp_lg_u32 s{k.sWave}, {w}")
        k(f"s_cbranch_scc1 {k.L('nostamp')}")
        k(f"s_waitcnt vmcnt(0)")
        k(f"s_memrealtime s[{k.sSt}:{k.sSt+1}]")
        k(f"s_waitcnt lgkmcnt(0)")
        k(f"v_writelane_b32 v{k.vSt}, s{k.sSt}, 63")
        if env("STAMP_DBG", -1) >= 0:
            k(f"s_cmp_lg_u32 s2, {env('STAMP_DBG', -1)}")
            k(f"s_cbranch_scc1 {k.L('nostamp')}")
            k(f"v_readlane_b32 s{k.sT0}, v{k.vSt}, 0")
            k(f"v_writelane_b32 v{k.vSt}, s{k.sSt}, 0")
            k(f"s_nop 1")
            k(f"v_subrev_u32 v{k.vSt}, s{k.sT0}, v{k.vSt}")
            k(f"v_lshlrev_b32 v{k.vL16}, 2, v{k.vLane}")
            k(f"s_mov_b64 exec, 0x3fff")
            k(f"global_store_dword v{k.vL16}, v{k.vSt}, {sr(k.ptr(KA_DBG),2)} offset:8")
            k.label('nostamp')
            return
        k(f"s_add_u32 s{k.sSt}, s{k.sWSp}, {WS_STAMP + k.kidx*65536}")
        k(f"s_addc_u32 s{k.sSt+1}, s{k.sWSp+1}, 0")
        k(f"s_lshl_b32 s{k.sT0}, s2, 8")
        k(f"v_lshl_add_u32 v{k.vL16}, v{k.vLane}, 2, s{k.sT0}")
        k(f"global_store_dword v{k.vL16}, v{k.vSt}, s[{k.sSt}:{k.sSt+1}]")
        k.label('nostamp')
    def header(self):
        if env("PLAIN", 0): return f"; @launch grid=({self.grid},1,1) block=({self.block},1,1) lds={self.lds}"
        return f"; @launch kernel={self.name} grid=({self.grid},1,1) block=({self.block},1,1) lds={self.lds}"
    def text(self):
        nv = (max(self.vmax, 8) + 3)//4*4
        assert nv <= 168, (self.name, nv)
        body = "\n".join(self.lines)
        return f"""
.text
.globl {self.name}
.p2align 8
.type {self.name},@function
{self.name}:
{body}
.section .rodata,"a"
.p2align 6
.amdhsa_kernel {self.name}
  .amdhsa_next_free_vgpr {nv}
  .amdhsa_next_free_sgpr {max(self.smax, 16)}
  .amdhsa_accum_offset {nv}
  .amdhsa_group_segment_fixed_size 0
  .amdhsa_kernarg_size 88
  .amdhsa_user_sgpr_count 2
  .amdhsa_user_sgpr_kernarg_segment_ptr 1
  .amdhsa_system_sgpr_workgroup_id_x 1
.end_amdhsa_kernel
"""

HEADER = """; Kernarg layout for this problem (88 bytes, ptrs only, base s[0:1]):
"""
def emit(kernels, path):
    s = HEADER + "\n".join(k.header() for k in kernels) + "\n"
    s += '.amdgcn_target "amdgcn-amd-amdhsa--gfx950"\n'
    for k in kernels: s += k.text()
    open(path, "w").write(s)
    import json
    json.dump([k.stnames for k in kernels], open(path + ".stn", "w"))

def tr_base(k, vTr, vTmp, natural):
    L = k.vLane
    k(f"v_lshrrev_b32 v{vTmp}, 5, v{L}")
    k(f"v_lshlrev_b32 v{vTr}, {9 if natural else 8}, v{vTmp}")
    k(f"v_bfe_u32 v{vTmp}, v{L}, 2, 2")
    k(f"v_lshl_add_u32 v{vTr}, v{vTmp}, 6, v{vTr}")
    k(f"v_bfe_u32 v{vTmp}, v{L}, 4, 1")
    k(f"v_lshl_add_u32 v{vTr}, v{vTmp}, 5, v{vTr}")
    k(f"v_and_b32 v{vTmp}, 3, v{L}")
    k(f"v_lshl_add_u32 v{vTr}, v{vTmp}, 3, v{vTr}")

def half_combine(k, regs, vT, op="v_add_f32"):
    for r, t in zip(regs, vT): k(f"v_mov_b32 v{t}, v{r}")
    k("s_nop 1")
    for r, t in zip(regs, vT): k(f"v_permlane32_swap_b32 v{t}, v{r}")
    k("s_nop 1")
    for r, t in zip(regs, vT): k(f"{op} v{r}, v{r}, v{t}")

def interleave(k, mm, rd, tail=(), per=4):
    mm = list(mm); rd = list(rd); tail = list(tail)
    while rd or mm:
        if mm:
            g = mm.pop(0)
            if isinstance(g, str): k(g)
            elif callable(g): g()
            else: k.many(g)
        for _ in range(per):
            if rd: k(rd.pop(0))
            elif tail: k(tail.pop(0))
    k.many(tail)

class Win:
    def __init__(self, k, vbase, wins):
        self.regs = {}
        for w in wins:
            if w == 0: self.regs[0] = vbase
            else:
                r = k.v(); k(f"v_add_u32 v{r}, {w*65536}, v{vbase}"); self.regs[w] = r
    def at(self, off):
        w = off >> 16
        return f"v{self.regs[w]} offset:{off & 0xffff}"

def nonce_publish(k, vA):
    m = k.mark(); sD = k.s(4, 4)
    k(f"s_cmp_lg_u32 s2, 0")
    k(f"s_cbranch_scc1 {k.L('nopub')}")
    k(f"s_cmp_lg_u32 s{k.sWave}, 7")
    k(f"s_cbranch_scc1 {k.L('nopub')}")
    k(f"s_memrealtime {sr(k.sNon,2)}")
    k.srd(sD, k.ptr(KA_DBG), 256)
    k(f"s_waitcnt lgkmcnt(0)")
    k(f"s_or_b32 s{k.sNon+1}, s{k.sNon+1}, 0x80000000")
    k(f"v_mov_b32 v{vA}, s{k.sNon}")
    k(f"v_mov_b32 v{vA+1}, s{k.sNon+1}")
    k(f"v_mov_b32 v{vA+2}, 0")
    k(f"s_mov_b64 exec, 1")
    k(f"buffer_store_dwordx2 {vr(vA,2)}, v{vA+2}, {sr(sD,4)}, 0 offen{SCOPE_PL}")
    k(f"s_mov_b64 exec, -1")
    k.label("nopub")
    k.reset(m)

def nonce_fetch(k, vA, name="nf"):
    m = k.mark(); sD = k.s(4, 4)
    k.srd(sD, k.ptr(KA_DBG), 256)
    k(f"v_mov_b32 v{vA+2}, 0")
    k(f"s_mov_b32 s{k.sCnt}, 100000")
    k.label(name)
    k(f"buffer_load_dwordx2 {vr(vA,2)}, v{vA+2}, {sr(sD,4)}, 0 offen{SCOPE_PL}")
    k(f"s_waitcnt vmcnt(0)")
    k(f"v_readfirstlane_b32 s{k.sNon+1}, v{vA+1}")
    k(f"v_readfirstlane_b32 s{k.sNon}, v{vA}")
    k(f"s_sub_u32 s{k.sCnt}, s{k.sCnt}, 1")
    k(f"s_cbranch_scc1 {k.L(name+'x')}")
    k(f"s_cmp_lt_u32 s{k.sNon+1}, 0x80000000")
    k(f"s_cbranch_scc1 {k.L(name)}")
    k.label(name+'x')
    k.reset(m)

def poll(k, name, sIdx, vA, vD, n=64, spin=100000, sleep=None):
    if sleep is None: sleep = SLEEP
    k(f"s_lshl_b32 s{sIdx}, s{sIdx}, {FSH}")
    k(f"s_add_u32 s{sIdx}, s{sIdx}, {WS_FL:#x}")
    if n < 64:
        k(f"v_min_u32 v{vA}, {n-1}, v{k.vLane}")
        k(f"v_lshlrev_b32 v{vA}, {FSH}, v{vA}")
    else:
        k(f"v_lshlrev_b32 v{vA}, {FSH + (n == 128)}, v{k.vLane}")
    k(f"s_mov_b32 s{k.sCnt}, {spin}")
    if n < 64: k(f"s_mov_b64 exec, {(1 << n) - 1:#x}" if n <= 31 else f"s_mov_b32 exec_hi, {(1 << (n-32)) - 1:#x}")
    k(f"s_branch {k.L(name+'g')}")
    k.label(name)
    k(f"s_sleep {sleep}")
    k.label(name+'g')
    k(f"buffer_load_dwordx2 {vr(vD,2)}, v{vA}, {sr(k.sWS,4)}, s{sIdx} offen{SCOPE_PL}")
    if n == 128:
        k(f"buffer_load_dwordx2 {vr(vD+2,2)}, v{vA}, {sr(k.sWS,4)}, s{sIdx} offen offset:{FS}{SCOPE_PL}")
    k(f"s_waitcnt vmcnt(0)")
    k(f"v_cmp_ne_u64 vcc, {sr(k.sNon,2)}, {vr(vD,2)}")
    if n == 128:
        m = k.mark(); sM = k.s(2, 2)
        k(f"v_cmp_ne_u64 {sr(sM,2)}, {sr(k.sNon,2)}, {vr(vD+2,2)}")
        k(f"s_or_b64 vcc, vcc, {sr(sM,2)}")
        k.reset(m)
    k(f"s_sub_u32 s{k.sCnt}, s{k.sCnt}, 1")
    k(f"s_cbranch_scc1 {k.L(name+'x')}")
    k(f"s_and_b64 exec, exec, vcc")
    k(f"s_cbranch_scc1 {k.L(name)}")
    k.label(name+'x')
    k(f"s_mov_b64 exec, -1")

def set_flag(k, sIdx, vA, vD, rep=1, sExec=None):
    k(f"s_lshl_b32 s{sIdx}, s{sIdx}, {FSH}")
    k(f"s_add_u32 s{sIdx}, s{sIdx}, {WS_FL:#x}")
    k(f"v_lshlrev_b32 v{vA}, {10 + FSH}, v{k.vLane}")
    k(f"v_mov_b32 v{vD}, s{k.sNon}")
    k(f"v_mov_b32 v{vD+1}, s{k.sNon+1}")
    k(f"s_mov_b32 exec_hi, 0")
    k(f"s_mov_b32 exec_lo, {(1 << rep) - 1 if sExec is None else 's%d' % sExec}")
    k(f"s_waitcnt vmcnt(0)")
    k(f"buffer_store_dwordx2 {vr(vD,2)}, v{vA}, {sr(k.sWS,4)}, s{sIdx} offen{SCOPE_PL}")
    k(f"s_mov_b64 exec, -1")

def sel16(k, vSel, vT):
    k(f"v_and_b32 v{vT}, 31, v{k.vLane}")
    k(f"v_cmp_eq_u32 vcc, 0, v{vT}")
    k(f"v_cmp_eq_u32 {sr(k.sT0 if k.sT0 % 2 == 0 else k.sT0+1,2)}, 17, v{vT}")
    k(f"v_mov_b32 v{vT}, 0x3f803f80")
    k(f"s_or_b64 vcc, vcc, {sr(k.sT0 if k.sT0 % 2 == 0 else k.sT0+1,2)}")
    k(f"s_nop 0")
    for i in range(4): k(f"v_cndmask_b32 v{vSel+i}, 0, v{vT}, vcc")

def code_touch(k, vA, vD):
    if not env("CODE_PF", 1): return
    m = k.mark(); sP = k.s(2, 2)
    k(f"s_lshl_b32 s{k.sT0}, s{k.sJ}, 2")
    k(f"s_add_u32 s{k.sT0}, s{k.sT0}, s{k.sWave}")
    k(f"s_sub_u32 s{k.sT0}, s{k.sT0}, 4")
    k(f"s_lshl_b32 s{k.sT0}, s{k.sT0}, 13")
    k(f"s_cmp_ge_u32 s{k.sT0}, L_{k.name}_codeend-{k.name}")
    k(f"s_cbranch_scc1 {k.L('noct')}")
    k(f"s_getpc_b64 {sr(sP,2)}")
    k.label("pc")
    k(f"s_sub_u32 s{sP}, s{sP}, {k.L('pc')}-{k.name}")
    k(f"s_subb_u32 s{sP+1}, s{sP+1}, 0")
    k(f"v_lshl_add_u32 v{vA}, v{k.vLane}, 7, s{k.sT0}")
    k(f"v_min_u32 v{vA}, L_{k.name}_codeend-{k.name}-4, v{vA}")
    k(f"global_load_dword v{vD}, v{vA}, {sr(sP,2)}")
    k(f"s_waitcnt vmcnt(0)")
    k.label("noct")
    k.reset(m)

def warm(k, vA, vD, what):
    T0, T1 = k.sT0, k.sT1; WSr = sr(k.sWS, 4)
    def fl(n=1):
        k(f"s_lshl_b32 s{T0}, s{T0}, {FSH}")
        k(f"s_add_u32 s{T0}, s{T0}, {WS_FL:#x}")
        for i in range(n):
            k(f"buffer_load_dword v{vD}, v{vA}, {WSr}, s{T0} offen{SCOPE_PL}")
            if i < n-1: k(f"s_add_u32 s{T0}, s{T0}, {64*FS}")
    if "t" in what:
        k(f"v_lshlrev_b32 v{vA}, 19, v{k.vLane}")
        k(f"buffer_load_dword v{vD}, v{vA}, {WSr}, 0 offen")
    k(f"v_lshlrev_b32 v{vA}, {FSH}, v{k.vLane}")
    if "1" in what:
        k(f"s_lshr_b32 s{T0}, s{k.sJ}, 4")
        k(f"s_lshl_b32 s{T1}, s{k.sX}, 1")
        k(f"s_add_u32 s{T0}, s{T0}, s{T1}")
        k(f"s_lshl_b32 s{T0}, s{T0}, 6")
        k(f"s_and_b32 s{T1}, s{k.sJ}, 7")
        k(f"s_lshl_b32 s{T1}, s{T1}, 10")
        k(f"s_add_u32 s{T0}, s{T0}, s{T1}")
        k(f"s_add_u32 s{T0}, s{T0}, {FL1}")
        fl()
    if "a" in what:
        k(f"s_lshl_b32 s{T0}, s2, 6")
        fl()
        k(f"s_lshl_b32 s{T0}, s2, 12")
        k(f"s_add_u32 s{T0}, s{T0}, {WS_PS:#x}")
        k(f"v_lshlrev_b32 v{vA}, 6, v{k.vLane}")
        k(f"buffer_load_dword v{vD}, v{vA}, {WSr}, s{T0} offen")
```

```python
import os, struct
def env(n, d): return type(d)(os.environ.get(n, d))
T = 2048; D = 512; H = 32; DH = 16; F = 1792; FH = 896
KA_X, KA_WQKV, KA_WO, KA_BX, KA_WIN, KA_WSP, KA_BSP, KA_WOUT, KA_OUT, KA_DBG, KA_WS = [8*i for i in range(11)]
WS_QF  = 0x000000
WS_KVF = 0x200000
WS_OF  = 0x600000
WS_HF  = 0x800000
WS_Z1F = 0xA00000
WS_Z2I = 0xE00000
WS_UF  = 0x1200000
WS_PS  = 0x1600000
WS_HS  = 0x1680000
WS_FL  = 0x1700000
FS = 128; FSH = 7
NFL = 24576
RS = 256; RSH = 8
R1 = env("R1", 8); R2 = env("R2", 8); R3 = env("R3", 4); R4 = env("R4", 8); R5 = env("R5", 2)
FL1 = 0
FL2 = FL1 + 8*RS
FL3 = FL2 + 8*RS
FL4 = FL3 + 8*RS
FL5 = FL4 + 8*RS
assert FL5 + 8*RS <= NFL
WS_END = 0x1A00000
WS_STAMP = 0x1C00000
LDS_MAX = 163840

def f32(x): return struct.unpack('<I', struct.pack('<f', x))[0]
def vr(a, n=1): return f"v{a}" if n == 1 else f"v[{a}:{a+n-1}]"
def sr(a, n=1): return f"s{a}" if n == 1 else f"s[{a}:{a+n-1}]"

P5N = env('P5N', 1)
SCOPE_ST = {0: "", 1: " sc1", 2: " sc0 sc1"}[env("SC_ST", 1)]
SCOPE_LD = {0: "", 1: " sc1", 2: " sc0 sc1"}[env("SC_LD", 1)]
SCOPE_PL = {1: " sc1", 2: " sc0 sc1"}[env("SC_PL", 1)]
SLEEP = env("POLL_SLEEP", 2)
PW = env('POLL_WAVE', 0)
THR = env("PRE_THR", 0)

class K:
    def __init__(self, name, stamps=False, kidx=0):
        self.name = name; self.grid = 256; self.block = 768; self.lds = LDS_MAX
        self.lines = []; self.vnext = 1; self.snext = 3; self.vmax = 1; self.smax = 3
        self.stamps = stamps; self.kidx = kidx; self.pfx = ""; self.nst = 0; self.stnames = []
    def __call__(self, s):
        for ln in s.strip("\n").split("\n"): self.lines.append("  " + ln.strip())
    def many(self, l):
        for s in l: self(s)
    def L(self, l): return f"L_{self.name}_{self.pfx}{l}"
    def label(self, l): self.lines.append(f"{self.L(l)}:")
    def v(self, n=1, align=1):
        a = (self.vnext + align - 1)//align*align
        self.vnext = a + n; self.vmax = max(self.vmax, self.vnext); return a
    def s(self, n=1, align=1):
        a = (self.snext + align - 1)//align*align
        self.snext = a + n; self.smax = max(self.smax, self.snext); assert self.snext <= 100; return a
    def mark(self): return (self.vnext, self.snext)
    def reset(self, m): self.vnext, self.snext = m
    def srd(self, s, lo, size, bias=0):
        if bias:
            self(f"s_sub_u32 s{s}, s{lo}, {bias}")
            self(f"s_subb_u32 s{s+1}, s{lo+1}, 0")
            self(f"s_and_b32 s{s+1}, s{s+1}, 0xffff")
        else:
            self(f"s_mov_b32 s{s}, s{lo}")
            self(f"s_and_b32 s{s+1}, s{lo+1}, 0xffff")
        self(f"s_mov_b32 s{s+2}, {size+bias:#x}")
        self(f"s_mov_b32 s{s+3}, 0x20000")
    def prologue(self):
        k = self
        k.sIn = k.s(16, 4)
        k.sP2 = k.s(4, 4)
        k.sWSp = k.s(2, 2)
        k.sWS = k.s(4, 4)
        k.sT0 = k.s(2, 2); k.sT1 = k.sT0 + 1; k.sWave = k.s(); k.sX = k.s(); k.sJ = k.s(); k.sCnt = k.s()
        k.sNon = k.s(2, 2)
        k.vLane = k.v(); k.vL16 = k.v()
        if k.stamps:
            k.sSt = k.s(2, 2); k.vSt = k.v()
            k(f"s_memrealtime s[{k.sSt}:{k.sSt+1}]")
            k(f"v_mov_b32 v{k.vSt}, 0")
            k(f"s_waitcnt lgkmcnt(0)")
            k(f"v_writelane_b32 v{k.vSt}, s{k.sSt}, 62")
            k.stamp("start")
        k(f"s_load_dwordx2 {sr(k.sWSp,2)}, s[0:1], {KA_WS}")
        k(f"s_load_dwordx16 {sr(k.sIn,16)}, s[0:1], 0")
        k(f"s_load_dwordx4 {sr(k.sP2,4)}, s[0:1], {KA_OUT}")
        k(f"v_lshrrev_b32 v{k.vL16}, 6, v0")
        k(f"v_and_b32 v{k.vLane}, 63, v0")
        k(f"v_readfirstlane_b32 s{k.sWave}, v{k.vL16}")
        k(f"v_lshlrev_b32 v{k.vL16}, 4, v{k.vLane}")
        k(f"s_and_b32 s{k.sX}, s2, 7")
        k(f"s_lshr_b32 s{k.sJ}, s2, 3")
    def ptrs_ready(self):
        self(f"s_waitcnt lgkmcnt(0)")
        self.srd(self.sWS, self.sWSp, WS_END)
    def ptr(self, ka):
        return self.sIn + ka//4 if ka < 64 else self.sP2 + (ka-64)//4
    def stamp(self, name):
        if not self.stamps: return
        if env("STAMP_DBG", -1) >= 0 and self.pfx + name not in ("start p1c_loopend p1c_flag p2c_data p2c_xch p3c_data p3c_flag p4c_data p4c_loopend p4c_flag p5c_data p5c_loopend p6c_data p6c_stored").split(): return
        if name != "start" and (env("STAMP_WAVE", 0) >= 8) != (self.pfx[2:3] == "l"): return
        i = self.nst; self.nst += 1; self.stnames.append(self.pfx + name); assert i < 62
        self(f"{'s_memrealtime' if env('STAMP_RT', 1) else 's_memtime'} s[{self.sSt}:{self.sSt+1}]")
        self(f"s_waitcnt lgkmcnt(0)")
        self(f"v_writelane_b32 v{self.vSt}, s{self.sSt}, {i}")
    def stamp_flush(self):
        if not self.stamps: return
        k = self
        w = env("STAMP_WAVE", 0)
        k(f"s_cmp_lg_u32 s{k.sWave}, {w}")
        k(f"s_cbranch_scc1 {k.L('nostamp')}")
        k(f"s_waitcnt vmcnt(0)")
        k(f"s_memrealtime s[{k.sSt}:{k.sSt+1}]")
        k(f"s_waitcnt lgkmcnt(0)")
        k(f"v_writelane_b32 v{k.vSt}, s{k.sSt}, 63")
        if env("STAMP_DBG", -1) >= 0:
            k(f"s_cmp_lg_u32 s2, {env('STAMP_DBG', -1)}")
            k(f"s_cbranch_scc1 {k.L('nostamp')}")
            k(f"v_readlane_b32 s{k.sT0}, v{k.vSt}, 0")
            k(f"v_writelane_b32 v{k.vSt}, s{k.sSt}, 0")
            k(f"s_nop 1")
            k(f"v_subrev_u32 v{k.vSt}, s{k.sT0}, v{k.vSt}")
            k(f"v_lshlrev_b32 v{k.vL16}, 2, v{k.vLane}")
            k(f"s_mov_b64 exec, 0x3fff")
            k(f"global_store_dword v{k.vL16}, v{k.vSt}, {sr(k.ptr(KA_DBG),2)} offset:8")
            k.label('nostamp')
            return
        k(f"s_add_u32 s{k.sSt}, s{k.sWSp}, {WS_STAMP + k.kidx*65536}")
        k(f"s_addc_u32 s{k.sSt+1}, s{k.sWSp+1}, 0")
        k(f"s_lshl_b32 s{k.sT0}, s2, 8")
        k(f"v_lshl_add_u32 v{k.vL16}, v{k.vLane}, 2, s{k.sT0}")
        k(f"global_store_dword v{k.vL16}, v{k.vSt}, s[{k.sSt}:{k.sSt+1}]")
        k.label('nostamp')
    def header(self):
        if env("PLAIN", 0): return f"; @launch grid=({self.grid},1,1) block=({self.block},1,1) lds={self.lds}"
        return f"; @launch kernel={self.name} grid=({self.grid},1,1) block=({self.block},1,1) lds={self.lds}"
    def text(self):
        nv = (max(self.vmax, 8) + 3)//4*4
        assert nv <= 168, (self.name, nv)
        body = "\n".join(self.lines)
        return f"""
.text
.globl {self.name}
.p2align 8
.type {self.name},@function
{self.name}:
{body}
.section .rodata,"a"
.p2align 6
.amdhsa_kernel {self.name}
  .amdhsa_next_free_vgpr {nv}
  .amdhsa_next_free_sgpr {max(self.smax, 16)}
  .amdhsa_accum_offset {nv}
  .amdhsa_group_segment_fixed_size 0
  .amdhsa_kernarg_size 88
  .amdhsa_user_sgpr_count 2
  .amdhsa_user_sgpr_kernarg_segment_ptr 1
  .amdhsa_system_sgpr_workgroup_id_x 1
.end_amdhsa_kernel
"""

HEADER = """; Kernarg layout for this problem (88 bytes, ptrs only, base s[0:1]):
"""
def emit(kernels, path):
    s = HEADER + "\n".join(k.header() for k in kernels) + "\n"
    s += '.amdgcn_target "amdgcn-amd-amdhsa--gfx950"\n'
    for k in kernels: s += k.text()
    open(path, "w").write(s)
    import json
    json.dump([k.stnames for k in kernels], open(path + ".stn", "w"))

def tr_base(k, vTr, vTmp, natural):
    L = k.vLane
    k(f"v_lshrrev_b32 v{vTmp}, 5, v{L}")
    k(f"v_lshlrev_b32 v{vTr}, {9 if natural else 8}, v{vTmp}")
    k(f"v_bfe_u32 v{vTmp}, v{L}, 2, 2")
    k(f"v_lshl_add_u32 v{vTr}, v{vTmp}, 6, v{vTr}")
    k(f"v_bfe_u32 v{vTmp}, v{L}, 4, 1")
    k(f"v_lshl_add_u32 v{vTr}, v{vTmp}, 5, v{vTr}")
    k(f"v_and_b32 v{vTmp}, 3, v{L}")
    k(f"v_lshl_add_u32 v{vTr}, v{vTmp}, 3, v{vTr}")

def half_combine(k, regs, vT, op="v_add_f32"):
    for r, t in zip(regs, vT): k(f"v_mov_b32 v{t}, v{r}")
    k("s_nop 1")
    for r, t in zip(regs, vT): k(f"v_permlane32_swap_b32 v{t}, v{r}")
    k("s_nop 1")
    for r, t in zip(regs, vT): k(f"{op} v{r}, v{r}, v{t}")

def interleave(k, mm, rd, tail=(), per=4):
    mm = list(mm); rd = list(rd); tail = list(tail)
    while rd or mm:
        if mm:
            g = mm.pop(0)
            if isinstance(g, str): k(g)
            elif callable(g): g()
            else: k.many(g)
        for _ in range(per):
            if rd: k(rd.pop(0))
            elif tail: k(tail.pop(0))
    k.many(tail)

class Win:
    def __init__(self, k, vbase, wins):
        self.regs = {}
        for w in wins:
            if w == 0: self.regs[0] = vbase
            else:
                r = k.v(); k(f"v_add_u32 v{r}, {w*65536}, v{vbase}"); self.regs[w] = r
    def at(self, off):
        w = off >> 16
        return f"v{self.regs[w]} offset:{off & 0xffff}"

def nonce_publish(k, vA):
    m = k.mark(); sD = k.s(4, 4)
    k(f"s_cmp_lg_u32 s2, 0")
    k(f"s_cbranch_scc1 {k.L('nopub')}")
    k(f"s_cmp_lg_u32 s{k.sWave}, 7")
    k(f"s_cbranch_scc1 {k.L('nopub')}")
    k(f"s_memrealtime {sr(k.sNon,2)}")
    k.srd(sD, k.ptr(KA_DBG), 256)
    k(f"s_waitcnt lgkmcnt(0)")
    k(f"s_or_b32 s{k.sNon+1}, s{k.sNon+1}, 0x80000000")
    k(f"v_mov_b32 v{vA}, s{k.sNon}")
    k(f"v_mov_b32 v{vA+1}, s{k.sNon+1}")
    k(f"v_mov_b32 v{vA+2}, 0")
    k(f"s_mov_b64 exec, 1")
    k(f"buffer_store_dwordx2 {vr(vA,2)}, v{vA+2}, {sr(sD,4)}, 0 offen{SCOPE_PL}")
    k(f"s_mov_b64 exec, -1")
    k.label("nopub")
    k.reset(m)

def nonce_fetch(k, vA, name="nf"):
    m = k.mark(); sD = k.s(4, 4)
    k.srd(sD, k.ptr(KA_DBG), 256)
    k(f"v_mov_b32 v{vA+2}, 0")
    k(f"s_mov_b32 s{k.sCnt}, 100000")
    k.label(name)
    k(f"buffer_load_dwordx2 {vr(vA,2)}, v{vA+2}, {sr(sD,4)}, 0 offen{SCOPE_PL}")
    k(f"s_waitcnt vmcnt(0)")
    k(f"v_readfirstlane_b32 s{k.sNon+1}, v{vA+1}")
    k(f"v_readfirstlane_b32 s{k.sNon}, v{vA}")
    k(f"s_sub_u32 s{k.sCnt}, s{k.sCnt}, 1")
    k(f"s_cbranch_scc1 {k.L(name+'x')}")
    k(f"s_cmp_lt_u32 s{k.sNon+1}, 0x80000000")
    k(f"s_cbranch_scc1 {k.L(name)}")
    k.label(name+'x')
    k.reset(m)

def poll(k, name, sIdx, vA, vD, n=64, spin=100000, sleep=None, pipe=True):
    vD2 = None
    if pipe and env('POLL_PIPE', 0): vD, vD2 = k.vPoll, k.vPoll + 4
    if sleep is None: sleep = SLEEP
    k(f"s_lshl_b32 s{sIdx}, s{sIdx}, {FSH}")
    k(f"s_add_u32 s{sIdx}, s{sIdx}, {WS_FL:#x}")
    if n < 64:
        k(f"v_min_u32 v{vA}, {n-1}, v{k.vLane}")
        k(f"v_lshlrev_b32 v{vA}, {FSH}, v{vA}")
    else:
        k(f"v_lshlrev_b32 v{vA}, {FSH + (n == 128)}, v{k.vLane}")
    k(f"s_mov_b32 s{k.sCnt}, {spin}")
    if n < 64: k(f"s_mov_b64 exec, {(1 << n) - 1:#x}" if n <= 31 else f"s_mov_b32 exec_hi, {(1 << (n-32)) - 1:#x}")
    nl = 2 if n == 128 else 1
    def ld(d):
        k(f"buffer_load_dwordx2 {vr(d,2)}, v{vA}, {sr(k.sWS,4)}, s{sIdx} offen{SCOPE_PL}")
        if n == 128: k(f"buffer_load_dwordx2 {vr(d+2,2)}, v{vA}, {sr(k.sWS,4)}, s{sIdx} offen offset:{FS}{SCOPE_PL}")
    def chk(d):
        k(f"v_cmp_ne_u64 vcc, {sr(k.sNon,2)}, {vr(d,2)}")
        if n == 128:
            m = k.mark(); sM = k.s(2, 2)
            k(f"v_cmp_ne_u64 {sr(sM,2)}, {sr(k.sNon,2)}, {vr(d+2,2)}")
            k(f"s_or_b64 vcc, vcc, {sr(sM,2)}")
            k.reset(m)
        k(f"s_and_b64 exec, exec, vcc")
    if vD2 is None:
        k(f"s_branch {k.L(name+'g')}")
        k.label(name)
        k(f"s_sleep {sleep}")
        k.label(name+'g')
        ld(vD)
        k(f"s_sub_u32 s{k.sCnt}, s{k.sCnt}, 1")
        k(f"s_cbranch_scc1 {k.L(name+'x')}")
        k(f"s_waitcnt vmcnt(0)")
        chk(vD)
        k(f"s_cbranch_scc1 {k.L(name)}")
    else:
        ld(vD)
        k(f"s_sleep {env('POLL_HALF', 5)}")
        k.label(name)
        ld(vD2)
        k(f"s_sub_u32 s{k.sCnt}, s{k.sCnt}, 1")
        k(f"s_cbranch_scc1 {k.L(name+'x')}")
        k(f"s_waitcnt vmcnt({nl})")
        chk(vD)
        k(f"s_cbranch_scc0 {k.L(name+'x')}")
        ld(vD)
        k(f"s_waitcnt vmcnt({nl})")
        chk(vD2)
        k(f"s_cbranch_scc1 {k.L(name)}")
    k.label(name+'x')
    k(f"s_mov_b64 exec, -1")

def stored(k):
    k(f"s_waitcnt vmcnt(0)")
    k(f"s_barrier")

def set_flag(k, sIdx, vA, vD, rep):
    k(f"s_cmp_lg_u32 s{k.sWave}, {PW}")
    k(f"s_cbranch_scc1 {k.L('nofl')}")
    k(f"s_mov_b64 exec, {(1 << rep) - 1}")
    k(f"buffer_store_dwordx2 {vr(vD,2)}, v{vA}, {sr(k.sWS,4)}, s{sIdx} offen{SCOPE_PL}")
    k(f"s_mov_b64 exec, -1")
    k.label("nofl")
def prep_flag(k, sIdx, vA, vD):
    k(f"s_lshl_b32 s{sIdx}, s{sIdx}, {FSH}")
    k(f"s_add_u32 s{sIdx}, s{sIdx}, {WS_FL:#x}")
    k(f"v_lshlrev_b32 v{vA}, {RSH + FSH}, v{k.vLane}")
    k(f"v_mov_b32 v{vD}, s{k.sNon}")
    k(f"v_mov_b32 v{vD+1}, s{k.sNon+1}")
def publish(k, sIdx, vA, vD, rep):
    prep_flag(k, sIdx, vA, vD); stored(k); set_flag(k, sIdx, vA, vD, rep)
def rep_off(k, sIdx, sSel, rep):
    k(f"s_and_b32 s{k.sT1}, s{sSel}, {rep-1}")
    k(f"s_lshl_b32 s{k.sT1}, s{k.sT1}, {RSH}")
    k(f"s_add_u32 s{sIdx}, s{sIdx}, s{k.sT1}")

def sel16(k, vSel, vT):
    k(f"v_and_b32 v{vT}, 31, v{k.vLane}")
    k(f"v_cmp_eq_u32 vcc, 0, v{vT}")
    k(f"v_cmp_eq_u32 {sr(k.sT0 if k.sT0 % 2 == 0 else k.sT0+1,2)}, 17, v{vT}")
    k(f"v_mov_b32 v{vT}, 0x3f803f80")
    k(f"s_or_b64 vcc, vcc, {sr(k.sT0 if k.sT0 % 2 == 0 else k.sT0+1,2)}")
    k(f"s_nop 0")
    for i in range(4): k(f"v_cndmask_b32 v{vSel+i}, 0, v{vT}, vcc")

def code_touch(k, vA, vD):
    if not env("CODE_PF", 1): return
    m = k.mark(); sP = k.s(2, 2)
    k(f"s_lshl_b32 s{k.sT0}, s{k.sJ}, 2")
    k(f"s_add_u32 s{k.sT0}, s{k.sT0}, s{k.sLw}")
    k(f"s_lshl_b32 s{k.sT0}, s{k.sT0}, 13")
    k(f"s_cmp_ge_u32 s{k.sT0}, L_{k.name}_codeend-{k.name}")
    k(f"s_cbranch_scc1 {k.L('noct')}")
    k(f"s_getpc_b64 {sr(sP,2)}")
    k.label("pc")
    k(f"s_sub_u32 s{sP}, s{sP}, {k.L('pc')}-{k.name}")
    k(f"s_subb_u32 s{sP+1}, s{sP+1}, 0")
    k(f"v_lshl_add_u32 v{vA}, v{k.vLane}, 7, s{k.sT0}")
    k(f"v_min_u32 v{vA}, L_{k.name}_codeend-{k.name}-4, v{vA}")
    k(f"global_load_dword v{vD}, v{vA}, {sr(sP,2)}")
    k.label("noct")
    k.reset(m)

def warm(k, vA, vD, what):
    T0, T1 = k.sT0, k.sT1; WSr = sr(k.sWS, 4)
    def fl(n=1):
        k(f"s_lshl_b32 s{T0}, s{T0}, {FSH}")
        k(f"s_add_u32 s{T0}, s{T0}, {WS_FL:#x}")
        for i in range(n):
            k(f"buffer_load_dword v{vD}, v{vA}, {WSr}, s{T0} offen{SCOPE_PL}")
            if i < n-1: k(f"s_add_u32 s{T0}, s{T0}, {64*FS}")
    if "t" in what:
        k(f"v_lshlrev_b32 v{vA}, 19, v{k.vLane}")
        k(f"buffer_load_dword v{vD}, v{vA}, {WSr}, 0 offen")
    k(f"v_lshlrev_b32 v{vA}, {FSH}, v{k.vLane}")
    if "1" in what:
        k(f"s_lshl_b32 s{T0}, s2, 3")
        k(f"s_mov_b64 exec, 0xff")
        fl()
        k(f"s_mov_b64 exec, -1")
    if "a" in what:
        k(f"s_lshl_b32 s{T0}, s2, 5")
        k(f"s_add_u32 s{T0}, s{T0}, {FL2}")
        k(f"s_mov_b32 exec_hi, 0")
        fl()
        k(f"s_mov_b64 exec, -1")
        k(f"s_lshl_b32 s{T0}, s2, 12")
        k(f"s_add_u32 s{T0}, s{T0}, {WS_PS:#x}")
        k(f"v_lshlrev_b32 v{vA}, 6, v{k.vLane}")
        k(f"buffer_load_dword v{vD}, v{vA}, {WSr}, s{T0} offen")
```

```python
from base import *

class P2:
    PAD = 131072
    XCH = 131072 + 12288
    def roles(self, k):
        self.sHead = k.s(); self.sQb = k.s()
        k(f"s_lshl_b32 s{k.sT0}, s{k.sX}, 2")
        k(f"s_lshr_b32 s{k.sT1}, s{k.sJ}, 3")
        k(f"s_add_u32 s{self.sHead}, s{k.sT0}, s{k.sT1}")
        k(f"s_and_b32 s{self.sQb}, s{k.sJ}, 7")

    def c(self, k, first, last):
        k.pfx = "p2c_"; m = k.mark()
        SC = "" if last else SCOPE_ST
        LD = "" if first else SCOPE_LD
        U = 4; PAD = self.PAD; XCH = self.XCH
        T0, T1 = k.sT0, k.sT1; WSr = sr(k.sWS, 4); vL16 = k.vL16; vLane = k.vLane
        self.roles(k)
        sHead, sQb = self.sHead, self.sQb
        sOoff = k.s(); sQo = k.s(); sKh = k.s(); sFl = k.s()
        vKa = k.v(); vVa = k.v(); vVinc = k.v(); vIdx = k.v(); vT0 = k.v(); vT1 = k.v(); vVa0 = k.v()
        vQ = [k.v(4, 4), k.v(4, 4)]
        vKf = [k.v(4, 4), k.v(4, 4)]
        vV0 = k.v(4, 4)
        vV1 = [k.v(4, 4), k.v(4, 4)]
        vS = [k.v(16, 4), k.v(16, 4)]
        vNM = [k.v(16, 4), k.v(16, 4)]
        vO = [k.v(16, 4), k.v(16, 4)]
        QK = lambda d, kf, q, c: k(f"v_mfma_f32_32x32x16_bf16 {vr(d,16)}, {vr(kf,4)}, {vr(q,4)}, {c}")
        PV = lambda o, v, s: k(f"v_smfmac_f32_32x32x32_bf16 {vr(o,16)}, {vr(v,4)}, {vr(s,8)}, v{vIdx}")
        k(f"s_lshr_b32 s{sKh}, s{k.sWave}, 2")
        k(f"s_and_b32 s{T0}, s{k.sWave}, 3")
        k(f"s_lshl_b32 s{T0}, s{T0}, 1")
        k(f"s_lshl_b32 s{T1}, s{sQb}, 3")
        k(f"s_add_u32 s{T0}, s{T0}, s{T1}")
        k(f"s_add_u32 s{sOoff}, s{T0}, s{sKh}")
        k(f"s_lshl_b32 s{sOoff}, s{sOoff}, 5")
        k(f"s_add_u32 s{sOoff}, s{sOoff}, s{sHead}")
        k(f"s_lshl_b32 s{sFl}, s{sQb}, 5")
        k(f"s_add_u32 s{sFl}, s{sFl}, s{sHead}")
        k(f"s_add_u32 s{sFl}, s{sFl}, {FL2}")
        k(f"s_lshl_b32 s{sOoff}, s{sOoff}, 10")
        k(f"s_add_u32 s{sOoff}, s{sOoff}, {WS_OF:#x}")
        k(f"s_lshl_b32 s{T1}, s{sHead}, 6")
        k(f"s_add_u32 s{sQo}, s{T0}, s{T1}")
        k(f"s_lshl_b32 s{sQo}, s{sQo}, 10")
        k(f"v_lshrrev_b32 v{vT0}, 5, v{vLane}")
        k(f"v_and_b32 v{vVa0}, 15, v{vLane}")
        k(f"v_lshl_add_u32 v{vVa0}, v{vT0}, 4, v{vVa0}")
        k(f"v_lshlrev_b32 v{vVa0}, 4, v{vVa0}")
        k(f"v_add_u32 v{vVa0}, 1024, v{vVa0}")
        k(f"v_and_b32 v{vT0}, 27, v{vLane}")
        k(f"v_cmp_eq_u32 vcc, 16, v{vT0}")
        k(f"v_mov_b32 v{vT1}, {PAD + 1024 + 16}")
        k(f"v_mov_b32 v{vKa}, {PAD + 1024}")
        k(f"v_cndmask_b32 v{vT1}, v{vT1}, v{vKa}, vcc")
        k(f"v_and_b32 v{vT0}, 16, v{vLane}")
        k(f"v_cmp_eq_u32 vcc, 0, v{vT0}")
        k(f"s_lshl_b32 s{T0}, s{sKh}, 16")
        k(f"v_mov_b32 v{vKa}, {U*2048}")
        k(f"v_cndmask_b32 v{vVinc}, 0, v{vKa}, vcc")
        k(f"v_add_u32 v{vVa}, s{T0}, v{vVa0}")
        k(f"v_cndmask_b32 v{vVa}, v{vT1}, v{vVa}, vcc")
        k(f"v_add_u32 v{vKa}, s{T0}, v{vL16}")
        k(f"v_mov_b32 v{vIdx}, 0xdddddddd")
        k(f"v_lshrrev_b32 v{vT0}, 1, v{vLane}")
        k(f"v_min_u32 v{vT0}, 23, v{vT0}")
        k(f"v_lshlrev_b32 v{vT0}, 9, v{vT0}")
        k(f"v_and_b32 v{vT1}, 1, v{vLane}")
        k(f"v_lshl_add_u32 v{vT0}, v{vT1}, 4, v{vT0}")
        k(f"v_add_u32 v{vT0}, {PAD}, v{vT0}")
        k(f"v_cmp_eq_u32 vcc, 0, v{vT1}")
        k(f"v_mov_b32 v{vT1}, 0x3f803f80")
        k(f"s_nop 0")
        for i in range(4): k(f"v_cndmask_b32 v{vV0+i}, 0, v{vT1}, vcc")
        k(f"ds_write_b128 v{vT0}, {vr(vV0,4)}")
        for t in range(2):
            for i in range(16): k(f"v_mov_b32 v{vO[t]+i}, 0")
        for i in range(8, 16): k(f"v_mov_b32 v{vS[1]+i}, 0")
        for i in range(4): k(f"v_mov_b32 v{vV1[1]+i}, 0")
        if first:
            k.ptrs_ready()
            if not last: nonce_publish(k, vS[0])
        else:
            k(f"s_cmp_lg_u32 s{k.sWave}, {PW}")
            k(f"s_cbranch_scc1 {k.L('nopoll')}")
            k(f"s_lshl_b32 s{T0}, s{k.sX}, 5")
            rep_off(k, T0, k.sJ, R1)
            poll(k, "poll", T0, vT1, vQ[0], n=32)
            k.label("nopoll")
            k(f"s_barrier")
            k.stamp("ready")
        k(f"buffer_load_dwordx4 {vr(vQ[0],4)}, v{vL16}, {WSr}, s{sQo} offen{LD}")
        k(f"buffer_load_dwordx4 {vr(vQ[1],4)}, v{vL16}, {WSr}, s{sQo} offen offset:1024{LD}")
        k(f"s_waitcnt lgkmcnt(0)")
        k(f"s_barrier")
        k.stamp("data")
        k(f"ds_read_b128 {vr(vV0,4)}, v{vL16}")
        k(f"ds_read_b128 {vr(vKf[0],4)}, v{vKa}")
        k(f"ds_read_b128 {vr(vKf[1],4)}, v{vKa} offset:2048")
        k(f"s_waitcnt vmcnt(0) lgkmcnt(2)")
        QK(vNM[0], vV0, vQ[0], "0")
        QK(vNM[1], vV0, vQ[1], "0")
        k(f"ds_read_b128 {vr(vV0,4)}, v{vVa}")
        k(f"ds_read_b128 {vr(vV1[0],4)}, v{vVa} offset:512")
        k(f"s_nop 9")
        for t in range(2):
            N_ = vNM[t]
            k(f"v_max3_f32 v{vT0}, v{N_}, v{N_+1}, v{N_+2}")
            for i in range(3, 15, 2):
                k(f"v_max3_f32 v{vT0}, v{vT0}, v{N_+i}, v{N_+i+1}")
            k(f"v_max_f32 v{vT0}, v{vT0}, v{N_+15}")
            half_combine(k, [vT0], [vT1], op="v_max_f32")
            for i in range(16): k(f"v_sub_f32 v{N_+i}, 0, v{vT0}")
            if t == 0:
                k(f"s_waitcnt lgkmcnt(0)")
                k(f"s_nop 0")
                QK(vS[0], vKf[0], vQ[0], vr(vNM[0],16))
        e = lambda S, i, w="": k(f"v_exp_f32{w} v{S+i}, v{S+i}")
        A, B = vS[0], vS[1]
        LOOP = env("P2_LOOP", 32)
        FIX = "_e64" if env("P2_FIX", 1) else ""
        sPh = k.s()
        def step(st, unrolled, lastu):
            u = st % U; p = st & 1
            e(A,0); e(A,1)
            PV(vO[1], vV1[1-p], B+8)
            for i in range(2, 6): e(A,i)
            QK(B, vKf[p], vQ[1], vr(vNM[1],16))
            for i in range(6, 9): e(A,i)
            e(A, 9, FIX)
            k(f"s_waitcnt lgkmcnt(0)") if not FIX else None
            if FIX:
                k.lines.insert(len(k.lines)-1, "  s_waitcnt lgkmcnt(0)")
            PV(vO[0], vV0, A)
            for i in range(10, 16): e(A,i)
            e(B,0); e(B,1)
            PV(vO[0], vV1[p], A+8)
            for i in range(2, 6): e(B,i)
            if not (unrolled and st == 31): QK(A, vKf[1-p], vQ[0], vr(vNM[0],16))
            for i in range(6, 10): e(B,i)
            PV(vO[1], vV0, B)
            if not (unrolled and st == 31):
                k(f"ds_read_b128 {vr(vV0,4)}, v{vVa} offset:{(u+1)*2048}")
                k(f"ds_read_b128 {vr(vV1[1-p],4)}, v{vVa} offset:{(u+1)*2048+512}")
            if not (unrolled and st >= 30):
                k(f"ds_read_b128 {vr(vKf[p],4)}, v{vKa} offset:{(st+2)*2048}")
            elif st == 30:
                k(f"s_nop 0"); k(f"s_nop 0")
            for i in range(10, 12): e(B,i)
            if u == U-1: k(f"v_add_u32{FIX} v{vVa}, v{vVinc}, v{vVa}")
            if lastu:
                k(f"v_add_u32 v{vKa}, {LOOP*2048}, v{vKa}")
                k(f"s_sub_u32 s{k.sCnt}, s{k.sCnt}, 1")
                k(f"s_cmp_lg_u32 s{k.sCnt}, 0")
            for i in range(12, 16): e(B,i)
        if LOOP == 32:
            k(".p2align 3")
            for st in range(32):
                if st == 0 and env("P2_ST", 0): k.stamp("go"); k(".p2align 3")
                if st in self.BARS:
                    if env("P2_ST", 0): k.stamp(f"a{st}")
                    k(f"s_barrier")
                    if env("P2_ST", 0): k.stamp(f"b{st}")
                    k(".p2align 3")
                step(st, True, False)
        else:
            k(f"s_mov_b32 s{sPh}, 0")
            k(f"s_mov_b32 s{k.sCnt}, {self.BARS[0]//LOOP}")
            k(".p2align 3")
            k.label("loop")
            for st in range(LOOP): step(st, False, st == LOOP-1)
            k(f"s_cbranch_scc1 {k.L('loop')}")
            cn = [(b_ - a_)//LOOP for a_, b_ in zip(self.BARS, self.BARS[1:] + (32,))]
            k(f"s_cmp_ge_u32 s{sPh}, 3")
            k(f"s_cbranch_scc1 {k.L('fin')}")
            k(f"s_cmp_eq_u32 s{sPh}, 0")
            k(f"s_cselect_b32 s{k.sCnt}, {cn[0]}, {cn[1]}")
            k(f"s_cmp_eq_u32 s{sPh}, 2")
            k(f"s_cselect_b32 s{k.sCnt}, {cn[2]}, s{k.sCnt}")
            k(f"s_add_u32 s{sPh}, s{sPh}, 1")
            k(f"s_barrier")
            k(f"s_branch {k.L('loop')}")
            k.label("fin")
            k(f"s_waitcnt lgkmcnt(0)")
        k.stamp("loopend")
        k(f"s_mul_i32 s{T0}, s{k.sWave}, 2304")
        k(f"s_add_u32 s{T0}, s{T0}, {XCH}")
        PV(vO[1], vV1[1], vS[1]+8)
        k(f"v_add_u32 v{vT0}, s{T0}, v{vL16}")
        k(f"v_lshlrev_b32 v{vKa}, 2, v{vLane}")
        k(f"v_add_u32 v{vKa}, s{T0}, v{vKa}")
        k(f"s_xor_b32 s{T1}, s{k.sWave}, 4")
        k(f"s_mul_i32 s{T1}, s{T1}, 2304")
        k(f"s_add_u32 s{T1}, s{T1}, {XCH}")
        k(f"v_add_u32 v{vT1}, s{T1}, v{vL16}")
        k(f"v_lshlrev_b32 v{vVa}, 2, v{vLane}")
        k(f"v_add_u32 v{vVa}, s{T1}, v{vVa}")
        k(f"s_nop 2")
        k(f"s_cmp_eq_u32 s{sKh}, 0")
        k(f"s_cbranch_scc1 {k.L('kh0')}")
        k(f"ds_write_b128 v{vT0}, {vr(vO[0],4)}")
        k(f"ds_write_b128 v{vT0}, {vr(vO[0]+4,4)} offset:1024")
        k(f"ds_write_b32 v{vKa}, v{vO[0]+8} offset:2048")
        k(f"s_waitcnt lgkmcnt(0)")
        for i in range(9): k(f"v_mov_b32 v{vO[0]+i}, v{vO[1]+i}")
        for i in range(4): k(f"v_mov_b32 v{vQ[0]+i}, v{vQ[1]+i}")
        k(f"s_branch {k.L('xch')}")
        k.label("kh0")
        k(f"ds_write_b128 v{vT0}, {vr(vO[1],4)}")
        k(f"ds_write_b128 v{vT0}, {vr(vO[1]+4,4)} offset:1024")
        k(f"ds_write_b32 v{vKa}, v{vO[1]+8} offset:2048")
        k(f"s_waitcnt lgkmcnt(0)")
        k.label("xch")
        k(f"s_barrier")
        k.stamp("xch")
        k(f"ds_read_b128 {vr(vS[0],4)}, v{vT1}")
        k(f"ds_read_b128 {vr(vS[0]+4,4)}, v{vT1} offset:1024")
        k(f"ds_read_b32 v{vS[0]+8}, v{vVa} offset:2048")
        k(f"s_waitcnt lgkmcnt(0)")
        O = vO[0]
        for i in range(9): k(f"v_add_f32 v{O+i}, v{O+i}, v{vS[0]+i}")
        k(f"v_add_f32 v{vT0}, abs(v{O}), v{O+8}")
        for i in range(1, 8): k(f"v_add_f32 v{vT0}, abs(v{O+i}), v{vT0}")
        k(f"s_mov_b32 s{T0}, 0x71800000")
        k(f"v_cmp_gt_f32 vcc, s{T0}, v{vT0}")
        k(f"s_cmp_eq_u64 vcc, -1")
        k(f"s_cbranch_scc1 {k.L('store')}")
        sKV = sQo
        k(f"s_lshl_b32 s{sKV}, s{sHead}, 17")
        k(f"s_add_u32 s{sKV}, s{sKV}, {WS_KVF:#x}")
        k(f"s_mov_b32 s{k.sCnt}, 64")
        k(f"s_mov_b32 s{T1}, s{sKV}")
        k(f"v_mov_b32 v{vT0}, 0xff800000")
        k.label("fb1")
        k(f"buffer_load_dwordx4 {vr(vKf[0],4)}, v{vL16}, {WSr}, s{T1} offen{LD}")
        k(f"s_add_u32 s{T1}, s{T1}, 2048")
        k(f"s_waitcnt vmcnt(0)")
        QK(vS[0], vKf[0], vQ[0], "0")
        k(f"s_nop 15")
        for i in range(0, 16, 2): k(f"v_max3_f32 v{vT0}, v{vT0}, v{vS[0]+i}, v{vS[0]+i+1}")
        k(f"s_sub_u32 s{k.sCnt}, s{k.sCnt}, 1")
        k(f"s_cmp_lg_u32 s{k.sCnt}, 0")
        k(f"s_cbranch_scc1 {k.L('fb1')}")
        half_combine(k, [vT0], [vT1], op="v_max_f32")
        for i in range(16):
            k(f"v_sub_f32 v{vNM[0]+i}, 0, v{vT0}")
            k(f"v_mov_b32 v{O+i}, 0")
        for i in range(4):
            k(f"v_mov_b32 v{vV0+i}, 0x3f803f80")
            k(f"v_mov_b32 v{vV1[0]+i}, 0x3f803f80")
        k(f"s_mov_b32 s{k.sCnt}, 64")
        k.label("fb2")
        k(f"buffer_load_dwordx4 {vr(vKf[0],4)}, v{vL16}, {WSr}, s{sKV} offen{LD}")
        k(f"s_mov_b32 exec_lo, 0xffff")
        k(f"s_mov_b32 exec_hi, 0xffff")
        k(f"buffer_load_dwordx4 {vr(vV0,4)}, v{vVa0}, {WSr}, s{sKV} offen{LD}")
        k(f"buffer_load_dwordx4 {vr(vV1[0],4)}, v{vVa0}, {WSr}, s{sKV} offen offset:512{LD}")
        k(f"s_mov_b64 exec, -1")
        k(f"s_add_u32 s{sKV}, s{sKV}, 2048")
        k(f"s_waitcnt vmcnt(0)")
        QK(vS[0], vKf[0], vQ[0], vr(vNM[0],16))
        k(f"s_nop 15")
        for i in range(16): e(vS[0], i)
        k(f"s_nop 1")
        PV(O, vV0, vS[0])
        PV(O, vV1[0], vS[0]+8)
        k(f"s_nop 15")
        k(f"s_sub_u32 s{k.sCnt}, s{k.sCnt}, 1")
        k(f"s_cmp_lg_u32 s{k.sCnt}, 0")
        k(f"s_cbranch_scc1 {k.L('fb2')}")
        k.label("store")
        k(f"v_rcp_f32 v{vT1}, v{O+8}")
        k(f"s_nop 0")
        for i in range(8): k(f"v_mul_f32 v{O+i}, v{O+i}, v{vT1}")
        for i in range(4): k(f"v_cvt_pk_bf16_f32 v{vKf[0]+i}, v{O+2*i}, v{O+2*i+1}")
        k(f"buffer_store_dwordx4 {vr(vKf[0],4)}, v{vL16}, {WSr}, s{sOoff} offen{SC}")
        k.stamp("stored")
        if not last:
            if first: nonce_fetch(k, vS[0])
            publish(k, sFl, vT0, vS[0], R2)
            k.stamp("flag")
        k.reset(m)
    BARS = {32: (2, 8, env('P2_B3', 24)), 4: (4, 12, 16), 8: (8, 16, 24)}[env('P2_LOOP', 32)]

    def l_pre(self, k): k.reset(k.lbase)
    def l(self, k, first, last, next_pre):
        k.pfx = "p2l_"
        LD = "" if first else SCOPE_LD
        T0, T1 = k.sT0, k.sT1; WSr = sr(k.sWS, 4); vL16 = k.vL16; sLw = k.sLw
        self.roles(k)
        sKV = k.s(); sOff = k.s(); sPF = k.s(4, 4); sId = k.s()
        vT0 = k.v(); vT1 = k.v()
        k(f"s_lshl_b32 s{sKV}, s{self.sHead}, 17")
        k(f"s_and_b32 s{T0}, s{sLw}, 1")
        k(f"s_lshl_b32 s{T0}, s{T0}, 10")
        k(f"s_add_u32 s{sKV}, s{sKV}, s{T0}")
        k(f"s_add_u32 s{sKV}, s{sKV}, {WS_KVF:#x}")
        k(f"s_lshr_b32 s{T1}, s{sLw}, 1")
        k(f"s_lshl_b32 s{T1}, s{T1}, 16")
        k(f"s_add_u32 m0, s{T1}, s{T0}")
        k(f"s_lshl_b32 s{sOff}, s{self.sQb}, 14")
        k(f"s_add_u32 s{sOff}, s{sOff}, s{T1}")
        if first: k.ptrs_ready()
        else: k(f"s_barrier")
        def issue2():
            k(f"s_and_b32 s{sOff}, s{sOff}, 0x1ffff")
            k(f"s_add_u32 s{T0}, s{sOff}, s{sKV}")
            k(f"buffer_load_dwordx4 v{vL16}, {WSr}, s{T0} offen{LD} lds")
            k(f"buffer_load_dwordx4 v{vL16}, {WSr}, s{T0} offen offset:2048{LD} lds")
            k(f"s_add_u32 m0, m0, 4096")
            k(f"s_add_u32 s{sOff}, s{sOff}, 4096")
        n0 = self.BARS[0] + 2; n1 = self.BARS[1] + 2
        i0 = n0//2 + 1; i1 = min(16, n1//2 + 2)
        for i in range(i0): issue2()
        k(f"s_waitcnt vmcnt({2*i0 - n0})")
        k(f"s_barrier")
        for i in range(i1 - i0): issue2()
        k(f"s_waitcnt vmcnt({2*i1 - n1})")
        k(f"s_barrier")
        for i in range(16 - i1): issue2()
        nt = [0]
        PF = env("P2_PF", "sUixo")
        k(f"s_lshl_b32 s{sId}, s{k.sJ}, 2")
        k(f"s_add_u32 s{sId}, s{sId}, s{sLw}")
        def touch(ka, size, per_wave, xcd_stride):
            k.srd(sPF, k.ptr(ka), size)
            k(f"s_mul_i32 s{T0}, s{sId}, {per_wave}")
            if xcd_stride:
                k(f"s_mul_i32 s{T1}, s{k.sX}, {xcd_stride}")
                k(f"s_add_u32 s{T0}, s{T0}, s{T1}")
            stride = min(128, per_wave//64)
            n = -(-per_wave//(64*stride))
            k(f"v_mul_u32_u24 v{vT0}, {stride}, v{k.vLane}")
            for i in range(n):
                k(f"buffer_load_dword v{k.vDump}, v{vT0}, {sr(sPF,4)}, s{T0} offen")
                nt[0] += 1
                if i < n-1: k(f"s_add_u32 s{T0}, s{T0}, {64*stride}")
        k(f"s_waitcnt vmcnt(0)")
        k(f"s_barrier")
        if "o" in PF: touch(KA_WO, D*D*2, 4096, 0)
        if self.p4:
            self.p4.stage_regs(k)
            k.pfx = "p2l_"
        if "s" in PF: touch(KA_WSP, T*T*2, 8192, 1048576)
        if "u" in PF: touch(KA_WOUT, FH*D*2, 1024, 131072)
        if "U" in PF: touch(KA_WOUT, FH*D*2, 8192, 0)
        if "i" in PF and not self.p4: touch(KA_WIN, D*F*2, 16384, 0)
        if "x" in PF: touch(KA_X, T*D*2, 2048, 262144)
        if last: k(f"s_barrier")
        if not last:
            k(f"s_cmp_lg_u32 s{sLw}, 3")
            k(f"s_cbranch_scc1 {k.L('nowarm')}")
            warm(k, vT0, k.vDump, env("WARM2", "ta"))
            k.label("nowarm")
            k(f"s_barrier")
            next_pre(k)
            k(f"s_barrier")
    p4 = None
```

```python
from base import *
from sched import Sched, run_sched

class Proj:
    def __init__(self, mode):
        self.mode = mode
        self.NKS = 32 if mode == 3 else 56
        self.N = self.NKS//4
        self.XR = 131072
    def plan(self, first):
        KB = 1024
        G = 2
        if self.mode == 3:
            w = [i*8*KB for i in range(4)] + [64*KB + i*8*KB for i in range(4)]
            a = [32*KB + i*8*KB for i in range(4)] + [96*KB + i*8*KB for i in range(4)]
            self.S = Sched(8, w + a, 0 if first else 8, 2, 2, look=6, group=G)
        else:
            slots = [i*8*KB for i in range(20)]
            self.S = Sched(14, slots, 0 if first else 14, 2, 2, look=6, group=G)
    def roles(self, k):
        self.sTb = k.s(); self.sCb = k.s()
        k(f"s_lshl_b32 s{k.sT0}, s{k.sX}, 2")
        k(f"s_and_b32 s{k.sT1}, s{k.sJ}, 3")
        k(f"s_add_u32 s{self.sTb}, s{k.sT0}, s{k.sT1}")
        k(f"s_lshr_b32 s{self.sCb}, s{k.sJ}, 2")

    def c(self, k, first, last):
        mode = self.mode; N = self.N; XR = self.XR
        k.pfx = f"p{mode}c_"; m = k.mark()
        self.plan(first); S = self.S
        SC = "" if last else SCOPE_ST
        LD = "" if first else SCOPE_LD
        T0, T1 = k.sT0, k.sT1; WSr = sr(k.sWS, 4); vL16 = k.vL16; vLane = k.vLane
        self.roles(k)
        sTb, sCb = self.sTb, self.sCb
        vT0 = k.v(); vT1 = k.v(); vT2 = k.v(2, 2); vT3 = vT2+1
        k(f"s_cmp_ge_u32 s{k.sWave}, 4")
        k(f"s_cbranch_scc1 {k.L('idle')}")
        sTh = k.s(); sCt = k.s(); sTT = k.s(); sHo = k.s(); sXo = k.s(); sFl = k.s(); sSX = k.s(4, 4)
        vWa = k.v(); vAa = k.v()
        vR = k.v(8, 4)
        vW = [k.v(16, 4), k.v(16, 4)]
        vA = [k.v(16, 4), k.v(16, 4)]
        vAcc = k.v(16, 4)
        vE = k.v(16, 4)
        k(f"s_and_b32 s{sTh}, s{k.sWave}, 1")
        k(f"s_lshr_b32 s{sCt}, s{k.sWave}, 1")
        k(f"s_lshl_b32 s{sTT}, s{sTb}, 1")
        k(f"s_add_u32 s{sTT}, s{sTT}, s{sTh}")
        k(f"s_lshl_b32 s{sFl}, s{sTT}, 4")
        k(f"s_lshl_b32 s{T1}, s{sCb}, 1")
        k(f"s_add_u32 s{sFl}, s{sFl}, s{T1}")
        k(f"s_add_u32 s{sFl}, s{sFl}, s{sCt}")
        k(f"s_lshl_b32 s{sHo}, s{sFl}, 11")
        k(f"s_add_u32 s{sHo}, s{sHo}, {WS_HF:#x}")
        k(f"s_lshl_b32 s{sXo}, s{sTT}, 15")
        k(f"s_lshl_b32 s{T1}, s{sCb}, 7")
        k(f"s_add_u32 s{sXo}, s{sXo}, s{T1}")
        k(f"s_lshl_b32 s{T1}, s{sCt}, 6")
        k(f"s_add_u32 s{sXo}, s{sXo}, s{T1}")
        tr_base(k, vWa, vT0, natural=False)
        k(f"s_lshl_b32 s{T0}, s{sCt}, 10")
        k(f"v_add_u32 v{vWa}, s{T0}, v{vWa}")
        k(f"s_lshl_b32 s{T0}, s{sTh}, 12")
        k(f"v_add_u32 v{vAa}, s{T0}, v{vL16}")
        wins = sorted({a >> 16 for a in S.addr.values()})
        Ww = Win(k, vWa, wins); Aw = Win(k, vAa, wins)
        for i in range(16): k(f"v_mov_b32 v{vAcc+i}, 0")
        if mode == 3:
            k(f"v_and_b32 v{vT0}, 31, v{vLane}")
            k(f"v_lshlrev_b32 v{vT0}, 6, v{vT0}")
            k(f"v_lshrrev_b32 v{vT2}, 5, v{vLane}")
            k(f"v_lshl_add_u32 v{vT0}, v{vT2}, 3, v{vT0}")
            k(f"s_lshl_b32 s{T0}, s{k.sWave}, 11")
            k(f"s_add_u32 s{T0}, s{T0}, {XR}")
            k(f"v_add_u32 v{vT0}, s{T0}, v{vT0}")
            k(f"v_bfe_u32 v{vT2}, v{vLane}, 2, 2")
            for p in range(4):
                k(f"v_xor_b32 v{vE+p}, {p}, v{vT2}")
                k(f"v_lshl_add_u32 v{vE+p}, v{vE+p}, 4, v{vT0}")
        else:
            k(f"v_and_b32 v{vT0}, 31, v{vLane}")
            k(f"v_lshlrev_b32 v{vT0}, 10, v{vT0}")
            k(f"v_lshrrev_b32 v{vT2}, 5, v{vLane}")
            k(f"v_lshl_add_u32 v{vT0}, v{vT2}, 4, v{vT0}")
        if first:
            k.ptrs_ready()
            if not last: nonce_fetch(k, vW[0])
        if mode == 6:
            k.srd(sSX, k.ptr(KA_OUT), T*D*2)
            k(f"buffer_load_dwordx4 {vr(vR,4)}, v{vL16}, {WSr}, s{sHo} offen{LD}")
            k(f"buffer_load_dwordx4 {vr(vR+4,4)}, v{vL16}, {WSr}, s{sHo} offen offset:1024{LD}")
        if not first:
            k(f"s_cmp_lg_u32 s{k.sWave}, {PW}")
            k(f"s_cbranch_scc1 {k.L('nopoll')}")
            if mode == 6:
                k(f"s_cmp_lt_u32 s{k.sJ}, 28")
                k(f"s_cbranch_scc1 {k.L('nolong')}")
                k(f"s_lshl_b32 s{T0}, s{sTb}, 3")
                k(f"s_add_u32 s{T0}, s{T0}, {FL5}")
                poll(k, "poll0", T0, vT1, vT2, n=1, sleep=8, pipe=False)
                k.label("nolong")
            if mode == 3:
                k(f"s_lshl_b32 s{T0}, s{k.sX}, 5")
                k(f"s_add_u32 s{T0}, s{T0}, {FL2}")
                rep_off(k, T0, k.sJ, R2)
            else:
                k(f"s_lshl_b32 s{T0}, s{sTb}, 3")
                k(f"s_add_u32 s{T0}, s{T0}, {FL5}")
                rep_off(k, T0, sCb, R5)
            poll(k, "poll", T0, vT1, vT2, n=32 if mode == 3 else 7)
            k.label("nopoll")
            k(f"s_barrier")
            k.stamp("ready")
        def reads(u):
            b = u & 1; l = []
            for i in range(4):
                l.append(f"ds_read_b128 {vr(vA[b]+4*i,4)}, {Aw.at(S.addr[('A',u)] + i*1024)}")
                l.append(f"ds_read_b64_tr_b16 {vr(vW[b]+4*i,2)}, {Ww.at(S.addr[('W',u)] + i*2048)}")
                l.append(f"ds_read_b64_tr_b16 {vr(vW[b]+4*i+2,2)}, {Ww.at(S.addr[('W',u)] + i*2048 + 512)}")
            return l
        def comp(u):
            b = u & 1
            return [f"v_mfma_f32_32x32x16_bf16 {vr(vAcc,16)}, {vr(vW[b]+4*i,4)}, {vr(vA[b]+4*i,4)}, {vr(vAcc,16)}" for i in range(4)]
        G = S.group
        for u in range(N):
            if u % G == 0:
                k(f"s_barrier")
                if u == 0: k.stamp("data")
            rd = reads(u)
            if u == 1 and mode == 3:
                rd += [f"ds_read_b64 {vr(vR+2*p,2)}, v{vE+p}" for p in range(4)]
            if u == 0 or u % G == 0:
                interleave(k, comp(u-1) if u else [], rd, per=4)
            else:
                cp = comp(u-1)
                for i in range(4):
                    k.many(rd[3*i:3*i+3])
                    k(f"s_waitcnt lgkmcnt({min(15, 9 - 3*i + 3*(i+1))})")
                    k(cp[i])
                k.many(rd[12:])
            if u < N-1 and (u+1) % G == 0: k(f"s_waitcnt lgkmcnt(0)")
            if u == 3:
                if mode == 6: k(f"s_waitcnt vmcnt(0)")
                for r in range(8):
                    k(f"v_lshlrev_b32 v{vE+2*r}, 16, v{vR+r}")
                    k(f"v_and_b32 v{vE+2*r+1}, 0xffff0000, v{vR+r}")
        last_c = comp(N-1)
        for i in range(4):
            k(f"s_waitcnt lgkmcnt({9-3*i})")
            k(last_c[i])
        if not last: k(f"s_barrier")
        k.stamp("loopend")
        k(f"s_nop {10 if last else 9}")
        for r in range(16): k(f"v_add_f32 v{vAcc+r}, v{vAcc+r}, v{vE+r}")
        for r in range(8): k(f"v_cvt_pk_bf16_f32 v{vR+r}, v{vAcc+2*r}, v{vAcc+2*r+1}")
        if mode == 3:
            k(f"buffer_store_dwordx4 {vr(vR,4)}, v{vL16}, {WSr}, s{sHo} offen{SC}")
            k(f"buffer_store_dwordx4 {vr(vR+4,4)}, v{vL16}, {WSr}, s{sHo} offen offset:1024{SC}")
            vS = vW[0]
            k(f"v_add_f32 v{vS}, v{vAcc}, v{vAcc+1}")
            k(f"v_mul_f32 v{vS+1}, v{vAcc}, v{vAcc}")
            k(f"v_add_f32 v{vS+2}, v{vAcc+2}, v{vAcc+3}")
            k(f"v_mul_f32 v{vS+3}, v{vAcc+1}, v{vAcc+1}")
            for r in range(2, 16):
                if r >= 4: k(f"v_add_f32 v{vS+2*(r&1)}, v{vS+2*(r&1)}, v{vAcc+r}")
                k(f"v_fmac_f32 v{vS+1+2*(r&1)}, v{vAcc+r}, v{vAcc+r}")
            k(f"v_add_f32 v{vS}, v{vS}, v{vS+2}")
            k(f"v_add_f32 v{vS+1}, v{vS+1}, v{vS+3}")
            half_combine(k, [vS, vS+1], [vT1, vT2])
            k(f"v_lshlrev_b32 v{vT0}, 3, v{vLane}")
            k(f"s_lshl_b32 s{T0}, s{sFl}, 8")
            k(f"s_add_u32 s{T0}, s{T0}, {WS_HS:#x}")
            k(f"s_mov_b32 exec_hi, 0")
            k(f"buffer_store_dwordx2 {vr(vS,2)}, v{vT0}, {WSr}, s{T0} offen{SC}")
            k(f"s_mov_b32 exec_hi, -1")
            k.stamp("stored")
            if not last:
                k(f"s_lshl_b32 s{sFl}, s{sTb}, 3")
                k(f"s_add_u32 s{sFl}, s{sFl}, s{sCb}")
                k(f"s_add_u32 s{sFl}, s{sFl}, {FL3}")
                publish(k, sFl, vT0, vT2, R3)
                k.stamp("flag")
        else:
            k(f"s_nop 1")
            for m_ in range(2):
                k(f"v_permlane32_swap_b32 v{vR+4*m_}, v{vR+4*m_+2}")
                k(f"v_permlane32_swap_b32 v{vR+4*m_+1}, v{vR+4*m_+3}")
            k(f"buffer_store_dwordx4 {vr(vR,4)}, v{vT0}, {sr(sSX,4)}, s{sXo} offen")
            k(f"buffer_store_dwordx4 {vr(vR+4,4)}, v{vT0}, {sr(sSX,4)}, s{sXo} offen offset:32")
            k.stamp("stored")
        k(f"s_branch {k.L('end')}")
        k.label("idle")
        if first and not last:
            k.ptrs_ready()
            nonce_publish(k, vW[0])
            nonce_fetch(k, vW[0], "nf2")
        if not first: k(f"s_barrier")
        if last: k(f"s_endpgm")
        else:
            for _ in range(S.NB+2): k(f"s_barrier")
        k.label("end")
        k.reset(m)

    def l_setup(self, k):
        mode = self.mode; T0, T1 = k.sT0, k.sT1; sLw = k.sLw
        k.pfx = f"p{mode}l_"
        self.roles(k)
        self.sSW = k.s(4, 4); self.sAo = k.s(); self.sWo = k.s(); self.sM = k.s(); self.sRot = k.s()
        self.vWd = k.v(2); self.vT = k.v(2) if mode == 3 else k.vLt
        vT = self.vT
        k(f"s_lshl_b32 s{self.sRot}, s{T1}, 1")
        k(f"s_add_u32 s{self.sRot}, s{self.sRot}, s{self.sCb}")
        k(f"s_and_b32 s{self.sRot}, s{self.sRot}, {7 if env('P36_ROT', 1) else 0}")
        if mode == 6:
            k(f"s_mul_i32 s{self.sRot}, s{self.sRot}, 7")
            k(f"s_lshr_b32 s{self.sRot}, s{self.sRot}, 2")
        k(f"v_lshrrev_b32 v{vT}, 2, v{k.vLane}")
        k(f"v_lshlrev_b32 v{vT}, 10, v{vT}")
        k(f"v_and_b32 v{vT+1}, 3, v{k.vLane}")
        k(f"v_lshl_add_u32 v{self.vWd}, v{vT+1}, 4, v{vT}")
        k(f"v_add_u32 v{self.vWd+1}, 64, v{self.vWd}")
        k(f"v_add_u32 v{self.vWd}, 1024, v{self.vWd}")
        k(f"s_lshr_b32 s{T0}, s{sLw}, 1")
        k(f"s_lshl_b32 s{T1}, s{self.sTb}, 1")
        k(f"s_add_u32 s{T0}, s{T0}, s{T1}")
        k(f"s_mul_i32 s{self.sAo}, s{T0}, {self.NKS*1024}")
        k(f"s_and_b32 s{T0}, s{sLw}, 1")
        k(f"s_lshl_b32 s{T0}, s{T0}, 11")
        k(f"s_add_u32 s{self.sAo}, s{self.sAo}, s{T0}")
        k(f"s_add_u32 s{self.sAo}, s{self.sAo}, {(WS_OF if mode == 3 else WS_UF):#x}")
        k(f"s_lshl_b32 s{self.sM}, s{sLw}, 11")
        k(f"s_lshl_b32 s{self.sWo}, s{sLw}, 14")
        k(f"s_lshl_b32 s{T0}, s{self.sCb}, 7")
        k(f"s_add_u32 s{self.sWo}, s{self.sWo}, s{T0}")
    def l_srd(self, k):
        k.srd(self.sSW, k.ptr(KA_WO if self.mode == 3 else KA_WOUT), self.NKS*16*1024, bias=1024)
    def issue(self, k, kind, u, a, LD):
        T0 = k.sT0; N = self.N
        k(f"s_add_u32 s{T0}, s{self.sRot}, {u}")
        if N == 8: k(f"s_and_b32 s{T0}, s{T0}, 7")
        else:
            k(f"s_sub_u32 s{k.sT1}, s{T0}, {N}")
            k(f"s_cselect_b32 s{T0}, s{T0}, s{k.sT1}")
        k(f"s_add_u32 m0, s{self.sM}, {a}")
        if kind == 'W':
            k(f"s_lshl_b32 s{T0}, s{T0}, 16")
            k(f"s_add_u32 s{T0}, s{T0}, s{self.sWo}")
            k(f"buffer_load_dwordx4 v{self.vWd}, {sr(self.sSW,4)}, s{T0} offen lds")
            k(f"buffer_load_dwordx4 v{self.vWd+1}, {sr(self.sSW,4)}, s{T0} offen offset:1024 lds")
        else:
            k(f"s_lshl_b32 s{T0}, s{T0}, 12")
            k(f"s_add_u32 s{T0}, s{T0}, s{self.sAo}")
            k(f"buffer_load_dwordx4 v{k.vL16}, {sr(k.sWS,4)}, s{T0} offen{LD} lds")
            k(f"buffer_load_dwordx4 v{k.vL16}, {sr(k.sWS,4)}, s{T0} offen offset:1024{LD} lds")
    def stage_regs(self, k):
        m = k.mark()
        self.l_setup(k); self.l_srd(k)
        out = []
        for u in range(self.N):
            def f(u=u, sRot=self.sRot, sWo=self.sWo, vWd=self.vWd, sSW=self.sSW):
                T0 = k.sT0
                k(f"s_add_u32 s{T0}, s{sRot}, {u}")
                k(f"s_sub_u32 s{k.sT1}, s{T0}, {self.N}")
                k(f"s_cselect_b32 s{T0}, s{T0}, s{k.sT1}")
                k(f"s_lshl_b32 s{T0}, s{T0}, 16")
                k(f"s_add_u32 s{T0}, s{T0}, s{sWo}")
                k(f"buffer_load_dwordx4 {vr(k.vStage+16+8*u,4)}, v{vWd}, {sr(sSW,4)}, s{T0} offen")
                k(f"buffer_load_dwordx4 {vr(k.vStage+16+8*u+4,4)}, v{vWd+1}, {sr(sSW,4)}, s{T0} offen offset:1024")
            out.append(f)
        self.staged = True
        return out
    staged = False
    def mid(self, k):
        k(f"s_cmp_ge_u32 s{k.sJ}, 28")
        k(f"s_cbranch_scc1 {k.L('nomid')}")
        k(f"s_barrier")
        k.label("nomid")
    def l_pre(self, k):
        k.reset(k.lbase)
        self.plan(False)
        self.l_setup(k); self.l_srd(k)
        if self.staged:
            vD = k.v()
            k(f"v_add_u32 v{vD}, s{self.sM}, v{k.vL16}")
            Wn = Win(k, vD, [0, 1])
            k(f"s_waitcnt vmcnt(0)")
            for kd, u, a in self.S.pre:
                if u == env("P6_SPLIT", 8): self.mid(k)
                for i in range(2):
                    ad = Wn.at(a + i*1024).split(" ")
                    k(f"ds_write_b128 {ad[0]}, {vr(k.vStage+16+8*u+4*i,4)} {ad[1]}")
            k(f"s_waitcnt lgkmcnt(0)")
        else:
            if self.mode == 6: self.mid(k)
            for kd, u, a in self.S.pre: self.issue(k, kd, u, a, "")
    def xres(self, k):
        T0, T1 = k.sT0, k.sT1; vT = self.vT; sLw = k.sLw
        sSX = k.s(4, 4); vX = k.v()
        k.srd(sSX, k.ptr(KA_X), T*D*2)
        k(f"v_lshrrev_b32 v{vX}, 4, v{k.vLane}")
        k(f"v_xor_b32 v{vX}, v{vT+1}, v{vX}")
        k(f"v_lshl_add_u32 v{vX}, v{vX}, 4, v{vT}")
        k(f"s_lshl_b32 s{T0}, s{self.sTb}, 16")
        k(f"s_and_b32 s{T1}, s{sLw}, 1")
        k(f"s_lshl_b32 s{T1}, s{T1}, 15")
        k(f"s_add_u32 s{T0}, s{T0}, s{T1}")
        k(f"s_lshl_b32 s{T1}, s{self.sCb}, 7")
        k(f"s_add_u32 s{T0}, s{T0}, s{T1}")
        k(f"s_lshr_b32 s{T1}, s{sLw}, 1")
        k(f"s_lshl_b32 s{T1}, s{T1}, 6")
        k(f"s_add_u32 m0, s{self.sM}, {self.XR}")
        k(f"s_add_u32 s{T0}, s{T0}, s{T1}")
        k(f"buffer_load_dwordx4 v{vX}, {sr(sSX,4)}, s{T0} offen lds")
        k(f"s_add_u32 m0, m0, 1024")
        k(f"s_add_u32 s{T0}, s{T0}, 16384")
        k(f"buffer_load_dwordx4 v{vX}, {sr(sSX,4)}, s{T0} offen lds")
    def l(self, k, first, last, next_pre):
        LD = "" if first else SCOPE_LD
        if first:
            self.plan(True)
            self.l_setup(k); k.ptrs_ready(); self.l_srd(k)
        k.pfx = f"p{self.mode}l_"
        if self.mode == 3:
            self.xres(k)
            if not first: k(f"s_barrier")
        if not first: k(f"s_barrier")
        run_sched(k, self.S, lambda kd, u, a: self.issue(k, kd, u, a, LD), {'W': 2, 'A': 2})
        if not last:
            k(f"s_barrier")
            next_pre(k)
            k(f"s_barrier")
```

```python
from base import *
from sched import Sched, run_sched

class P4:
    N = 8; SCR = 9*16384
    staged = False
    def plan(self, first):
        slots = [i*16384 for i in range(9)]
        if first or not self.staged:
            self.S = Sched(8, slots, 0 if first else 6, 4, 4, look=3)
        else:
            self.S = Sched(8, slots, env("P4_PW", 5), 4, 4, look=3, wreg=True, avoid=lambda u, a: u >= env("P4_AV", 99) and a < 65536)
    def roles(self, k):
        self.sRb = k.s(); self.sNb = k.s()
        k(f"s_lshl_b32 s{k.sT0}, s{k.sX}, 1")
        k(f"s_and_b32 s{k.sT1}, s{k.sJ}, 1")
        k(f"s_add_u32 s{self.sRb}, s{k.sT0}, s{k.sT1}")
        k(f"s_lshr_b32 s{self.sNb}, s{k.sJ}, 1")

    def c(self, k, first, last):
        k.pfx = "p4c_"; m = k.mark()
        self.plan(first); S = self.S; N = self.N; SCR = self.SCR
        SC = "" if last else SCOPE_ST
        LD = "" if first else SCOPE_LD
        T0, T1 = k.sT0, k.sT1; WSr = sr(k.sWS, 4); vL16 = k.vL16; vLane = k.vLane
        if first and not last: k.ptrs_ready()
        k(f"s_cmp_ge_u32 s{k.sJ}, 28")
        k(f"s_cbranch_scc1 {k.L('end')}")
        self.roles(k)
        sNb = self.sNb
        sTl = k.s(); sHf = k.s(); sTT = k.s(); sScr = k.s(); sC0 = k.s(); sPs = k.s(); sFl = k.s()
        vT0 = k.v(); vT1 = k.v(); vT2 = k.v(2, 2); vT3 = vT2+1
        vSum = k.v(2, 2); vSq = vSum+1
        vWa = k.v(); vAa = k.v()
        k(f"s_and_b32 s{sTl}, s{k.sWave}, 3")
        k(f"s_lshr_b32 s{sHf}, s{k.sWave}, 2")
        k(f"s_lshl_b32 s{sTT}, s{self.sRb}, 2")
        k(f"s_add_u32 s{sTT}, s{sTT}, s{sTl}")
        k(f"s_lshl_b32 s{sScr}, s{k.sWave}, 10")
        k(f"s_add_u32 s{sScr}, s{sScr}, {SCR}")
        tr_base(k, vWa, vT0, natural=False)
        k(f"s_lshl_b32 s{T0}, s{sHf}, 11")
        k(f"v_add_u32 v{vWa}, s{T0}, v{vWa}")
        k(f"s_lshl_b32 s{T0}, s{sTl}, 12")
        k(f"v_add_u32 v{vAa}, s{T0}, v{vL16}")
        Ww = Win(k, vWa, sorted({a >> 16 for (kd, u), a in S.addr.items() if kd == 'W'}))
        Aw = Win(k, vAa, sorted({a >> 16 for (kd, u), a in S.addr.items() if kd == 'A'}))
        vW = [k.v(32, 4), k.v(32, 4)]
        vA = [k.v(16, 4), k.v(16, 4)]
        vAcc = k.v(32, 4)
        vCs = k.v(4, 4)
        vHS = k.v(8, 4)
        for i in range(32): k(f"v_mov_b32 v{vAcc+i}, 0")
        k(f"s_lshr_b32 s{T0}, s{sNb}, 1")
        k(f"s_lshl_b32 s{T0}, s{T0}, 6")
        k(f"s_add_u32 s{T0}, s{T0}, s{sTT}")
        k(f"s_lshl_b32 s{T0}, s{T0}, 1")
        k(f"s_and_b32 s{T1}, s{sNb}, 1")
        k(f"s_add_u32 s{sFl}, s{T0}, s{T1}")
        if first and last: k.ptrs_ready()
        if first:
            nonce_publish(k, vW[0])
            nonce_fetch(k, vW[0])
        if not first:
            k(f"s_cmp_lg_u32 s{k.sWave}, {PW}")
            k(f"s_cbranch_scc1 {k.L('nopoll')}")
            k(f"s_lshl_b32 s{T0}, s{self.sRb}, 4")
            k(f"s_add_u32 s{T0}, s{T0}, {FL3}")
            rep_off(k, T0, sNb, R3)
            poll(k, "poll", T0, vT0, vT2, n=16)
            k.label("nopoll")
            k(f"s_barrier")
            k.stamp("ready")
        def reads(u):
            b = u & 1; l = []
            for i in range(4):
                l.append(f"ds_read_b128 {vr(vA[b]+4*i,4)}, {Aw.at(S.addr[('A',u)] + i*1024)}")
                for c in range(2):
                    o = S.addr[('W',u)] + i*4096 + c*1024
                    l.append(f"ds_read_b64_tr_b16 {vr(vW[b]+8*i+4*c,2)}, {Ww.at(o)}")
                    l.append(f"ds_read_b64_tr_b16 {vr(vW[b]+8*i+4*c+2,2)}, {Ww.at(o + 512)}")
            return l
        def comp(u):
            b = u & 1
            return [f"v_mfma_f32_32x32x16_bf16 {vr(vAcc+16*c,16)}, {vr(vW[b]+8*i+4*c,4)}, {vr(vA[b]+4*i,4)}, {vr(vAcc+16*c,16)}"
                    for i in range(4) for c in range(2)]
        for u in range(N):
            k(f"s_barrier")
            if u == 0: k.stamp("data")
            interleave(k, comp(u-1) if u else [], reads(u), per=env('P4_PER', 3))
            k(f"s_waitcnt lgkmcnt(0)")
        k.many(comp(N-1))
        k.stamp("loopend")
        k(f"s_lshl_b32 s{T0}, s{sHf}, 8")
        k(f"s_add_u32 s{T0}, s{T0}, {SCR}")
        k(f"v_lshrrev_b32 v{vT2}, 5, v{vLane}")
        k(f"v_lshl_add_u32 v{vT2}, v{vT2}, 4, s{T0}")
        k(f"s_lshl_b32 s{T0}, s{sTl}, 8")
        k(f"s_add_u32 s{T0}, s{T0}, {SCR + 512}")
        k(f"v_and_b32 v{vT1}, 31, v{vLane}")
        k(f"v_lshl_add_u32 v{vT1}, v{vT1}, 3, s{T0}")
        C0 = -2*0.7978845608028654*1.4426950408889634
        k(f"v_mov_b32 v{vHS+2}, {f32(C0):#x}")
        k(f"v_mov_b32 v{vHS+3}, {f32(C0*0.044715):#x}")
        if env("P4_PRIO", 0):
            k(f"s_cmp_lg_u32 s{sHf}, 0")
            k(f"s_cbranch_scc1 {k.L('noprio')}")
            k(f"s_setprio 2")
            k.label("noprio")
        k(f"s_barrier")
        vE = vW[0]
        k(f"ds_read_b64 {vr(vHS,2)}, v{vT1}")
        for c in range(2):
            for g in range(4):
                k(f"ds_read_b128 {vr(vE+16*c+4*g,4)}, v{vT2} offset:{c*128 + 32*g}")
        p2 = lambda r: vr(r, 2)
        vab, vcc_ = vHS, vHS+2
        LO = "op_sel_hi:[1,0]"
        k(f"s_waitcnt lgkmcnt(8)")
        for r in range(0, 32, 2): k(f"v_pk_mul_f32 {p2(vAcc+r)}, {p2(vAcc+r)}, {p2(vab)} {LO}")
        vTm = vW[1]; vP = vA[0]
        for r in range(0, 32, 2):
            if r == 0: k(f"s_waitcnt lgkmcnt(0)")
            k(f"v_pk_fma_f32 {p2(vAcc+r)}, {p2(vE+r)}, {p2(vab)}, {p2(vAcc+r)} op_sel:[0,1,0] op_sel_hi:[1,1,1]")
        for r in range(0, 32, 2):
            k(f"v_pk_mul_f32 {p2(vTm+r)}, {p2(vAcc+r)}, {p2(vAcc+r)}")
        for r in range(0, 32, 2):
            k(f"v_pk_fma_f32 {p2(vTm+r)}, {p2(vTm+r)}, {p2(vcc_)}, {p2(vcc_)} op_sel:[0,1,0] op_sel_hi:[1,1,0]")
        for r in range(0, 32, 2):
            k(f"v_pk_mul_f32 {p2(vTm+r)}, {p2(vTm+r)}, {p2(vAcc+r)}")
        for r in range(32): k(f"v_exp_f32 v{vTm+r}, v{vTm+r}")
        for r in range(0, 32, 2):
            k(f"v_pk_add_f32 {p2(vTm+r)}, {p2(vTm+r)}, 1.0 op_sel_hi:[1,0]")
        for r in range(32): k(f"v_rcp_f32 v{vTm+r}, v{vTm+r}")
        for r in range(0, 32, 2):
            k(f"v_pk_mul_f32 {p2(vAcc+r)}, {p2(vAcc+r)}, {p2(vTm+r)}")
        k(f"s_cmp_eq_u32 s{sHf}, 0")
        k(f"s_cbranch_scc1 {k.L('z2')}")
        k(f"s_mul_i32 s{T0}, s{sTT}, {56*1024}")
        k(f"s_lshl_b32 s{T1}, s{sNb}, 12")
        k(f"s_add_u32 s{T0}, s{T0}, s{T1}")
        k(f"s_add_u32 s{T0}, s{T0}, {WS_Z1F:#x}")
        for q in range(4):
            for r in range(4):
                k(f"v_cvt_pk_bf16_f32 v{vP+4*q+r}, v{vAcc+8*q+2*r}, v{vAcc+8*q+2*r+1}")
            k(f"buffer_store_dwordx4 {vr(vP+4*q,4)}, v{vL16}, {WSr}, s{T0} offen offset:{q*1024}{SC}")
        if last: k(f"s_endpgm")
        else:
            k(f"s_branch {k.L('flag')}")
        k.label("z2")
        vS2 = vHS+4; vQ2 = vHS+6
        k(f"v_pk_add_f32 {p2(vS2)}, {p2(vAcc)}, {p2(vAcc+2)}")
        k(f"v_pk_mul_f32 {p2(vQ2)}, {p2(vAcc)}, {p2(vAcc)}")
        k(f"v_pk_fma_f32 {p2(vQ2)}, {p2(vAcc+2)}, {p2(vAcc+2)}, {p2(vQ2)}")
        for r in range(4, 32, 2):
            k(f"v_pk_add_f32 {p2(vS2)}, {p2(vS2)}, {p2(vAcc+r)}")
            k(f"v_pk_fma_f32 {p2(vQ2)}, {p2(vAcc+r)}, {p2(vAcc+r)}, {p2(vQ2)}")
        vGr = vCs
        k(f"v_add_f32 v{vGr}, v{vS2}, v{vS2+1}")
        k(f"v_add_f32 v{vGr+1}, v{vQ2}, v{vQ2+1}")
        k(f"v_mov_b32 v{vGr+2}, s{k.sNon}")
        k(f"v_mov_b32 v{vGr+3}, s{k.sNon+1}")
        half_combine(k, [vGr, vGr+1], [vT0, vT1])
        k(f"s_mul_i32 s{sPs}, s{sTT}, {14*512}")
        k(f"s_add_u32 s{sPs}, s{sPs}, {WS_PS:#x}")
        k(f"s_lshl_b32 s{T0}, s{sNb}, 9")
        k(f"s_add_u32 s{T0}, s{T0}, s{sPs}")
        k(f"s_mov_b32 exec_hi, 0")
        k(f"buffer_store_dwordx4 {vr(vGr,4)}, v{vL16}, {WSr}, s{T0} offen{SCOPE_PL}")
        k(f"s_mov_b32 exec_hi, -1")
        k(f"s_setprio 0")
        k.stamp("pub")
        vG = vW[0]
        k(f"v_bfe_u32 v{vT2}, v{vLane}, 2, 3")
        k(f"v_lshlrev_b32 v{vT2}, 8, v{vT2}")
        k(f"v_lshrrev_b32 v{vT1}, 5, v{vLane}")
        k(f"v_lshl_add_u32 v{vT2}, v{vT1}, 6, v{vT2}")
        k(f"v_and_b32 v{vT1}, 3, v{vLane}")
        k(f"v_lshl_add_u32 v{vT2}, v{vT1}, 4, v{vT2}")
        k(f"s_lshl_b32 s{T0}, s{sFl}, 12")
        k(f"s_add_u32 s{T0}, s{T0}, {WS_Z2I:#x}")
        k(f"s_mov_b32 s{k.sCnt}, 100000")
        k(f"s_add_u32 s{sC0}, s{sPs}, 4096")
        sM = k.s(14, 2)
        for i in range(7): k(f"s_mov_b64 {sr(sM+2*i,2)}, -1")
        k.label("spoll")
        k(f"s_sleep {env('PS_SLEEP', 4)}")
        for i in range(7):
            k(f"s_mov_b64 exec, {sr(sM+2*i,2)}")
            k(f"s_cbranch_execz {k.L(f'sk{i}')}")
            k(f"buffer_load_dwordx4 {vr(vG+4*i,4)}, v{vL16}, {WSr}, s{sPs if i < 4 else sC0} offen offset:{(i%4)*1024}{SCOPE_PL}")
            k.label(f"sk{i}")
        k(f"s_mov_b64 exec, -1")
        k(f"s_sub_u32 s{k.sCnt}, s{k.sCnt}, 1")
        k(f"s_cbranch_scc1 {k.L('spolldone')}")
        k(f"s_waitcnt vmcnt(0)")
        for i in range(7):
            k(f"v_cmp_ne_u64 {sr(sM+2*i,2)}, {sr(k.sNon,2)}, {vr(vG+4*i+2,2)}")
        k(f"s_or_b64 vcc, {sr(sM,2)}, {sr(sM+2,2)}")
        for i in range(2, 7):
            k(f"s_or_b64 vcc, vcc, {sr(sM+2*i,2)}")
        k(f"s_cbranch_scc1 {k.L('spoll')}")
        k.label("spolldone")
        k(f"s_waitcnt vmcnt(0)")
        k.stamp("got")
        for i in range(1, 7):
            k(f"v_pk_add_f32 {p2(vG)}, {p2(vG)}, {p2(vG+4*i)}")
        half_combine(k, [vG, vG+1], [vT0, vT1])
        k(f"v_mul_f32 v{vG}, {f32(1/896):#x}, v{vG}")
        k(f"v_mul_f32 v{vG+1}, {f32(1/896):#x}, v{vG+1}")
        k(f"v_fma_f32 v{vG+1}, -v{vG}, v{vG}, v{vG+1}")
        k(f"v_max_f32 v{vG+1}, 0, v{vG+1}")
        k(f"v_add_f32 v{vG+1}, {f32(1e-5):#x}, v{vG+1}")
        k(f"v_rsq_f32 v{vG+2}, v{vG+1}")
        k(f"s_nop 0")
        k(f"v_mul_f32 v{vG}, v{vG}, v{vG+2}")
        k(f"v_mov_b32 v{vG+3}, v{vG+2}")
        k(f"v_sub_f32 v{vG}, 0, v{vG}")
        k(f"v_mov_b32 v{vG+1}, v{vG}")
        for q in range(4):
            for r in range(0, 8, 2):
                k(f"v_pk_fma_f32 {p2(vAcc+8*q+r)}, {p2(vAcc+8*q+r)}, {p2(vG+2)}, {p2(vG)}")
            for r in range(4):
                k(f"v_cvt_pk_bf16_f32 v{vP+4*q+r}, v{vAcc+8*q+2*r}, v{vAcc+8*q+2*r+1}")
            k(f"buffer_store_dwordx4 {vr(vP+4*q,4)}, v{vT2}, {WSr}, s{T0} offen offset:{(q>>1)*2048 + (q&1)*128}{SC}")
        k.stamp("stored")
        if not last:
            k.label("flag")
            k(f"s_lshr_b32 s{sFl}, s{sNb}, 1")
            k(f"s_lshl_b32 s{sFl}, s{sFl}, 4")
            k(f"s_add_u32 s{sFl}, s{sFl}, s{self.sRb}")
            k(f"s_lshl_b32 s{sFl}, s{sFl}, 1")
            k(f"s_and_b32 s{T1}, s{sNb}, 1")
            k(f"s_add_u32 s{sFl}, s{sFl}, s{T1}")
            k(f"s_add_u32 s{sFl}, s{sFl}, {FL4}")
            publish(k, sFl, vT0, vSum, R4)
            k.stamp("flag")
        k.label("end")
        k.reset(m)

    def l_setup(self, k, lite=False):
        T0, T1 = k.sT0, k.sT1; sLw = k.sLw
        k.pfx = "p4l_"
        self.roles(k)
        self.sSW = k.s(4, 4); self.sAo = k.s(); self.sWo = k.s(); self.sM = k.s(); self.sRot = k.s()
        vT = k.vLt
        if not lite: self.vWd = k.v(4)
        k(f"s_lshl_b32 s{self.sRot}, s{T1}, 2")
        k(f"s_add_u32 s{self.sRot}, s{self.sRot}, s{self.sNb}")
        k(f"s_and_b32 s{self.sRot}, s{self.sRot}, {7 if env('P4_ROT', 1) else 0}")
        k(f"s_lshl_b32 s{T0}, s{self.sRb}, 2")
        k(f"s_add_u32 s{T0}, s{T0}, s{sLw}")
        k(f"s_lshl_b32 s{self.sAo}, s{T0}, 15")
        k(f"s_add_u32 s{self.sAo}, s{self.sAo}, {WS_HF:#x}")
        if not lite:
            k(f"v_lshrrev_b32 v{vT}, 2, v{k.vLane}")
            k(f"v_mul_u32_u24 v{vT}, 3584, v{vT}")
            k(f"v_and_b32 v{vT+1}, 3, v{k.vLane}")
            k(f"v_lshl_add_u32 v{vT}, v{vT+1}, 4, v{vT}")
            for c in range(4):
                g = (1792 if c < 2 else 0) + (c & 1)*64
                k(f"v_add_u32 v{self.vWd+c}, {g - c*1024 + 4096}, v{vT}")
        k(f"s_mul_i32 s{self.sWo}, s{sLw}, {16*3584}")
        k(f"s_lshl_b32 s{T0}, s{self.sNb}, 7")
        k(f"s_add_u32 s{self.sWo}, s{self.sWo}, s{T0}")
        k(f"s_lshl_b32 s{self.sM}, s{sLw}, 12")
    def l_srd(self, k): k.srd(self.sSW, k.ptr(KA_WIN), D*F*2, bias=4096)
    def stage_regs(self, k):
        self.l_setup(k); self.l_srd(k)
        k(f"s_cmp_ge_u32 s{k.sJ}, 28")
        k(f"s_cbranch_scc1 {k.L('skipstage')}")
        T0 = k.sT0
        for u in range(8):
            k(f"s_add_u32 s{T0}, s{self.sRot}, {u}")
            k(f"s_and_b32 s{T0}, s{T0}, 7")
            k(f"s_mul_i32 s{T0}, s{T0}, {64*3584}")
            k(f"s_add_u32 s{T0}, s{T0}, s{self.sWo}")
            for c in range(4):
                k(f"buffer_load_dwordx4 {vr(k.vStage+16*u+4*c,4)}, v{self.vWd+c}, {sr(self.sSW,4)}, s{T0} offen offset:{c*1024}")
        if self.p6:
            k(f"s_branch {k.L('stagedone')}")
        k.label("skipstage")
        if self.p6:
            for f in self.p6.stage_regs(k): f()
            k.pfx = "p4l_"
            k.label("stagedone")
    def issue(self, k, kind, u, a, LD):
        T0 = k.sT0
        if kind == 'W' and self.staged:
            for c in range(4):
                ad = self.Wn.at(a + c*1024).split(" ")
                k(f"ds_write_b128 {ad[0]}, {vr(k.vStage+16*u+4*c,4)} {ad[1]}")
            return
        k(f"s_add_u32 s{T0}, s{self.sRot}, {u}")
        k(f"s_and_b32 s{T0}, s{T0}, 7")
        k(f"s_add_u32 m0, s{self.sM}, {a}")
        if kind == 'W':
            k(f"s_mul_i32 s{T0}, s{T0}, {64*3584}")
            k(f"s_add_u32 s{T0}, s{T0}, s{self.sWo}")
            for c in range(4):
                k(f"buffer_load_dwordx4 v{self.vWd+c}, {sr(self.sSW,4)}, s{T0} offen offset:{c*1024} lds")
        else:
            k(f"s_lshl_b32 s{T0}, s{T0}, 12")
            k(f"s_add_u32 s{T0}, s{T0}, s{self.sAo}")
            for i in range(4):
                k(f"buffer_load_dwordx4 v{k.vL16}, {sr(k.sWS,4)}, s{T0} offen offset:{i*1024}{LD} lds")
    def l_pre(self, k):
        k.reset(k.lbase)
        self.plan(False)
        self.l_setup(k, lite=self.staged)
        if not self.staged: self.l_srd(k)
        if self.staged:
            vD = k.v()
            k(f"v_add_u32 v{vD}, s{self.sM}, v{k.vL16}")
            self.Wn = Win(k, vD, [0, 1, 2])
        k(f"s_cmp_ge_u32 s{k.sJ}, 28")
        k(f"s_cbranch_scc1 {k.L('skippre')}")
        for kd, u, a in self.S.pre: self.issue(k, kd, u, a, "")
        if self.staged: k(f"s_waitcnt lgkmcnt(0)")
        k.label("skippre")
    p5 = None; p6 = None
    def l(self, k, first, last, next_pre):
        LD = "" if first else SCOPE_LD
        if first:
            self.plan(True)
            self.l_setup(k); k.ptrs_ready(); self.l_srd(k)
        st6 = self.p6.stage_regs(k) if self.p6 else []
        if self.p5: self.p5.l_setup(k); self.p5.l_srd(k); self.p5.early = 0
        k.pfx = "p4l_"
        k(f"s_cmp_ge_u32 s{k.sJ}, 28")
        k(f"s_cbranch_scc1 {k.L('idle')}")
        vSel = k.v(4, 4); vCs = k.v(4, 4); vF = k.vStage; vTr = k.v(); vTt = k.vLt
        sel16(k, vSel, vTt)
        for r in range(4): k(f"v_mov_b32 v{vCs+r}, 0")
        tr_base(k, vTr, vTt, natural=False)
        k(f"s_lshl_b32 s{k.sT0}, s{k.sLw}, 10")
        k(f"v_add_u32 v{vTr}, s{k.sT0}, v{vTr}")
        def cs_read(u):
            k(f"v_add_u32 v{vTt}, {self.S.addr[('W', u)]}, v{vTr}")
            for i in range(4):
                k(f"ds_read_b64_tr_b16 {vr(vF+4*i,2)}, v{vTt} offset:{i*4096}")
                k(f"ds_read_b64_tr_b16 {vr(vF+4*i+2,2)}, v{vTt} offset:{i*4096+512}")
        def colsum(u):
            k(f"s_waitcnt lgkmcnt(0)")
            for i in range(4):
                k(f"v_mfma_f32_16x16x32_bf16 {vr(vCs,4)}, {vr(vSel,4)}, {vr(vF+4*i,4)}, {vr(vCs,4)}")
        if not first: k(f"s_barrier")
        dumped = set(u for _, u, _ in self.S.pre)
        todo = list(range(len(st6)))
        def iss(kd, u, a):
            self.issue(k, kd, u, a, LD)
            if kd == 'W': dumped.add(u)
        safe = set(dumped)
        vH = k.vStage + 16
        def hs_fin():
            for j in range(4):
                k(f"v_add_f32 v{vH+j}, v{vH+j}, v{vH+4+j}")
                k(f"v_add_f32 v{vH+8+j}, v{vH+8+j}, v{vH+12+j}")
                k(f"v_add_f32 v{vH+j}, v{vH+j}, v{vH+8+j}")
            half_combine(k, [vH+j for j in range(4)], [vH+4+j for j in range(4)])
            for j in range(4): k(f"v_mov_b32 v{vH+4+j}, v{vH+j}")
            k(f"s_nop 1")
            for j in range(4): k(f"v_permlane16_swap_b32 v{vH+4+j}, v{vH+j}")
            k(f"s_nop 1")
            for j in range(4): k(f"v_add_f32 v{vH+j}, v{vH+j}, v{vH+4+j}")
            for j in (0, 2):
                k(f"v_mul_f32 v{vH+j}, {f32(1/512):#x}, v{vH+j}")
                k(f"v_mul_f32 v{vH+j+1}, {f32(1/512):#x}, v{vH+j+1}")
                k(f"v_fma_f32 v{vH+j+1}, -v{vH+j}, v{vH+j}, v{vH+j+1}")
                k(f"v_max_f32 v{vH+j+1}, 0, v{vH+j+1}")
                k(f"v_add_f32 v{vH+j+1}, {f32(1e-5):#x}, v{vH+j+1}")
                k(f"v_rsq_f32 v{vH+4+j}, v{vH+j+1}")
                k(f"s_nop 0")
                k(f"v_mul_f32 v{vH+5+j}, v{vH+j}, v{vH+4+j}")
                k(f"v_sub_f32 v{vH+5+j}, 0, v{vH+5+j}")
            k(f"s_lshl_b32 s{k.sT0}, s{k.sLw}, 8")
            k(f"s_add_u32 s{k.sT0}, s{k.sT0}, {self.SCR + 512}")
            k(f"v_and_b32 v{vH}, 15, v{k.vLane}")
            k(f"v_lshl_add_u32 v{vH}, v{vH}, 4, s{k.sT0}")
            k(f"ds_write_b128 v{vH}, {vr(vH+4,4)}")
        def extra(s, free, remaining):
            n = 0
            if s == 0:
                k(f"s_sub_u32 s{k.sT0}, s{self.sAo}, {WS_HF:#x}")
                k(f"s_lshr_b32 s{k.sT0}, s{k.sT0}, 3")
                k(f"s_add_u32 s{k.sT0}, s{k.sT0}, {WS_HS:#x}")
                for i in range(4):
                    k(f"buffer_load_dwordx4 {vr(vH+4*i,4)}, v{k.vL16}, {sr(k.sWS,4)}, s{k.sT0} offen offset:{i*1024}{LD}")
                n += 4
            if s == 4:
                hs_fin(); k(f"s_waitcnt lgkmcnt(0)")
            if s == 7:
                colsum(s)
                k(f"s_lshl_b32 s{k.sT0}, s{k.sLw}, 7")
                k(f"s_add_u32 s{k.sT0}, s{k.sT0}, {self.SCR}")
                k(f"v_lshl_add_u32 v{vTt}, v{k.vLane}, 2, s{k.sT0}")
                k(f"s_mov_b64 exec, 0xffff")
                k(f"s_nop 4")
                k(f"ds_write2_b32 v{vTt}, v{vCs}, v{vCs+1} offset0:0 offset1:16")
                k(f"s_mov_b64 exec, -1")
                k(f"s_waitcnt lgkmcnt(0)")
                k(f"s_barrier")
            for _ in range(env("P4_X6", 0) if s >= 4 else 0):
                if todo and (not self.staged or (todo[0]+2)//2 in safe):
                    st6[todo.pop(0)](); n += 2
            safe.update(dumped)
            if self.p5 and remaining == 0:
                while self.p5.early < self.p5.NW and (self.p5.early//2)*16384 in free:
                    self.p5.iw(k); self.p5.early += 1; n += 2
            if s < 7: colsum(s)
            return n
        run_sched(k, self.S, iss, {'W': 0 if self.staged else 4, 'A': 4}, extra, after_bar=cs_read)
        for v in todo: st6[v]()
        if st6 and not self.staged:
            k(f"s_branch {k.L('end')}")
        k.label("idle")
        if not self.staged:
            for f in st6: f()
        k.label("end")
        if not last: next_pre(k)
```

```python
from base import *

class P5:
    N = 32
    NW = 8; NZ = 6
    ZB = 65536
    G = env('P5_G', 2)
    EARLY = 0
    def roles(self, k):
        self.sTb = k.s(); self.sFb = k.s()
        k(f"s_lshl_b32 s{k.sT0}, s{k.sX}, 2")
        k(f"s_and_b32 s{k.sT1}, s{k.sJ}, 3")
        k(f"s_add_u32 s{self.sTb}, s{k.sT0}, s{k.sT1}")
        k(f"s_lshr_b32 s{self.sFb}, s{k.sJ}, 2")

    def c(self, k, first, last):
        k.pfx = "p5c_"; m = k.mark()
        N = self.N; ZB = self.ZB
        SC = "" if last else SCOPE_ST
        LD = "" if first else SCOPE_LD
        T0, T1 = k.sT0, k.sT1; WSr = sr(k.sWS, 4); vL16 = k.vL16; vLane = k.vLane
        if first and not last:
            k.ptrs_ready()
            vN = k.v(4, 2)
            nonce_publish(k, vN); nonce_fetch(k, vN)
        k(f"s_cmp_ge_u32 s{k.sJ}, 28")
        k(f"s_cbranch_scc1 {k.L('end')}")
        self.roles(k)
        sTb, sFb = self.sTb, self.sFb
        sTh = k.s(); sFt = k.s(); sUo = k.s(); sRw = k.s(); sRz = k.s(); sBo = k.s(); sFl = k.s(); sSB = k.s(4, 4)
        vT0 = k.v(4, 2); vT1 = vT0+1; vT2 = k.v()
        vWa0 = k.v(4); vZa0 = k.v(); vWa = k.v(4); vZa = k.v(); vBias = k.v()
        vZ1 = k.v(8, 4)
        vWf = [k.v(16, 4), k.v(16, 4)]
        vZf = [k.v(16, 4), k.v(16, 4)]
        vAcc = k.v(16, 4)
        vE = k.v(16, 4)
        k(f"s_and_b32 s{sTh}, s{k.sWave}, 1")
        k(f"s_lshr_b32 s{sFt}, s{k.sWave}, 1")
        k(f"s_lshl_b32 s{T0}, s{sTb}, 1")
        k(f"s_add_u32 s{T0}, s{T0}, s{sTh}")
        k(f"s_lshl_b32 s{sBo}, s{T0}, 6")
        k(f"s_mul_i32 s{sUo}, s{T0}, 28")
        k(f"s_lshl_b32 s{T1}, s{sFb}, 2")
        k(f"s_add_u32 s{T1}, s{T1}, s{sFt}")
        k(f"s_add_u32 s{sUo}, s{sUo}, s{T1}")
        k(f"s_lshl_b32 s{sUo}, s{sUo}, 11")
        k(f"s_lshl_b32 s{sFl}, s{sTb}, 3")
        k(f"s_add_u32 s{sFl}, s{sFl}, s{sFb}")
        k(f"s_add_u32 s{sFl}, s{sFl}, {FL5}")
        k(f"v_and_b32 v{vT2}, 31, v{vLane}")
        k(f"v_lshlrev_b32 v{vBias}, 1, v{vT2}")
        k(f"v_bfe_u32 v{vT0}, v{vLane}, 1, 3")
        k(f"v_lshrrev_b32 v{vT1}, 5, v{vLane}")
        k(f"v_xor_b32 v{vT0}, v{vT0}, v{vT1}")
        k(f"v_lshlrev_b32 v{vT2}, 7, v{vT2}")
        k(f"s_lshl_b32 s{T0}, s{sTh}, 12")
        k(f"v_add_u32 v{vT2}, s{T0}, v{vT2}")
        for i in range(4):
            k(f"v_xor_b32 v{vWa0+i}, {2*i}, v{vT0}")
            k(f"v_lshl_add_u32 v{vWa0+i}, v{vWa0+i}, 4, v{vT2}")
        k(f"v_lshlrev_b32 v{vZa0}, 9, v{vT1}")
        k(f"v_bfe_u32 v{vT0}, v{vLane}, 4, 1")
        k(f"v_lshl_add_u32 v{vZa0}, v{vT0}, 7, v{vZa0}")
        k(f"v_and_b32 v{vT0}, 1, v{vLane}")
        k(f"v_lshl_add_u32 v{vZa0}, v{vT0}, 6, v{vZa0}")
        k(f"v_bfe_u32 v{vT0}, v{vLane}, 2, 2")
        k(f"v_lshl_add_u32 v{vZa0}, v{vT0}, 4, v{vZa0}")
        k(f"v_bfe_u32 v{vT0}, v{vLane}, 1, 1")
        k(f"v_lshl_add_u32 v{vZa0}, v{vT0}, 3, v{vZa0}")
        k(f"s_lshl_b32 s{T0}, s{sFt}, 11")
        k(f"s_add_u32 s{T0}, s{T0}, {ZB}")
        k(f"v_add_u32 v{vZa0}, s{T0}, v{vZa0}")
        for i in range(16): k(f"v_mov_b32 v{vAcc+i}, 0")
        k(f"s_mov_b32 s{sRw}, 0"); k(f"s_mov_b32 s{sRz}, 0")
        if first and last: k.ptrs_ready()
        k.srd(sSB, k.ptr(KA_BSP), T*2)
        k(f"buffer_load_ushort v{vBias}, v{vBias}, {sr(sSB,4)}, s{sBo} offen")
        if not first:
            k(f"s_cmp_lg_u32 s{k.sWave}, {PW}")
            k(f"s_cbranch_scc1 {k.L('nopoll')}")
            k(f"s_lshl_b32 s{T0}, s{sFb}, 5")
            k(f"s_add_u32 s{T0}, s{T0}, {FL4}")
            rep_off(k, T0, k.sX, R4)
            poll(k, "poll", T0, vT2, vT0, n=32)
            k.label("nopoll")
            k(f"s_barrier")
            k.stamp("ready")
        def reads(b):
            l = []
            for ks in range(0 if "r" in env("P5_EXP", "") else 4):
                off = (ks >> 1)*8192 + (ks & 1)*1024
                l.append(f"ds_read_b128 {vr(vWf[b]+4*ks,4)}, v{vWa+ks}")
                l.append(f"ds_read_b64_tr_b16 {vr(vZf[b]+4*ks,2)}, v{vZa} offset:{off}")
                l.append(f"ds_read_b64_tr_b16 {vr(vZf[b]+4*ks+2,2)}, v{vZa} offset:{off + 256}")
            return l
        def comp(b):
            EXP = env("P5_EXP", "")
            if "n" in EXP: return ["s_nop 0"]*4
            if "h" in EXP:
                out = []
                for kp in range(2):
                    g = []
                    for i in range(2):
                        for j in range(2):
                            g.append(f"v_mfma_f32_16x16x32_bf16 {vr(vAcc+8*i+4*j,4)}, {vr(vZf[b]+8*kp+4*i,4)}, {vr(vWf[b]+8*kp+4*j,4)}, {vr(vAcc+8*i+4*j,4)}")
                    out += [g[:2], g[2:]]
                return out
            return [f"v_mfma_f32_32x32x16_bf16 {vr(vAcc,16)}, {vr(vZf[b]+4*ks,4)}, {vr(vWf[b]+4*ks,4)}, {vr(vAcc,16)}" for ks in range(4)]
        def addr():
            return ([f"v_add_u32 v{vWa+i}, s{sRw}, v{vWa0+i}" for i in range(4)] + [f"v_add_u32 v{vZa}, s{sRz}, v{vZa0}",
                    f"s_add_u32 s{sRw}, s{sRw}, 8192", f"s_and_b32 s{sRw}, s{sRw}, {self.NW*8192-1}",
                    f"s_add_u32 s{sRz}, s{sRz}, 16384", f"s_cmp_eq_u32 s{sRz}, {self.NZ*16384}", f"s_cselect_b32 s{sRz}, 0, s{sRz}"])
        def stage(b, firsts=False, extra=()):
            if self.G == 1 or b == 0: k(f"s_barrier")
            if firsts: k.stamp("data")
            interleave(k, [] if firsts else comp(1-b), reads(b), addr() + list(extra), per=4)
            k(f"s_waitcnt lgkmcnt(0)")
        k.many(addr())
        stage(0, firsts=True)
        k(f"s_mov_b32 s{k.sCnt}, {(N-2)//2 - 2}")
        k.label("loop")
        stage(1)
        stage(0, extra=[f"s_sub_u32 s{k.sCnt}, s{k.sCnt}, 1", f"s_cmp_lg_u32 s{k.sCnt}, 0"])
        k(f"s_cbranch_scc1 {k.L('loop')}")
        k(f"s_add_u32 s{T0}, s{sUo}, {WS_Z1F:#x}")
        for i in range(2):
            k(f"buffer_load_dwordx4 {vr(vZ1+4*i,4)}, v{vL16}, {WSr}, s{T0} offen offset:{i*1024}{LD}")
        stage(1); stage(0); stage(1); stage(0)
        stage(1)
        interleave(k, comp(1), [])
        if not last: k(f"s_barrier")
        k.stamp("loopend")
        k(f"s_waitcnt vmcnt(0)")
        k(f"v_lshlrev_b32 v{vBias}, 16, v{vBias}")
        k(f"s_add_u32 s{T0}, s{sUo}, {WS_UF:#x}")
        for r in range(8):
            k(f"v_lshlrev_b32 v{vE+2*r}, 16, v{vZ1+r}")
            k(f"v_and_b32 v{vE+2*r+1}, 0xffff0000, v{vZ1+r}")
        for r in range(16):
            k(f"v_add_f32 v{vAcc+r}, v{vAcc+r}, v{vBias}")
            k(f"v_mul_f32 v{vAcc+r}, v{vAcc+r}, v{vE+r}")
        for r in range(8):
            k(f"v_cvt_pk_bf16_f32 v{vZ1+r}, v{vAcc+2*r}, v{vAcc+2*r+1}")
        for m_ in range(2):
            k(f"buffer_store_dwordx4 {vr(vZ1+4*m_,4)}, v{vL16}, {WSr}, s{T0} offen offset:{m_*1024}{SC}")
        k.stamp("stored")
        if not last:
            publish(k, sFl, vT2, vT0, R5)
            k.stamp("flag")
        k.label("end")
        k.reset(m)

    def l_setup(self, k):
        T0, T1 = k.sT0, k.sT1; sLw = k.sLw
        k.pfx = "p5l_"
        self.roles(k)
        self.sSW = k.s(4, 4); self.sWo = k.s(); self.sZo = k.s(); self.sWm = k.s(); self.sZm = k.s()
        self.vWd = k.v(2); vT = k.vLt
        k(f"v_lshrrev_b32 v{vT}, 4, v{k.vLane}")
        k(f"v_and_b32 v{vT+1}, 7, v{k.vLane}")
        k(f"v_xor_b32 v{vT+1}, v{vT+1}, v{vT}")
        k(f"v_lshrrev_b32 v{vT}, 3, v{k.vLane}")
        k(f"v_lshlrev_b32 v{vT}, 12, v{vT}")
        k(f"v_lshl_add_u32 v{self.vWd}, v{vT+1}, 4, v{vT}")
        k(f"v_xor_b32 v{self.vWd+1}, 64, v{self.vWd}")
        k(f"v_add_u32 v{self.vWd+1}, {8*4096 - 1024}, v{self.vWd+1}")
        k(f"s_lshl_b32 s{self.sWo}, s{self.sTb}, 18")
        k(f"s_lshl_b32 s{T0}, s{sLw}, 16")
        k(f"s_add_u32 s{self.sWo}, s{self.sWo}, s{T0}")
        k(f"s_lshl_b32 s{self.sZo}, s{self.sFb}, 19")
        k(f"s_lshl_b32 s{T0}, s{sLw}, 12")
        k(f"s_add_u32 s{self.sZo}, s{self.sZo}, s{T0}")
        k(f"s_add_u32 s{self.sZo}, s{self.sZo}, {WS_Z2I:#x}")
        k(f"s_lshl_b32 s{self.sWm}, s{sLw}, 11")
        k(f"s_add_u32 s{self.sZm}, s{T0}, {self.ZB}")
        self.sZend = k.s(); self.sCw = k.s(); self.sCz = k.s(); self.sRk = k.s()
        ORD = env("P5_ORD", "xg" if self.EARLY else "xgf")
        k(f"s_lshl_b32 s{self.sCw}, s{k.sX}, 2" if "x" in ORD else f"s_mov_b32 s{self.sCw}, 0")
        if "f" in ORD: k(f"s_add_u32 s{self.sCw}, s{self.sCw}, s{self.sFb}")
        k(f"s_mov_b32 s{self.sCz}, s{self.sCw}")
        k(f"s_and_b32 s{self.sRk}, s{k.sJ}, {3 if 'g' in ORD else 0}")
        k(f"s_add_u32 s{self.sZend}, s{self.sZm}, {self.NZ*16384}")
    def l_srd(self, k): k.srd(self.sSW, k.ptr(KA_WSP), T*T*2)
    def stg(self, k, sC, sh, base):
        T0, T1 = k.sT0, k.sT1
        k(f"s_add_u32 s{T1}, s{sC}, s{self.sRk}")
        k(f"s_and_b32 s{T1}, s{T1}, 3")
        k(f"s_and_b32 s{T0}, s{sC}, 28")
        k(f"s_or_b32 s{T0}, s{T0}, s{T1}")
        k(f"s_lshl_b32 s{T0}, s{T0}, {sh}")
        k(f"s_add_u32 s{T0}, s{T0}, s{base}")
        k(f"s_add_u32 s{sC}, s{sC}, 1")
    def iw(self, k):
        k(f"s_mov_b32 m0, s{self.sWm}")
        self.stg(k, self.sCw, 7, self.sWo)
        k(f"buffer_load_dwordx4 v{self.vWd}, {sr(self.sSW,4)}, s{k.sT0} offen lds")
        k(f"buffer_load_dwordx4 v{self.vWd+1}, {sr(self.sSW,4)}, s{k.sT0} offen offset:1024 lds")
        k(f"s_add_u32 s{self.sWm}, s{self.sWm}, 8192")
        k(f"s_and_b32 s{self.sWm}, s{self.sWm}, {self.NW*8192-1}")
    def iz(self, k, LD):
        k(f"s_mov_b32 m0, s{self.sZm}")
        self.stg(k, self.sCz, 14, self.sZo)
        for i in range(4):
            k(f"buffer_load_dwordx4 v{k.vL16}, {sr(k.sWS,4)}, s{k.sT0} offen offset:{i*1024}{LD} lds")
        k(f"s_add_u32 s{self.sZm}, s{self.sZm}, 16384")
        k(f"s_sub_u32 s{k.sT0}, s{self.sZm}, {self.NZ*16384}")
        k(f"s_cmp_eq_u32 s{self.sZm}, s{self.sZend}")
        k(f"s_cselect_b32 s{self.sZm}, s{k.sT0}, s{self.sZm}")
    early = None
    def l_pre(self, k):
        if self.early is None:
            k.reset(k.lbase)
            self.l_setup(k); self.l_srd(k)
            self.early = 0
        k.pfx = "p5l_"
        k(f"s_cmp_ge_u32 s{k.sJ}, 28")
        k(f"s_cbranch_scc1 {k.L('skippre')}")
        self.npre = max(self.early, env('P5_PRE', 8))
        for _ in range(self.npre - self.early): self.iw(k)
        k.label("skippre")
    def l(self, k, first, last, next_pre):
        LD = "" if first else SCOPE_LD
        N, NW, NZ = self.N, self.NW, self.NZ
        if first:
            self.l_setup(k); k.ptrs_ready(); self.l_srd(k)
        k.pfx = "p5l_"
        k(f"s_cmp_ge_u32 s{k.sJ}, 28")
        k(f"s_cbranch_scc1 {k.L('end')}")
        if not first:
            k(f"s_barrier")
            k(f"s_barrier")
        G = self.G
        st = dict(nw=0 if first else self.npre, nz=0); issued = []
        def W(): self.iw(k); issued.append(('W', st['nw'])); st['nw'] += 1
        def Z(): self.iz(k, LD); issued.append(('Z', st['nz'])); st['nz'] += 1
        def waitfor(s):
            lastq = max(i for i, (kd, u) in enumerate(issued) if u <= s)
            return sum(2 if kd == 'W' else 4 for kd, u in issued[lastq+1:])
        def fill(s, budget):
            n = 0; want = 'Z'
            while n < budget:
                cw = st['nw'] < min(N, s + NW); cz = st['nz'] < min(N, s + NZ)
                if cw and (st['nw'] <= st['nz'] or not cz or want == 'W'): W(); want = 'Z'
                elif cz: Z(); want = 'W'
                else: break
                n += 1
        if st['nw'] == 0:
            for _ in range(G+1): W(); Z()
        else:
            for _ in range(4 if self.EARLY else G+1): Z()
        s = 0
        while not (st['nw'] == s + NW - G and st['nz'] == s + NZ - G and [x[0] for x in issued[-2*(NZ-G):]] == ['Z', 'W']*(NZ-G)):
            k(f"s_waitcnt vmcnt({waitfor(s+G-1)})"); k(f"s_barrier")
            fill(s, 4*G); s += G
            assert s < 20
        it = (N - st['nw'])//G
        wv = waitfor(s+G-1)
        k(f"s_mov_b32 s{k.sCnt}, {it}")
        k.label("loop")
        k(f"s_waitcnt vmcnt({wv})"); k(f"s_barrier")
        for _ in range(G): self.iz(k, LD); self.iw(k)
        k(f"s_sub_u32 s{k.sCnt}, s{k.sCnt}, 1")
        k(f"s_cmp_lg_u32 s{k.sCnt}, 0")
        k(f"s_cbranch_scc1 {k.L('loop')}")
        for _ in range(it):
            assert waitfor(s+G-1) == wv
            for _ in range(G):
                issued.append(('Z', st['nz'])); st['nz'] += 1; issued.append(('W', st['nw'])); st['nw'] += 1
            s += G
        while s < N:
            k(f"s_waitcnt vmcnt({waitfor(s+G-1)})"); k(f"s_barrier")
            fill(s, 4*G); s += G
        if not last: k(f"s_barrier")
        k.label("end")
        if not last: next_pre(k)
```

```python
import sys
from base import *
if env("P1N", 1): from p1n import P1
else: from p1 import P1
from p2 import P2
from p36 import Proj
from p4 import P4
if P5N: from p5n import P5
else: from p5 import P5
st = env("STAMP", 0) == 1
groups = [[int(c) for c in g] for g in env("GRP", "1,2,3,4,5,6").split(",")]
mk = {1: P1, 2: P2, 3: lambda: Proj(3), 4: P4, 5: P5, 6: lambda: Proj(6)}
NAME = "sequential_preLN__mha_block__mixer_gmlp__prompt_kernel"
ks = []
for gi, g in enumerate(groups):
    k = K(NAME if len(groups) == 1 else "ph" + "".join(map(str, g)) + "_kernel", stamps=st, kidx=gi)
    ph = [mk[p]() for p in g]
    d = dict(zip(g, ph))
    if env("REGSTAGE", 1):
        if 2 in d and 4 in d: d[2].p4 = d[4]; d[4].staged = True
        if 4 in d and 6 in d and env('ST6', 1): d[4].p6 = d[6]
        if 4 in d and 5 in d and env('EARLY5', 0): d[4].p5 = d[5]
    k(f"s_cmp_ge_u32 s2, 256")
    k(f"s_cbranch_scc1 L_{k.name}_exit")
    k.prologue()
    k.sLw = k.s()
    k(f"s_sub_u32 s{k.sLw}, s{k.sWave}, 8")
    k(f"s_cbranch_scc0 L_{k.name}_loader")
    k.lbase = k.mark()
    for i, p in enumerate(ph):
        mx = k.vmax; k.vmax = 0
        p.c(k, i == 0, i == len(ph)-1)
        print('phase', g[i], 'compute vgprs', k.vmax)
        k.vmax = max(mx, k.vmax)
    k.pfx = ""
    k.stamp_flush()
    k.label("exit")
    k("s_endpgm")
    k.label("loader")
    k("s_setprio 3")
    k.reset(k.lbase)
    k.vDump = k.v()
    k.vLt = k.v(2)
    k.vStage = k.v(128, 4)
    k.lbase = k.mark()
    for i, p in enumerate(ph):
        def pre(k, q=ph[i+1] if i+1 < len(ph) else None):
            k.stamp("pre0"); q.l_pre(k); k.stamp("pre1")
        p.l(k, i == 0, i == len(ph)-1, pre)
    k.pfx = "l_"
    k.stamp_flush()
    k("s_endpgm")
    k.pfx = ""
    k.label("codeend")
    ks.append(k)
emit(ks, sys.argv[1] if len(sys.argv) > 1 else "cur.s")
for k in ks: print(k.name, "vgpr", k.vmax, "sgpr", k.smax, "lines", len(k.lines))
```

```python
from base import *

class P2:
    PAD = 131072
    XCH = 131072 + 12288
    def roles(self, k):
        self.sHead = k.s(); self.sQb = k.s()
        k(f"s_lshl_b32 s{k.sT0}, s{k.sX}, 2")
        k(f"s_lshr_b32 s{k.sT1}, s{k.sJ}, 3")
        k(f"s_add_u32 s{self.sHead}, s{k.sT0}, s{k.sT1}")
        k(f"s_and_b32 s{self.sQb}, s{k.sJ}, 7")

    def c(self, k, first, last):
        k.pfx = "p2c_"; m = k.mark()
        SC = "" if last else SCOPE_ST
        LD = "" if first else SCOPE_LD
        U = 4; PAD = self.PAD; XCH = self.XCH
        T0, T1 = k.sT0, k.sT1; WSr = sr(k.sWS, 4); vL16 = k.vL16; vLane = k.vLane
        self.roles(k)
        sHead, sQb = self.sHead, self.sQb
        sOoff = k.s(); sQo = k.s(); sKh = k.s(); sFl = k.s()
        vKa = k.v(); vVa = k.v(); vVinc = k.v(); vIdx = k.v(); vT0 = k.v(); vT1 = k.v(); vVa0 = k.v()
        vQ = [k.v(4, 4), k.v(4, 4)]
        vKf = [k.v(4, 4), k.v(4, 4)]
        vV0 = k.v(4, 4)
        vV1 = [k.v(4, 4), k.v(4, 4)]
        vS = [k.v(16, 4), k.v(16, 4)]
        vNM = [k.v(16, 4), k.v(16, 4)]
        vO = [k.v(16, 4), k.v(16, 4)]
        QK = lambda d, kf, q, c: k(f"v_mfma_f32_32x32x16_bf16 {vr(d,16)}, {vr(kf,4)}, {vr(q,4)}, {c}")
        PV = lambda o, v, s: k(f"v_smfmac_f32_32x32x32_bf16 {vr(o,16)}, {vr(v,4)}, {vr(s,8)}, v{vIdx}")
        k(f"s_lshr_b32 s{sKh}, s{k.sWave}, 2")
        k(f"s_and_b32 s{T0}, s{k.sWave}, 3")
        k(f"s_lshl_b32 s{T0}, s{T0}, 1")
        k(f"s_lshl_b32 s{T1}, s{sQb}, 3")
        k(f"s_add_u32 s{T0}, s{T0}, s{T1}")
        k(f"s_add_u32 s{sOoff}, s{T0}, s{sKh}")
        k(f"s_lshl_b32 s{sOoff}, s{sOoff}, 5")
        k(f"s_add_u32 s{sOoff}, s{sOoff}, s{sHead}")
        k(f"s_lshl_b32 s{sFl}, s{sQb}, 5")
        k(f"s_add_u32 s{sFl}, s{sFl}, s{sHead}")
        k(f"s_add_u32 s{sFl}, s{sFl}, {FL2}")
        k(f"s_lshl_b32 s{sOoff}, s{sOoff}, 10")
        k(f"s_add_u32 s{sOoff}, s{sOoff}, {WS_OF:#x}")
        k(f"s_lshl_b32 s{T1}, s{sHead}, 6")
        k(f"s_add_u32 s{sQo}, s{T0}, s{T1}")
        k(f"s_lshl_b32 s{sQo}, s{sQo}, 10")
        k(f"v_lshrrev_b32 v{vT0}, 5, v{vLane}")
        k(f"v_and_b32 v{vVa0}, 15, v{vLane}")
        k(f"v_lshl_add_u32 v{vVa0}, v{vT0}, 4, v{vVa0}")
        k(f"v_lshlrev_b32 v{vVa0}, 4, v{vVa0}")
        k(f"v_add_u32 v{vVa0}, 1024, v{vVa0}")
        k(f"v_and_b32 v{vT0}, 27, v{vLane}")
        k(f"v_cmp_eq_u32 vcc, 16, v{vT0}")
        k(f"v_mov_b32 v{vT1}, {PAD + 1024 + 16}")
        k(f"v_mov_b32 v{vKa}, {PAD + 1024}")
        k(f"v_cndmask_b32 v{vT1}, v{vT1}, v{vKa}, vcc")
        k(f"v_and_b32 v{vT0}, 16, v{vLane}")
        k(f"v_cmp_eq_u32 vcc, 0, v{vT0}")
        k(f"s_lshl_b32 s{T0}, s{sKh}, 16")
        k(f"v_mov_b32 v{vKa}, {U*2048}")
        k(f"v_cndmask_b32 v{vVinc}, 0, v{vKa}, vcc")
        k(f"v_add_u32 v{vVa}, s{T0}, v{vVa0}")
        k(f"v_cndmask_b32 v{vVa}, v{vT1}, v{vVa}, vcc")
        k(f"v_add_u32 v{vKa}, s{T0}, v{vL16}")
        k(f"v_mov_b32 v{vIdx}, 0xdddddddd")
        k(f"v_lshrrev_b32 v{vT0}, 1, v{vLane}")
        k(f"v_min_u32 v{vT0}, 23, v{vT0}")
        k(f"v_lshlrev_b32 v{vT0}, 9, v{vT0}")
        k(f"v_and_b32 v{vT1}, 1, v{vLane}")
        k(f"v_lshl_add_u32 v{vT0}, v{vT1}, 4, v{vT0}")
        k(f"v_add_u32 v{vT0}, {PAD}, v{vT0}")
        k(f"v_cmp_eq_u32 vcc, 0, v{vT1}")
        k(f"v_mov_b32 v{vT1}, 0x3f803f80")
        k(f"s_nop 0")
        for i in range(4): k(f"v_cndmask_b32 v{vV0+i}, 0, v{vT1}, vcc")
        k(f"ds_write_b128 v{vT0}, {vr(vV0,4)}")
        for t in range(2):
            for i in range(16): k(f"v_mov_b32 v{vO[t]+i}, 0")
        for i in range(8, 16): k(f"v_mov_b32 v{vS[1]+i}, 0")
        for i in range(4): k(f"v_mov_b32 v{vV1[1]+i}, 0")
        if first:
            k.ptrs_ready()
            if not last: nonce_publish(k, vS[0])
        else:
            k(f"s_cmp_lg_u32 s{k.sWave}, {PW}")
            k(f"s_cbranch_scc1 {k.L('nopoll')}")
            k(f"s_lshl_b32 s{T0}, s{k.sX}, 5")
            rep_off(k, T0, k.sJ, R1)
            poll(k, "poll", T0, vT1, vQ[0], n=32)
            k.label("nopoll")
            k(f"s_barrier")
            k.stamp("ready")
        k(f"buffer_load_dwordx4 {vr(vQ[0],4)}, v{vL16}, {WSr}, s{sQo} offen{LD}")
        k(f"buffer_load_dwordx4 {vr(vQ[1],4)}, v{vL16}, {WSr}, s{sQo} offen offset:1024{LD}")
        k(f"s_waitcnt lgkmcnt(0)")
        k(f"s_barrier")
        k.stamp("data")
        k(f"ds_read_b128 {vr(vV0,4)}, v{vL16}")
        k(f"ds_read_b128 {vr(vKf[0],4)}, v{vKa}")
        k(f"ds_read_b128 {vr(vKf[1],4)}, v{vKa} offset:2048")
        k(f"s_waitcnt vmcnt(0) lgkmcnt(2)")
        QK(vNM[0], vV0, vQ[0], "0")
        QK(vNM[1], vV0, vQ[1], "0")
        k(f"ds_read_b128 {vr(vV0,4)}, v{vVa}")
        k(f"ds_read_b128 {vr(vV1[0],4)}, v{vVa} offset:512")
        k(f"s_nop 9")
        for t in range(2):
            N_ = vNM[t]
            k(f"v_max3_f32 v{vT0}, v{N_}, v{N_+1}, v{N_+2}")
            for i in range(3, 15, 2):
                k(f"v_max3_f32 v{vT0}, v{vT0}, v{N_+i}, v{N_+i+1}")
            k(f"v_max_f32 v{vT0}, v{vT0}, v{N_+15}")
            half_combine(k, [vT0], [vT1], op="v_max_f32")
            for i in range(16): k(f"v_sub_f32 v{N_+i}, 0, v{vT0}")
            if t == 0:
                k(f"s_waitcnt lgkmcnt(0)")
                k(f"s_nop 0")
                QK(vS[0], vKf[0], vQ[0], vr(vNM[0],16))
        e = lambda S, i, w="": k(f"v_exp_f32{w} v{S+i}, v{S+i}")
        A, B = vS[0], vS[1]
        LOOP = env("P2_LOOP", 32)
        FIX = "_e64" if env("P2_FIX", 1) else ""
        sPh = k.s()
        def step(st, unrolled, lastu):
            u = st % U; p = st & 1
            e(A,0); e(A,1)
            PV(vO[1], vV1[1-p], B+8)
            for i in range(2, 6): e(A,i)
            QK(B, vKf[p], vQ[1], vr(vNM[1],16))
            for i in range(6, 9): e(A,i)
            e(A, 9, FIX)
            k(f"s_waitcnt lgkmcnt(0)") if not FIX else None
            if FIX:
                k.lines.insert(len(k.lines)-1, "  s_waitcnt lgkmcnt(0)")
            PV(vO[0], vV0, A)
            for i in range(10, 16): e(A,i)
            e(B,0); e(B,1)
            PV(vO[0], vV1[p], A+8)
            for i in range(2, 6): e(B,i)
            if not (unrolled and st == 31): QK(A, vKf[1-p], vQ[0], vr(vNM[0],16))
            for i in range(6, 10): e(B,i)
            PV(vO[1], vV0, B)
            if not (unrolled and st == 31):
                k(f"ds_read_b128 {vr(vV0,4)}, v{vVa} offset:{(u+1)*2048}")
                k(f"ds_read_b128 {vr(vV1[1-p],4)}, v{vVa} offset:{(u+1)*2048+512}")
            if not (unrolled and st >= 30):
                k(f"ds_read_b128 {vr(vKf[p],4)}, v{vKa} offset:{(st+2)*2048}")
            elif st == 30:
                k(f"s_nop 0"); k(f"s_nop 0")
            for i in range(10, 12): e(B,i)
            if u == U-1: k(f"v_add_u32{FIX} v{vVa}, v{vVinc}, v{vVa}")
            if lastu:
                k(f"v_add_u32 v{vKa}, {LOOP*2048}, v{vKa}")
                k(f"s_sub_u32 s{k.sCnt}, s{k.sCnt}, 1")
                k(f"s_cmp_lg_u32 s{k.sCnt}, 0")
            for i in range(12, 16): e(B,i)
        if LOOP == 32:
            k(".p2align 3")
            for st in range(32):
                if st == 0 and env("P2_ST", 0): k.stamp("go"); k(".p2align 3")
                if st in self.BARS:
                    if env("P2_ST", 0): k.stamp(f"a{st}")
                    k(f"s_barrier")
                    if env("P2_ST", 0): k.stamp(f"b{st}")
                    k(".p2align 3")
                step(st, True, False)
        else:
            k(f"s_mov_b32 s{sPh}, 0")
            k(f"s_mov_b32 s{k.sCnt}, {self.BARS[0]//LOOP}")
            k(".p2align 3")
            k.label("loop")
            for st in range(LOOP): step(st, False, st == LOOP-1)
            k(f"s_cbranch_scc1 {k.L('loop')}")
            cn = [(b_ - a_)//LOOP for a_, b_ in zip(self.BARS, self.BARS[1:] + (32,))]
            k(f"s_cmp_ge_u32 s{sPh}, 3")
            k(f"s_cbranch_scc1 {k.L('fin')}")
            k(f"s_cmp_eq_u32 s{sPh}, 0")
            k(f"s_cselect_b32 s{k.sCnt}, {cn[0]}, {cn[1]}")
            k(f"s_cmp_eq_u32 s{sPh}, 2")
            k(f"s_cselect_b32 s{k.sCnt}, {cn[2]}, s{k.sCnt}")
            k(f"s_add_u32 s{sPh}, s{sPh}, 1")
            k(f"s_barrier")
            k(f"s_branch {k.L('loop')}")
            k.label("fin")
            k(f"s_waitcnt lgkmcnt(0)")
        k.stamp("loopend")
        k(f"s_mul_i32 s{T0}, s{k.sWave}, 2304")
        k(f"s_add_u32 s{T0}, s{T0}, {XCH}")
        PV(vO[1], vV1[1], vS[1]+8)
        k(f"v_add_u32 v{vT0}, s{T0}, v{vL16}")
        k(f"v_lshlrev_b32 v{vKa}, 2, v{vLane}")
        k(f"v_add_u32 v{vKa}, s{T0}, v{vKa}")
        k(f"s_xor_b32 s{T1}, s{k.sWave}, 4")
        k(f"s_mul_i32 s{T1}, s{T1}, 2304")
        k(f"s_add_u32 s{T1}, s{T1}, {XCH}")
        k(f"v_add_u32 v{vT1}, s{T1}, v{vL16}")
        k(f"v_lshlrev_b32 v{vVa}, 2, v{vLane}")
        k(f"v_add_u32 v{vVa}, s{T1}, v{vVa}")
        k(f"s_nop 2")
        k(f"s_cmp_eq_u32 s{sKh}, 0")
        k(f"s_cbranch_scc1 {k.L('kh0')}")
        k(f"ds_write_b128 v{vT0}, {vr(vO[0],4)}")
        k(f"ds_write_b128 v{vT0}, {vr(vO[0]+4,4)} offset:1024")
        k(f"ds_write_b32 v{vKa}, v{vO[0]+8} offset:2048")
        k(f"s_waitcnt lgkmcnt(0)")
        for i in range(9): k(f"v_mov_b32 v{vO[0]+i}, v{vO[1]+i}")
        for i in range(4): k(f"v_mov_b32 v{vQ[0]+i}, v{vQ[1]+i}")
        k(f"s_branch {k.L('xch')}")
        k.label("kh0")
        k(f"ds_write_b128 v{vT0}, {vr(vO[1],4)}")
        k(f"ds_write_b128 v{vT0}, {vr(vO[1]+4,4)} offset:1024")
        k(f"ds_write_b32 v{vKa}, v{vO[1]+8} offset:2048")
        k(f"s_waitcnt lgkmcnt(0)")
        k.label("xch")
        k(f"s_barrier")
        k.stamp("xch")
        k(f"ds_read_b128 {vr(vS[0],4)}, v{vT1}")
        k(f"ds_read_b128 {vr(vS[0]+4,4)}, v{vT1} offset:1024")
        k(f"ds_read_b32 v{vS[0]+8}, v{vVa} offset:2048")
        k(f"s_waitcnt lgkmcnt(0)")
        O = vO[0]
        for i in range(9): k(f"v_add_f32 v{O+i}, v{O+i}, v{vS[0]+i}")
        k(f"v_add_f32 v{vT0}, abs(v{O}), v{O+8}")
        for i in range(1, 8): k(f"v_add_f32 v{vT0}, abs(v{O+i}), v{vT0}")
        k(f"s_mov_b32 s{T0}, 0x71800000")
        k(f"v_cmp_gt_f32 vcc, s{T0}, v{vT0}")
        k(f"s_cmp_eq_u64 vcc, -1")
        k(f"s_cbranch_scc1 {k.L('store')}")
        sKV = sQo
        k(f"s_lshl_b32 s{sKV}, s{sHead}, 17")
        k(f"s_add_u32 s{sKV}, s{sKV}, {WS_KVF:#x}")
        k(f"s_mov_b32 s{k.sCnt}, 64")
        k(f"s_mov_b32 s{T1}, s{sKV}")
        k(f"v_mov_b32 v{vT0}, 0xff800000")
        k.label("fb1")
        k(f"buffer_load_dwordx4 {vr(vKf[0],4)}, v{vL16}, {WSr}, s{T1} offen{LD}")
        k(f"s_add_u32 s{T1}, s{T1}, 2048")
        k(f"s_waitcnt vmcnt(0)")
        QK(vS[0], vKf[0], vQ[0], "0")
        k(f"s_nop 15")
        for i in range(0, 16, 2): k(f"v_max3_f32 v{vT0}, v{vT0}, v{vS[0]+i}, v{vS[0]+i+1}")
        k(f"s_sub_u32 s{k.sCnt}, s{k.sCnt}, 1")
        k(f"s_cmp_lg_u32 s{k.sCnt}, 0")
        k(f"s_cbranch_scc1 {k.L('fb1')}")
        half_combine(k, [vT0], [vT1], op="v_max_f32")
        for i in range(16):
            k(f"v_sub_f32 v{vNM[0]+i}, 0, v{vT0}")
            k(f"v_mov_b32 v{O+i}, 0")
        for i in range(4):
            k(f"v_mov_b32 v{vV0+i}, 0x3f803f80")
            k(f"v_mov_b32 v{vV1[0]+i}, 0x3f803f80")
        k(f"s_mov_b32 s{k.sCnt}, 64")
        k.label("fb2")
        k(f"buffer_load_dwordx4 {vr(vKf[0],4)}, v{vL16}, {WSr}, s{sKV} offen{LD}")
        k(f"s_mov_b32 exec_lo, 0xffff")
        k(f"s_mov_b32 exec_hi, 0xffff")
        k(f"buffer_load_dwordx4 {vr(vV0,4)}, v{vVa0}, {WSr}, s{sKV} offen{LD}")
        k(f"buffer_load_dwordx4 {vr(vV1[0],4)}, v{vVa0}, {WSr}, s{sKV} offen offset:512{LD}")
        k(f"s_mov_b64 exec, -1")
        k(f"s_add_u32 s{sKV}, s{sKV}, 2048")
        k(f"s_waitcnt vmcnt(0)")
        QK(vS[0], vKf[0], vQ[0], vr(vNM[0],16))
        k(f"s_nop 15")
        for i in range(16): e(vS[0], i)
        k(f"s_nop 1")
        PV(O, vV0, vS[0])
        PV(O, vV1[0], vS[0]+8)
        k(f"s_nop 15")
        k(f"s_sub_u32 s{k.sCnt}, s{k.sCnt}, 1")
        k(f"s_cmp_lg_u32 s{k.sCnt}, 0")
        k(f"s_cbranch_scc1 {k.L('fb2')}")
        k.label("store")
        k(f"v_rcp_f32 v{vT1}, v{O+8}")
        k(f"s_nop 0")
        for i in range(8): k(f"v_mul_f32 v{O+i}, v{O+i}, v{vT1}")
        for i in range(4): k(f"v_cvt_pk_bf16_f32 v{vKf[0]+i}, v{O+2*i}, v{O+2*i+1}")
        k(f"buffer_store_dwordx4 {vr(vKf[0],4)}, v{vL16}, {WSr}, s{sOoff} offen{SC}")
        k.stamp("stored")
        if not last:
            if first: nonce_fetch(k, vS[0])
            publish(k, sFl, vT0, vS[0], R2)
            k.stamp("flag")
        k.reset(m)
    BARS = {32: (2, 8, env('P2_B3', 24)), 4: (4, 8, 24), 8: (8, 16, 24)}[env('P2_LOOP', 32)]

    def l_pre(self, k): k.reset(k.lbase)
    def l(self, k, first, last, next_pre):
        k.pfx = "p2l_"
        LD = "" if first else SCOPE_LD
        T0, T1 = k.sT0, k.sT1; WSr = sr(k.sWS, 4); vL16 = k.vL16; sLw = k.sLw
        self.roles(k)
        sKV = k.s(); sOff = k.s(); sPF = k.s(4, 4); sId = k.s()
        vT0 = k.v(); vT1 = k.v()
        k(f"s_lshl_b32 s{sKV}, s{self.sHead}, 17")
        k(f"s_and_b32 s{T0}, s{sLw}, 1")
        k(f"s_lshl_b32 s{T0}, s{T0}, 10")
        k(f"s_add_u32 s{sKV}, s{sKV}, s{T0}")
        k(f"s_add_u32 s{sKV}, s{sKV}, {WS_KVF:#x}")
        k(f"s_lshr_b32 s{T1}, s{sLw}, 1")
        k(f"s_lshl_b32 s{T1}, s{T1}, 16")
        k(f"s_add_u32 m0, s{T1}, s{T0}")
        k(f"s_lshl_b32 s{sOff}, s{self.sQb}, 14")
        k(f"s_add_u32 s{sOff}, s{sOff}, s{T1}")
        if first: k.ptrs_ready()
        else: k(f"s_barrier")
        def issue2():
            k(f"s_and_b32 s{sOff}, s{sOff}, 0x1ffff")
            k(f"s_add_u32 s{T0}, s{sOff}, s{sKV}")
            k(f"buffer_load_dwordx4 v{vL16}, {WSr}, s{T0} offen{LD} lds")
            k(f"buffer_load_dwordx4 v{vL16}, {WSr}, s{T0} offen offset:2048{LD} lds")
            k(f"s_add_u32 m0, m0, 4096")
            k(f"s_add_u32 s{sOff}, s{sOff}, 4096")
        n0 = self.BARS[0] + 2; n1 = self.BARS[1] + 2
        i0 = n0//2 + 1; i1 = min(16, n1//2 + 2)
        for i in range(i0): issue2()
        k(f"s_waitcnt vmcnt({2*i0 - n0})")
        k(f"s_barrier")
        for i in range(i1 - i0): issue2()
        k(f"s_waitcnt vmcnt({2*i1 - n1})")
        k(f"s_barrier")
        for i in range(16 - i1): issue2()
        nt = [0]
        PF = env("P2_PF", "sUixo")
        k(f"s_lshl_b32 s{sId}, s{k.sJ}, 2")
        k(f"s_add_u32 s{sId}, s{sId}, s{sLw}")
        def touch(ka, size, per_wave, xcd_stride, xmask=7):
            k.srd(sPF, k.ptr(ka), size)
            k(f"s_mul_i32 s{T0}, s{sId}, {per_wave}")
            if xcd_stride:
                k(f"s_and_b32 s{T1}, s{k.sX}, {xmask}")
                k(f"s_mul_i32 s{T1}, s{T1}, {xcd_stride}")
                k(f"s_add_u32 s{T0}, s{T0}, s{T1}")
            stride = min(128, per_wave//64)
            n = -(-per_wave//(64*stride))
            k(f"v_mul_u32_u24 v{vT0}, {stride}, v{k.vLane}")
            for i in range(n):
                k(f"buffer_load_dword v{k.vDump}, v{vT0}, {sr(sPF,4)}, s{T0} offen")
                nt[0] += 1
                if i < n-1: k(f"s_add_u32 s{T0}, s{T0}, {64*stride}")
        k(f"s_waitcnt vmcnt(0)")
        k(f"s_barrier")
        if "o" in PF: touch(KA_WO, D*D*2, 4096, 0)
        if self.p4:
            self.p4.stage_regs(k)
            k.pfx = "p2l_"
        if "s" in PF:
            if P5N and env("P5_MAP", 1): touch(KA_WSP, T*T*2, 16384, 2097152, 3)
            else: touch(KA_WSP, T*T*2, 8192, 1048576)
        if "u" in PF: touch(KA_WOUT, FH*D*2, 1024, 131072)
        if "U" in PF: touch(KA_WOUT, FH*D*2, 8192, 0)
        if "i" in PF and not self.p4: touch(KA_WIN, D*F*2, 16384, 0)
        if "x" in PF: touch(KA_X, T*D*2, 2048, 262144)
        if last: k(f"s_barrier")
        if not last:
            k(f"s_cmp_lg_u32 s{sLw}, 3")
            k(f"s_cbranch_scc1 {k.L('nowarm')}")
            warm(k, vT0, k.vDump, env("WARM2", "a"))
            k.label("nowarm")
            k(f"s_barrier")
            next_pre(k)
            k(f"s_barrier")
    p4 = None
```

```python
from base import *
from sched import Sched, run_sched

class Proj:
    def __init__(self, mode):
        self.mode = mode
        self.NKS = 32 if mode == 3 else 56
        self.N = self.NKS//4
        self.XR = 131072
    def plan(self, first):
        KB = 1024
        G = 2
        if self.mode == 3:
            w = [i*8*KB for i in range(4)] + [64*KB + i*8*KB for i in range(4)]
            a = [32*KB + i*8*KB for i in range(4)] + [96*KB + i*8*KB for i in range(4)]
            self.S = Sched(8, w + a, 0 if first else 8, 2, 2, look=6, group=G)
        else:
            slots = [i*8*KB for i in range(20)]
            self.S = Sched(14, slots, 0 if first else 14, 2, 2, look=6, group=G)
    def roles(self, k):
        self.sTb = k.s(); self.sCb = k.s()
        k(f"s_lshl_b32 s{k.sT0}, s{k.sX}, 2")
        k(f"s_and_b32 s{k.sT1}, s{k.sJ}, 3")
        k(f"s_add_u32 s{self.sTb}, s{k.sT0}, s{k.sT1}")
        k(f"s_lshr_b32 s{self.sCb}, s{k.sJ}, 2")

    def c(self, k, first, last):
        mode = self.mode; N = self.N; XR = self.XR
        k.pfx = f"p{mode}c_"; m = k.mark()
        self.plan(first); S = self.S
        SC = "" if last else SCOPE_ST
        LD = "" if first else SCOPE_LD
        T0, T1 = k.sT0, k.sT1; WSr = sr(k.sWS, 4); vL16 = k.vL16; vLane = k.vLane
        self.roles(k)
        sTb, sCb = self.sTb, self.sCb
        vT0 = k.v(); vT1 = k.v(); vT2 = k.v(2, 2); vT3 = vT2+1
        k(f"s_cmp_ge_u32 s{k.sWave}, 4")
        k(f"s_cbranch_scc1 {k.L('idle')}")
        sTh = k.s(); sCt = k.s(); sTT = k.s(); sHo = k.s(); sXo = k.s(); sFl = k.s(); sSX = k.s(4, 4)
        vWa = k.v(); vAa = k.v()
        vR = k.v(8, 4)
        vW = [k.v(16, 4), k.v(16, 4)]
        vA = [k.v(16, 4), k.v(16, 4)]
        vAcc = k.v(16, 4)
        vE = k.v(16, 4)
        k(f"s_and_b32 s{sTh}, s{k.sWave}, 1")
        k(f"s_lshr_b32 s{sCt}, s{k.sWave}, 1")
        k(f"s_lshl_b32 s{sTT}, s{sTb}, 1")
        k(f"s_add_u32 s{sTT}, s{sTT}, s{sTh}")
        k(f"s_lshl_b32 s{sFl}, s{sTT}, 4")
        k(f"s_lshl_b32 s{T1}, s{sCb}, 1")
        k(f"s_add_u32 s{sFl}, s{sFl}, s{T1}")
        k(f"s_add_u32 s{sFl}, s{sFl}, s{sCt}")
        k(f"s_lshl_b32 s{sHo}, s{sFl}, 11")
        k(f"s_add_u32 s{sHo}, s{sHo}, {WS_HF:#x}")
        k(f"s_lshl_b32 s{sXo}, s{sTT}, 15")
        k(f"s_lshl_b32 s{T1}, s{sCb}, 7")
        k(f"s_add_u32 s{sXo}, s{sXo}, s{T1}")
        k(f"s_lshl_b32 s{T1}, s{sCt}, 6")
        k(f"s_add_u32 s{sXo}, s{sXo}, s{T1}")
        tr_base(k, vWa, vT0, natural=False)
        k(f"s_lshl_b32 s{T0}, s{sCt}, 10")
        k(f"v_add_u32 v{vWa}, s{T0}, v{vWa}")
        k(f"s_lshl_b32 s{T0}, s{sTh}, 12")
        k(f"v_add_u32 v{vAa}, s{T0}, v{vL16}")
        wins = sorted({a >> 16 for a in S.addr.values()})
        Ww = Win(k, vWa, wins); Aw = Win(k, vAa, wins)
        for i in range(16): k(f"v_mov_b32 v{vAcc+i}, 0")
        if mode == 3:
            k(f"v_and_b32 v{vT0}, 31, v{vLane}")
            k(f"v_lshlrev_b32 v{vT0}, 6, v{vT0}")
            k(f"v_lshrrev_b32 v{vT2}, 5, v{vLane}")
            k(f"v_lshl_add_u32 v{vT0}, v{vT2}, 3, v{vT0}")
            k(f"s_lshl_b32 s{T0}, s{k.sWave}, 11")
            k(f"s_add_u32 s{T0}, s{T0}, {XR}")
            k(f"v_add_u32 v{vT0}, s{T0}, v{vT0}")
            k(f"v_bfe_u32 v{vT2}, v{vLane}, 2, 2")
            for p in range(4):
                k(f"v_xor_b32 v{vE+p}, {p}, v{vT2}")
                k(f"v_lshl_add_u32 v{vE+p}, v{vE+p}, 4, v{vT0}")
        else:
            k(f"v_and_b32 v{vT0}, 31, v{vLane}")
            k(f"v_lshlrev_b32 v{vT0}, 10, v{vT0}")
            k(f"v_lshrrev_b32 v{vT2}, 5, v{vLane}")
            k(f"v_lshl_add_u32 v{vT0}, v{vT2}, 4, v{vT0}")
        if first:
            k.ptrs_ready()
            if not last: nonce_fetch(k, vW[0])
        if mode == 6:
            k.srd(sSX, k.ptr(KA_OUT), T*D*2)
            k(f"buffer_load_dwordx4 {vr(vR,4)}, v{vL16}, {WSr}, s{sHo} offen{LD}")
            k(f"buffer_load_dwordx4 {vr(vR+4,4)}, v{vL16}, {WSr}, s{sHo} offen offset:1024{LD}")
        if not first:
            k(f"s_cmp_lg_u32 s{k.sWave}, {PW}")
            k(f"s_cbranch_scc1 {k.L('nopoll')}")
            if mode == 6 and not P5N:
                k(f"s_cmp_lt_u32 s{k.sJ}, 28")
                k(f"s_cbranch_scc1 {k.L('nolong')}")
                k(f"s_lshl_b32 s{T0}, s{sTb}, 3")
                k(f"s_add_u32 s{T0}, s{T0}, {FL5}")
                poll(k, "poll0", T0, vT1, vT2, n=1, sleep=8, pipe=False)
                k.label("nolong")
            if mode == 3:
                k(f"s_lshl_b32 s{T0}, s{k.sX}, 5")
                k(f"s_add_u32 s{T0}, s{T0}, {FL2}")
                rep_off(k, T0, k.sJ, R2)
            else:
                k(f"s_lshl_b32 s{T0}, s{sTb}, 3")
                k(f"s_add_u32 s{T0}, s{T0}, {FL5}")
                rep_off(k, T0, sCb, R5)
            poll(k, "poll", T0, vT1, vT2, n=32 if mode == 3 else 7 + P5N)
            k.label("nopoll")
            k(f"s_barrier")
            k.stamp("ready")
        def reads(u):
            b = u & 1; l = []
            for i in range(4):
                l.append(f"ds_read_b128 {vr(vA[b]+4*i,4)}, {Aw.at(S.addr[('A',u)] + i*1024)}")
                l.append(f"ds_read_b64_tr_b16 {vr(vW[b]+4*i,2)}, {Ww.at(S.addr[('W',u)] + i*2048)}")
                l.append(f"ds_read_b64_tr_b16 {vr(vW[b]+4*i+2,2)}, {Ww.at(S.addr[('W',u)] + i*2048 + 512)}")
            return l
        def comp(u):
            b = u & 1
            return [f"v_mfma_f32_32x32x16_bf16 {vr(vAcc,16)}, {vr(vW[b]+4*i,4)}, {vr(vA[b]+4*i,4)}, {vr(vAcc,16)}" for i in range(4)]
        G = S.group
        for u in range(N):
            if u % G == 0:
                k(f"s_barrier")
                if u == 0: k.stamp("data")
            rd = reads(u)
            if u == 1 and mode == 3:
                rd += [f"ds_read_b64 {vr(vR+2*p,2)}, v{vE+p}" for p in range(4)]
            if u == 0 or u % G == 0:
                interleave(k, comp(u-1) if u else [], rd, per=4)
            else:
                cp = comp(u-1)
                for i in range(4):
                    k.many(rd[3*i:3*i+3])
                    k(f"s_waitcnt lgkmcnt({min(15, 9 - 3*i + 3*(i+1))})")
                    k(cp[i])
                k.many(rd[12:])
            if u < N-1 and (u+1) % G == 0: k(f"s_waitcnt lgkmcnt(0)")
            if u == 3:
                if mode == 6: k(f"s_waitcnt vmcnt(0)")
                for r in range(8):
                    k(f"v_lshlrev_b32 v{vE+2*r}, 16, v{vR+r}")
                    k(f"v_and_b32 v{vE+2*r+1}, 0xffff0000, v{vR+r}")
        last_c = comp(N-1)
        for i in range(4):
            k(f"s_waitcnt lgkmcnt({9-3*i})")
            k(last_c[i])
        if not last: k(f"s_barrier")
        k.stamp("loopend")
        k(f"s_nop {10 if last else 9}")
        for r in range(16): k(f"v_add_f32 v{vAcc+r}, v{vAcc+r}, v{vE+r}")
        for r in range(8): k(f"v_cvt_pk_bf16_f32 v{vR+r}, v{vAcc+2*r}, v{vAcc+2*r+1}")
        if mode == 3:
            k(f"buffer_store_dwordx4 {vr(vR,4)}, v{vL16}, {WSr}, s{sHo} offen{SC}")
            k(f"buffer_store_dwordx4 {vr(vR+4,4)}, v{vL16}, {WSr}, s{sHo} offen offset:1024{SC}")
            vS = vW[0]
            k(f"v_add_f32 v{vS}, v{vAcc}, v{vAcc+1}")
            k(f"v_mul_f32 v{vS+1}, v{vAcc}, v{vAcc}")
            k(f"v_add_f32 v{vS+2}, v{vAcc+2}, v{vAcc+3}")
            k(f"v_mul_f32 v{vS+3}, v{vAcc+1}, v{vAcc+1}")
            for r in range(2, 16):
                if r >= 4: k(f"v_add_f32 v{vS+2*(r&1)}, v{vS+2*(r&1)}, v{vAcc+r}")
                k(f"v_fmac_f32 v{vS+1+2*(r&1)}, v{vAcc+r}, v{vAcc+r}")
            k(f"v_add_f32 v{vS}, v{vS}, v{vS+2}")
            k(f"v_add_f32 v{vS+1}, v{vS+1}, v{vS+3}")
            half_combine(k, [vS, vS+1], [vT1, vT2])
            k(f"v_lshlrev_b32 v{vT0}, 3, v{vLane}")
            k(f"s_lshl_b32 s{T0}, s{sFl}, 8")
            k(f"s_add_u32 s{T0}, s{T0}, {WS_HS:#x}")
            k(f"s_mov_b32 exec_hi, 0")
            k(f"buffer_store_dwordx2 {vr(vS,2)}, v{vT0}, {WSr}, s{T0} offen{SC}")
            k(f"s_mov_b32 exec_hi, -1")
            k.stamp("stored")
            if not last:
                k(f"s_lshl_b32 s{sFl}, s{sTb}, 3")
                k(f"s_add_u32 s{sFl}, s{sFl}, s{sCb}")
                k(f"s_add_u32 s{sFl}, s{sFl}, {FL3}")
                publish(k, sFl, vT0, vT2, R3)
                k.stamp("flag")
        else:
            k(f"s_nop 1")
            for m_ in range(2):
                k(f"v_permlane32_swap_b32 v{vR+4*m_}, v{vR+4*m_+2}")
                k(f"v_permlane32_swap_b32 v{vR+4*m_+1}, v{vR+4*m_+3}")
            k(f"buffer_store_dwordx4 {vr(vR,4)}, v{vT0}, {sr(sSX,4)}, s{sXo} offen")
            k(f"buffer_store_dwordx4 {vr(vR+4,4)}, v{vT0}, {sr(sSX,4)}, s{sXo} offen offset:32")
            k.stamp("stored")
            if not first and env("STAMP_DBG", -1) < 0:
                k(f"s_or_b32 s{T0}, s2, s{k.sWave}")
                k(f"s_cbranch_scc1 {k.L('end')}")
                k(f"v_mov_b32 v{vT2}, 0"); k(f"v_mov_b32 v{vT3}, 0")
                k(f"s_mov_b64 exec, 1")
                k(f"global_store_dwordx2 v{vT2}, {vr(vT2,2)}, {sr(k.ptr(KA_DBG),2)}")
                k(f"s_mov_b64 exec, -1")
        k(f"s_branch {k.L('end')}")
        k.label("idle")
        if first and not last:
            k.ptrs_ready()
            nonce_publish(k, vW[0])
            nonce_fetch(k, vW[0], "nf2")
        if not first: k(f"s_barrier")
        if last: k(f"s_endpgm")
        else:
            for _ in range(S.NB+2): k(f"s_barrier")
        k.label("end")
        k.reset(m)

    def l_setup(self, k):
        mode = self.mode; T0, T1 = k.sT0, k.sT1; sLw = k.sLw
        k.pfx = f"p{mode}l_"
        self.roles(k)
        self.sSW = k.s(4, 4); self.sAo = k.s(); self.sWo = k.s(); self.sM = k.s(); self.sRot = k.s()
        self.vWd = k.v(2); self.vT = k.v(2) if mode == 3 else k.vLt
        vT = self.vT
        k(f"s_lshl_b32 s{self.sRot}, s{T1}, 1")
        k(f"s_add_u32 s{self.sRot}, s{self.sRot}, s{self.sCb}")
        k(f"s_and_b32 s{self.sRot}, s{self.sRot}, {7 if env('P36_ROT', 1) else 0}")
        if mode == 6:
            k(f"s_mul_i32 s{self.sRot}, s{self.sRot}, 7")
            k(f"s_lshr_b32 s{self.sRot}, s{self.sRot}, 2")
        k(f"v_lshrrev_b32 v{vT}, 2, v{k.vLane}")
        k(f"v_lshlrev_b32 v{vT}, 10, v{vT}")
        k(f"v_and_b32 v{vT+1}, 3, v{k.vLane}")
        k(f"v_lshl_add_u32 v{self.vWd}, v{vT+1}, 4, v{vT}")
        k(f"v_add_u32 v{self.vWd+1}, 64, v{self.vWd}")
        k(f"v_add_u32 v{self.vWd}, 1024, v{self.vWd}")
        k(f"s_lshr_b32 s{T0}, s{sLw}, 1")
        k(f"s_lshl_b32 s{T1}, s{self.sTb}, 1")
        k(f"s_add_u32 s{T0}, s{T0}, s{T1}")
        k(f"s_mul_i32 s{self.sAo}, s{T0}, {self.NKS*1024}")
        k(f"s_and_b32 s{T0}, s{sLw}, 1")
        k(f"s_lshl_b32 s{T0}, s{T0}, 11")
        k(f"s_add_u32 s{self.sAo}, s{self.sAo}, s{T0}")
        k(f"s_add_u32 s{self.sAo}, s{self.sAo}, {(WS_OF if mode == 3 else WS_UF):#x}")
        k(f"s_lshl_b32 s{self.sM}, s{sLw}, 11")
        k(f"s_lshl_b32 s{self.sWo}, s{sLw}, 14")
        k(f"s_lshl_b32 s{T0}, s{self.sCb}, 7")
        k(f"s_add_u32 s{self.sWo}, s{self.sWo}, s{T0}")
    def l_srd(self, k):
        k.srd(self.sSW, k.ptr(KA_WO if self.mode == 3 else KA_WOUT), self.NKS*16*1024, bias=1024)
    def issue(self, k, kind, u, a, LD):
        T0 = k.sT0; N = self.N
        k(f"s_add_u32 s{T0}, s{self.sRot}, {u}")
        if N == 8: k(f"s_and_b32 s{T0}, s{T0}, 7")
        else:
            k(f"s_sub_u32 s{k.sT1}, s{T0}, {N}")
            k(f"s_cselect_b32 s{T0}, s{T0}, s{k.sT1}")
        k(f"s_add_u32 m0, s{self.sM}, {a}")
        if kind == 'W':
            k(f"s_lshl_b32 s{T0}, s{T0}, 16")
            k(f"s_add_u32 s{T0}, s{T0}, s{self.sWo}")
            k(f"buffer_load_dwordx4 v{self.vWd}, {sr(self.sSW,4)}, s{T0} offen lds")
            k(f"buffer_load_dwordx4 v{self.vWd+1}, {sr(self.sSW,4)}, s{T0} offen offset:1024 lds")
        else:
            k(f"s_lshl_b32 s{T0}, s{T0}, 12")
            k(f"s_add_u32 s{T0}, s{T0}, s{self.sAo}")
            k(f"buffer_load_dwordx4 v{k.vL16}, {sr(k.sWS,4)}, s{T0} offen{LD} lds")
            k(f"buffer_load_dwordx4 v{k.vL16}, {sr(k.sWS,4)}, s{T0} offen offset:1024{LD} lds")
    def stage_regs(self, k):
        m = k.mark()
        self.l_setup(k); self.l_srd(k)
        out = []
        for u in range(self.N):
            def f(u=u, sRot=self.sRot, sWo=self.sWo, vWd=self.vWd, sSW=self.sSW):
                T0 = k.sT0
                k(f"s_add_u32 s{T0}, s{sRot}, {u}")
                k(f"s_sub_u32 s{k.sT1}, s{T0}, {self.N}")
                k(f"s_cselect_b32 s{T0}, s{T0}, s{k.sT1}")
                k(f"s_lshl_b32 s{T0}, s{T0}, 16")
                k(f"s_add_u32 s{T0}, s{T0}, s{sWo}")
                k(f"buffer_load_dwordx4 {vr(k.vStage+16+8*u,4)}, v{vWd}, {sr(sSW,4)}, s{T0} offen")
                k(f"buffer_load_dwordx4 {vr(k.vStage+16+8*u+4,4)}, v{vWd+1}, {sr(sSW,4)}, s{T0} offen offset:1024")
            out.append(f)
        self.staged = True
        return out
    staged = False
    def mid(self, k):
        if not P5N:
            k(f"s_cmp_ge_u32 s{k.sJ}, 28")
            k(f"s_cbranch_scc1 {k.L('nomid')}")
        k(f"s_barrier")
        k.label("nomid")
    def l_pre(self, k):
        k.reset(k.lbase)
        self.plan(False)
        self.l_setup(k); self.l_srd(k)
        if self.staged:
            vD = k.v()
            k(f"v_add_u32 v{vD}, s{self.sM}, v{k.vL16}")
            Wn = Win(k, vD, [0, 1])
            k(f"s_waitcnt vmcnt(0)")
            for kd, u, a in self.S.pre:
                if u == env("P6_SPLIT", 8): self.mid(k)
                for i in range(2):
                    ad = Wn.at(a + i*1024).split(" ")
                    k(f"ds_write_b128 {ad[0]}, {vr(k.vStage+16+8*u+4*i,4)} {ad[1]}")
            k(f"s_waitcnt lgkmcnt(0)")
        else:
            if self.mode == 6: self.mid(k)
            for kd, u, a in self.S.pre: self.issue(k, kd, u, a, "")
    def xres(self, k):
        T0, T1 = k.sT0, k.sT1; vT = self.vT; sLw = k.sLw
        sSX = k.s(4, 4); vX = k.v()
        k.srd(sSX, k.ptr(KA_X), T*D*2)
        k(f"v_lshrrev_b32 v{vX}, 4, v{k.vLane}")
        k(f"v_xor_b32 v{vX}, v{vT+1}, v{vX}")
        k(f"v_lshl_add_u32 v{vX}, v{vX}, 4, v{vT}")
        k(f"s_lshl_b32 s{T0}, s{self.sTb}, 16")
        k(f"s_and_b32 s{T1}, s{sLw}, 1")
        k(f"s_lshl_b32 s{T1}, s{T1}, 15")
        k(f"s_add_u32 s{T0}, s{T0}, s{T1}")
        k(f"s_lshl_b32 s{T1}, s{self.sCb}, 7")
        k(f"s_add_u32 s{T0}, s{T0}, s{T1}")
        k(f"s_lshr_b32 s{T1}, s{sLw}, 1")
        k(f"s_lshl_b32 s{T1}, s{T1}, 6")
        k(f"s_add_u32 m0, s{self.sM}, {self.XR}")
        k(f"s_add_u32 s{T0}, s{T0}, s{T1}")
        k(f"buffer_load_dwordx4 v{vX}, {sr(sSX,4)}, s{T0} offen lds")
        k(f"s_add_u32 m0, m0, 1024")
        k(f"s_add_u32 s{T0}, s{T0}, 16384")
        k(f"buffer_load_dwordx4 v{vX}, {sr(sSX,4)}, s{T0} offen lds")
    def l(self, k, first, last, next_pre):
        LD = "" if first else SCOPE_LD
        if first:
            self.plan(True)
            self.l_setup(k); k.ptrs_ready(); self.l_srd(k)
        k.pfx = f"p{self.mode}l_"
        if self.mode == 3:
            self.xres(k)
            if not first: k(f"s_barrier")
        if not first: k(f"s_barrier")
        run_sched(k, self.S, lambda kd, u, a: self.issue(k, kd, u, a, LD), {'W': 2, 'A': 2})
        if not last:
            k(f"s_barrier")
            next_pre(k)
            k(f"s_barrier")
```

```python
from base import *
from sched import Sched, run_sched

class P4:
    N = 8; SCR = 9*16384
    staged = False
    def plan(self, first):
        slots = [i*16384 for i in range(9)]
        if first or not self.staged:
            self.S = Sched(8, slots, 0 if first else 6, 4, 4, look=3)
        else:
            self.S = Sched(8, slots, env("P4_PW", 5), 4, 4, look=3, wreg=True, avoid=lambda u, a: u >= env("P4_AV", 99) and a < 65536)
    def roles(self, k):
        self.sRb = k.s(); self.sNb = k.s()
        k(f"s_lshl_b32 s{k.sT0}, s{k.sX}, 1")
        k(f"s_and_b32 s{k.sT1}, s{k.sJ}, 1")
        k(f"s_add_u32 s{self.sRb}, s{k.sT0}, s{k.sT1}")
        k(f"s_lshr_b32 s{self.sNb}, s{k.sJ}, 1")

    def c(self, k, first, last):
        k.pfx = "p4c_"; m = k.mark()
        self.plan(first); S = self.S; N = self.N; SCR = self.SCR
        SC = "" if last else SCOPE_ST
        LD = "" if first else SCOPE_LD
        T0, T1 = k.sT0, k.sT1; WSr = sr(k.sWS, 4); vL16 = k.vL16; vLane = k.vLane
        if first and not last: k.ptrs_ready()
        k(f"s_cmp_ge_u32 s{k.sJ}, 28")
        k(f"s_cbranch_scc1 {k.L('end')}")
        self.roles(k)
        sNb = self.sNb
        sTl = k.s(); sHf = k.s(); sTT = k.s(); sScr = k.s(); sC0 = k.s(); sPs = k.s(); sFl = k.s()
        vT0 = k.v(); vT1 = k.v(); vT2 = k.v(2, 2); vT3 = vT2+1
        vSum = k.v(2, 2); vSq = vSum+1
        vWa = k.v(); vAa = k.v()
        k(f"s_and_b32 s{sTl}, s{k.sWave}, 3")
        k(f"s_lshr_b32 s{sHf}, s{k.sWave}, 2")
        k(f"s_lshl_b32 s{sTT}, s{self.sRb}, 2")
        k(f"s_add_u32 s{sTT}, s{sTT}, s{sTl}")
        k(f"s_lshl_b32 s{sScr}, s{k.sWave}, 10")
        k(f"s_add_u32 s{sScr}, s{sScr}, {SCR}")
        tr_base(k, vWa, vT0, natural=False)
        k(f"s_lshl_b32 s{T0}, s{sHf}, 11")
        k(f"v_add_u32 v{vWa}, s{T0}, v{vWa}")
        k(f"s_lshl_b32 s{T0}, s{sTl}, 12")
        k(f"v_add_u32 v{vAa}, s{T0}, v{vL16}")
        Ww = Win(k, vWa, sorted({a >> 16 for (kd, u), a in S.addr.items() if kd == 'W'}))
        Aw = Win(k, vAa, sorted({a >> 16 for (kd, u), a in S.addr.items() if kd == 'A'}))
        vW = [k.v(32, 4), k.v(32, 4)]
        vA = [k.v(16, 4), k.v(16, 4)]
        vAcc = k.v(32, 4)
        vCs = k.v(4, 4)
        vHS = k.v(8, 4)
        for i in range(32): k(f"v_mov_b32 v{vAcc+i}, 0")
        k(f"s_lshr_b32 s{T0}, s{sNb}, 1")
        k(f"s_lshl_b32 s{T0}, s{T0}, 6")
        k(f"s_add_u32 s{T0}, s{T0}, s{sTT}")
        k(f"s_lshl_b32 s{T0}, s{T0}, 1")
        k(f"s_and_b32 s{T1}, s{sNb}, 1")
        k(f"s_add_u32 s{sFl}, s{T0}, s{T1}")
        if first and last: k.ptrs_ready()
        if first:
            nonce_publish(k, vW[0])
            nonce_fetch(k, vW[0])
        if not first:
            k(f"s_cmp_lg_u32 s{k.sWave}, {PW}")
            k(f"s_cbranch_scc1 {k.L('nopoll')}")
            k(f"s_lshl_b32 s{T0}, s{self.sRb}, 4")
            k(f"s_add_u32 s{T0}, s{T0}, {FL3}")
            rep_off(k, T0, sNb, R3)
            poll(k, "poll", T0, vT0, vT2, n=16)
            k.label("nopoll")
            k(f"s_barrier")
            k.stamp("ready")
        def reads(u):
            b = u & 1; l = []
            for i in range(4):
                l.append(f"ds_read_b128 {vr(vA[b]+4*i,4)}, {Aw.at(S.addr[('A',u)] + i*1024)}")
                for c in range(2):
                    o = S.addr[('W',u)] + i*4096 + c*1024
                    l.append(f"ds_read_b64_tr_b16 {vr(vW[b]+8*i+4*c,2)}, {Ww.at(o)}")
                    l.append(f"ds_read_b64_tr_b16 {vr(vW[b]+8*i+4*c+2,2)}, {Ww.at(o + 512)}")
            return l
        def comp(u):
            b = u & 1
            return [f"v_mfma_f32_32x32x16_bf16 {vr(vAcc+16*c,16)}, {vr(vW[b]+8*i+4*c,4)}, {vr(vA[b]+4*i,4)}, {vr(vAcc+16*c,16)}"
                    for i in range(4) for c in range(2)]
        for u in range(N):
            k(f"s_barrier")
            if u == 0: k.stamp("data")
            interleave(k, comp(u-1) if u else [], reads(u), per=env('P4_PER', 3))
            k(f"s_waitcnt lgkmcnt(0)")
        k.many(comp(N-1))
        k.stamp("loopend")
        k(f"s_lshl_b32 s{T0}, s{sHf}, 8")
        k(f"s_add_u32 s{T0}, s{T0}, {SCR}")
        k(f"v_lshrrev_b32 v{vT2}, 5, v{vLane}")
        k(f"v_lshl_add_u32 v{vT2}, v{vT2}, 4, s{T0}")
        k(f"s_lshl_b32 s{T0}, s{sTl}, 8")
        k(f"s_add_u32 s{T0}, s{T0}, {SCR + 512}")
        k(f"v_and_b32 v{vT1}, 31, v{vLane}")
        k(f"v_lshl_add_u32 v{vT1}, v{vT1}, 3, s{T0}")
        C0 = -2*0.7978845608028654*1.4426950408889634
        k(f"v_mov_b32 v{vHS+2}, {f32(C0):#x}")
        k(f"v_mov_b32 v{vHS+3}, {f32(C0*0.044715):#x}")
        if env("P4_PRIO", 0):
            k(f"s_cmp_lg_u32 s{sHf}, 0")
            k(f"s_cbranch_scc1 {k.L('noprio')}")
            k(f"s_setprio 2")
            k.label("noprio")
        k(f"s_barrier")
        vE = vW[0]
        k(f"ds_read_b64 {vr(vHS,2)}, v{vT1}")
        for c in range(2):
            for g in range(4):
                k(f"ds_read_b128 {vr(vE+16*c+4*g,4)}, v{vT2} offset:{c*128 + 32*g}")
        p2 = lambda r: vr(r, 2)
        vab, vcc_ = vHS, vHS+2
        LO = "op_sel_hi:[1,0]"
        k(f"s_waitcnt lgkmcnt(8)")
        for r in range(0, 32, 2): k(f"v_pk_mul_f32 {p2(vAcc+r)}, {p2(vAcc+r)}, {p2(vab)} {LO}")
        vTm = vW[1]; vP = vA[0]
        for r in range(0, 32, 2):
            if r == 0: k(f"s_waitcnt lgkmcnt(0)")
            k(f"v_pk_fma_f32 {p2(vAcc+r)}, {p2(vE+r)}, {p2(vab)}, {p2(vAcc+r)} op_sel:[0,1,0] op_sel_hi:[1,1,1]")
        for r in range(0, 32, 2):
            k(f"v_pk_mul_f32 {p2(vTm+r)}, {p2(vAcc+r)}, {p2(vAcc+r)}")
        for r in range(0, 32, 2):
            k(f"v_pk_fma_f32 {p2(vTm+r)}, {p2(vTm+r)}, {p2(vcc_)}, {p2(vcc_)} op_sel:[0,1,0] op_sel_hi:[1,1,0]")
        for r in range(0, 32, 2):
            k(f"v_pk_mul_f32 {p2(vTm+r)}, {p2(vTm+r)}, {p2(vAcc+r)}")
        for r in range(32): k(f"v_exp_f32 v{vTm+r}, v{vTm+r}")
        for r in range(0, 32, 2):
            k(f"v_pk_add_f32 {p2(vTm+r)}, {p2(vTm+r)}, 1.0 op_sel_hi:[1,0]")
        for r in range(32): k(f"v_rcp_f32 v{vTm+r}, v{vTm+r}")
        for r in range(0, 32, 2):
            k(f"v_pk_mul_f32 {p2(vAcc+r)}, {p2(vAcc+r)}, {p2(vTm+r)}")
        k(f"s_cmp_eq_u32 s{sHf}, 0")
        k(f"s_cbranch_scc1 {k.L('z2')}")
        k(f"s_mul_i32 s{T0}, s{sTT}, {56*1024}")
        k(f"s_lshl_b32 s{T1}, s{sNb}, 12")
        k(f"s_add_u32 s{T0}, s{T0}, s{T1}")
        k(f"s_add_u32 s{T0}, s{T0}, {WS_Z1F:#x}")
        for q in range(4):
            for r in range(4):
                k(f"v_cvt_pk_bf16_f32 v{vP+4*q+r}, v{vAcc+8*q+2*r}, v{vAcc+8*q+2*r+1}")
            k(f"buffer_store_dwordx4 {vr(vP+4*q,4)}, v{vL16}, {WSr}, s{T0} offen offset:{q*1024}{SC}")
        if last: k(f"s_endpgm")
        else:
            k(f"s_branch {k.L('flag')}")
        k.label("z2")
        vS2 = vHS+4; vQ2 = vHS+6
        k(f"v_pk_add_f32 {p2(vS2)}, {p2(vAcc)}, {p2(vAcc+2)}")
        k(f"v_pk_mul_f32 {p2(vQ2)}, {p2(vAcc)}, {p2(vAcc)}")
        k(f"v_pk_fma_f32 {p2(vQ2)}, {p2(vAcc+2)}, {p2(vAcc+2)}, {p2(vQ2)}")
        for r in range(4, 32, 2):
            k(f"v_pk_add_f32 {p2(vS2)}, {p2(vS2)}, {p2(vAcc+r)}")
            k(f"v_pk_fma_f32 {p2(vQ2)}, {p2(vAcc+r)}, {p2(vAcc+r)}, {p2(vQ2)}")
        vGr = vCs
        k(f"v_add_f32 v{vGr}, v{vS2}, v{vS2+1}")
        k(f"v_add_f32 v{vGr+1}, v{vQ2}, v{vQ2+1}")
        k(f"v_mov_b32 v{vGr+2}, s{k.sNon}")
        k(f"v_mov_b32 v{vGr+3}, s{k.sNon+1}")
        half_combine(k, [vGr, vGr+1], [vT0, vT1])
        k(f"s_mul_i32 s{sPs}, s{sTT}, {14*512}")
        k(f"s_add_u32 s{sPs}, s{sPs}, {WS_PS:#x}")
        k(f"s_lshl_b32 s{T0}, s{sNb}, 9")
        k(f"s_add_u32 s{T0}, s{T0}, s{sPs}")
        k(f"s_mov_b32 exec_hi, 0")
        k(f"buffer_store_dwordx4 {vr(vGr,4)}, v{vL16}, {WSr}, s{T0} offen{SCOPE_PL}")
        k(f"s_mov_b32 exec_hi, -1")
        k(f"s_setprio 0")
        k.stamp("pub")
        vG = vW[0]
        sZq = k.s(4)
        if P5N:
            k(f"v_bfe_u32 v{vT2}, v{vLane}, 4, 1")
            k(f"v_lshlrev_b32 v{vT2}, 9, v{vT2}")
            k(f"v_bfe_u32 v{vT1}, v{vLane}, 2, 1")
            k(f"v_lshl_add_u32 v{vT2}, v{vT1}, 8, v{vT2}")
            k(f"v_bfe_u32 v{vT1}, v{vLane}, 3, 1")
            k(f"v_lshl_add_u32 v{vT2}, v{vT1}, 7, v{vT2}")
            k(f"v_lshrrev_b32 v{vT1}, 5, v{vLane}")
            k(f"v_lshl_add_u32 v{vT2}, v{vT1}, 6, v{vT2}")
            k(f"v_and_b32 v{vT1}, 3, v{vLane}")
            k(f"v_lshl_add_u32 v{vT2}, v{vT1}, 4, v{vT2}")
            for q in range(4):
                k(f"s_lshl_b32 s{T0}, s{sNb}, 2")
                k(f"s_add_u32 s{T0}, s{T0}, {q}")
                k(f"s_mul_i32 s{T1}, s{T0}, 37")
                k(f"s_lshr_b32 s{T1}, s{T1}, 8")
                k(f"s_mul_i32 s{sZq+q}, s{T1}, {64*7 - 7}")
                k(f"s_add_u32 s{sZq+q}, s{sZq+q}, s{T0}")
                k(f"s_mul_i32 s{T1}, s{sTT}, 7")
                k(f"s_add_u32 s{sZq+q}, s{sZq+q}, s{T1}")
                k(f"s_lshl_b32 s{sZq+q}, s{sZq+q}, 10")
                k(f"s_add_u32 s{sZq+q}, s{sZq+q}, {WS_Z2I:#x}")
        else:
            k(f"v_bfe_u32 v{vT2}, v{vLane}, 2, 3")
            k(f"v_lshlrev_b32 v{vT2}, 8, v{vT2}")
            k(f"v_lshrrev_b32 v{vT1}, 5, v{vLane}")
            k(f"v_lshl_add_u32 v{vT2}, v{vT1}, 6, v{vT2}")
            k(f"v_and_b32 v{vT1}, 3, v{vLane}")
            k(f"v_lshl_add_u32 v{vT2}, v{vT1}, 4, v{vT2}")
            k(f"s_lshl_b32 s{T0}, s{sFl}, 12")
            k(f"s_add_u32 s{T0}, s{T0}, {WS_Z2I:#x}")
        k(f"s_mov_b32 s{k.sCnt}, 100000")
        k(f"s_add_u32 s{sC0}, s{sPs}, 4096")
        sM = k.s(14, 2)
        for i in range(7): k(f"s_mov_b64 {sr(sM+2*i,2)}, -1")
        k.label("spoll")
        k(f"s_sleep {env('PS_SLEEP', 4)}")
        for i in range(7):
            k(f"s_mov_b64 exec, {sr(sM+2*i,2)}")
            k(f"s_cbranch_execz {k.L(f'sk{i}')}")
            k(f"buffer_load_dwordx4 {vr(vG+4*i,4)}, v{vL16}, {WSr}, s{sPs if i < 4 else sC0} offen offset:{(i%4)*1024}{SCOPE_PL}")
            k.label(f"sk{i}")
        k(f"s_mov_b64 exec, -1")
        k(f"s_sub_u32 s{k.sCnt}, s{k.sCnt}, 1")
        k(f"s_cbranch_scc1 {k.L('spolldone')}")
        k(f"s_waitcnt vmcnt(0)")
        for i in range(7):
            k(f"v_cmp_ne_u64 {sr(sM+2*i,2)}, {sr(k.sNon,2)}, {vr(vG+4*i+2,2)}")
        k(f"s_or_b64 vcc, {sr(sM,2)}, {sr(sM+2,2)}")
        for i in range(2, 7):
            k(f"s_or_b64 vcc, vcc, {sr(sM+2*i,2)}")
        k(f"s_cbranch_scc1 {k.L('spoll')}")
        k.label("spolldone")
        k(f"s_waitcnt vmcnt(0)")
        k.stamp("got")
        for i in range(1, 7):
            k(f"v_pk_add_f32 {p2(vG)}, {p2(vG)}, {p2(vG+4*i)}")
        half_combine(k, [vG, vG+1], [vT0, vT1])
        k(f"v_mul_f32 v{vG}, {f32(1/896):#x}, v{vG}")
        k(f"v_mul_f32 v{vG+1}, {f32(1/896):#x}, v{vG+1}")
        k(f"v_fma_f32 v{vG+1}, -v{vG}, v{vG}, v{vG+1}")
        k(f"v_max_f32 v{vG+1}, 0, v{vG+1}")
        k(f"v_add_f32 v{vG+1}, {f32(1e-5):#x}, v{vG+1}")
        k(f"v_rsq_f32 v{vG+2}, v{vG+1}")
        k(f"s_nop 0")
        k(f"v_mul_f32 v{vG}, v{vG}, v{vG+2}")
        k(f"v_mov_b32 v{vG+3}, v{vG+2}")
        k(f"v_sub_f32 v{vG}, 0, v{vG}")
        k(f"v_mov_b32 v{vG+1}, v{vG}")
        for q in range(4):
            for r in range(0, 8, 2):
                k(f"v_pk_fma_f32 {p2(vAcc+8*q+r)}, {p2(vAcc+8*q+r)}, {p2(vG+2)}, {p2(vG)}")
            for r in range(4):
                k(f"v_cvt_pk_bf16_f32 v{vP+4*q+r}, v{vAcc+8*q+2*r}, v{vAcc+8*q+2*r+1}")
            if P5N: k(f"buffer_store_dwordx4 {vr(vP+4*q,4)}, v{vT2}, {WSr}, s{sZq+q} offen{SC}")
            else: k(f"buffer_store_dwordx4 {vr(vP+4*q,4)}, v{vT2}, {WSr}, s{T0} offen offset:{(q>>1)*2048 + (q&1)*128}{SC}")
        k.stamp("stored")
        if not last:
            k.label("flag")
            if P5N:
                k(f"s_lshl_b32 s{sFl}, s{sNb}, 4")
                k(f"s_add_u32 s{sFl}, s{sFl}, s{self.sRb}")
            else:
                k(f"s_lshr_b32 s{sFl}, s{sNb}, 1")
                k(f"s_lshl_b32 s{sFl}, s{sFl}, 4")
                k(f"s_add_u32 s{sFl}, s{sFl}, s{self.sRb}")
                k(f"s_lshl_b32 s{sFl}, s{sFl}, 1")
                k(f"s_and_b32 s{T1}, s{sNb}, 1")
                k(f"s_add_u32 s{sFl}, s{sFl}, s{T1}")
            k(f"s_add_u32 s{sFl}, s{sFl}, {FL4}")
            publish(k, sFl, vT0, vSum, R4)
            k.stamp("flag")
        k.label("end")
        k.reset(m)

    def l_setup(self, k, lite=False):
        T0, T1 = k.sT0, k.sT1; sLw = k.sLw
        k.pfx = "p4l_"
        self.roles(k)
        self.sSW = k.s(4, 4); self.sAo = k.s(); self.sWo = k.s(); self.sM = k.s(); self.sRot = k.s()
        vT = k.vLt
        if not lite: self.vWd = k.v(4)
        k(f"s_lshl_b32 s{self.sRot}, s{T1}, 2")
        k(f"s_add_u32 s{self.sRot}, s{self.sRot}, s{self.sNb}")
        k(f"s_and_b32 s{self.sRot}, s{self.sRot}, {7 if env('P4_ROT', 1) else 0}")
        k(f"s_lshl_b32 s{T0}, s{self.sRb}, 2")
        k(f"s_add_u32 s{T0}, s{T0}, s{sLw}")
        k(f"s_lshl_b32 s{self.sAo}, s{T0}, 15")
        k(f"s_add_u32 s{self.sAo}, s{self.sAo}, {WS_HF:#x}")
        if not lite:
            k(f"v_lshrrev_b32 v{vT}, 2, v{k.vLane}")
            k(f"v_mul_u32_u24 v{vT}, 3584, v{vT}")
            k(f"v_and_b32 v{vT+1}, 3, v{k.vLane}")
            k(f"v_lshl_add_u32 v{vT}, v{vT+1}, 4, v{vT}")
            for c in range(4):
                g = (1792 if c < 2 else 0) + (c & 1)*64
                k(f"v_add_u32 v{self.vWd+c}, {g - c*1024 + 4096}, v{vT}")
        k(f"s_mul_i32 s{self.sWo}, s{sLw}, {16*3584}")
        k(f"s_lshl_b32 s{T0}, s{self.sNb}, 7")
        k(f"s_add_u32 s{self.sWo}, s{self.sWo}, s{T0}")
        k(f"s_lshl_b32 s{self.sM}, s{sLw}, 12")
    def l_srd(self, k): k.srd(self.sSW, k.ptr(KA_WIN), D*F*2, bias=4096)
    def stage_regs(self, k):
        self.l_setup(k); self.l_srd(k)
        k(f"s_cmp_ge_u32 s{k.sJ}, 28")
        k(f"s_cbranch_scc1 {k.L('skipstage')}")
        T0 = k.sT0
        for u in range(8):
            k(f"s_add_u32 s{T0}, s{self.sRot}, {u}")
            k(f"s_and_b32 s{T0}, s{T0}, 7")
            k(f"s_mul_i32 s{T0}, s{T0}, {64*3584}")
            k(f"s_add_u32 s{T0}, s{T0}, s{self.sWo}")
            for c in range(4):
                k(f"buffer_load_dwordx4 {vr(k.vStage+16*u+4*c,4)}, v{self.vWd+c}, {sr(self.sSW,4)}, s{T0} offen offset:{c*1024}")
        if self.p6:
            k(f"s_branch {k.L('stagedone')}")
        k.label("skipstage")
        if self.p6:
            for f in self.p6.stage_regs(k): f()
            k.pfx = "p4l_"
            k.label("stagedone")
    def issue(self, k, kind, u, a, LD):
        T0 = k.sT0
        if kind == 'W' and self.staged:
            for c in range(4):
                ad = self.Wn.at(a + c*1024).split(" ")
                k(f"ds_write_b128 {ad[0]}, {vr(k.vStage+16*u+4*c,4)} {ad[1]}")
            return
        k(f"s_add_u32 s{T0}, s{self.sRot}, {u}")
        k(f"s_and_b32 s{T0}, s{T0}, 7")
        k(f"s_add_u32 m0, s{self.sM}, {a}")
        if kind == 'W':
            k(f"s_mul_i32 s{T0}, s{T0}, {64*3584}")
            k(f"s_add_u32 s{T0}, s{T0}, s{self.sWo}")
            for c in range(4):
                k(f"buffer_load_dwordx4 v{self.vWd+c}, {sr(self.sSW,4)}, s{T0} offen offset:{c*1024} lds")
        else:
            k(f"s_lshl_b32 s{T0}, s{T0}, 12")
            k(f"s_add_u32 s{T0}, s{T0}, s{self.sAo}")
            for i in range(4):
                k(f"buffer_load_dwordx4 v{k.vL16}, {sr(k.sWS,4)}, s{T0} offen offset:{i*1024}{LD} lds")
    def l_pre(self, k):
        k.reset(k.lbase)
        self.plan(False)
        self.l_setup(k, lite=self.staged)
        if not self.staged: self.l_srd(k)
        if self.staged:
            vD = k.v()
            k(f"v_add_u32 v{vD}, s{self.sM}, v{k.vL16}")
            self.Wn = Win(k, vD, [0, 1, 2])
        k(f"s_cmp_ge_u32 s{k.sJ}, 28")
        k(f"s_cbranch_scc1 {k.L('skippre')}")
        for kd, u, a in self.S.pre: self.issue(k, kd, u, a, "")
        if self.staged: k(f"s_waitcnt lgkmcnt(0)")
        k.label("skippre")
    p5 = None; p6 = None
    def l(self, k, first, last, next_pre):
        LD = "" if first else SCOPE_LD
        if first:
            self.plan(True)
            self.l_setup(k); k.ptrs_ready(); self.l_srd(k)
        st6 = self.p6.stage_regs(k) if self.p6 else []
        if self.p5: self.p5.l_setup(k); self.p5.l_srd(k); self.p5.early = 0
        k.pfx = "p4l_"
        k(f"s_cmp_ge_u32 s{k.sJ}, 28")
        k(f"s_cbranch_scc1 {k.L('idle')}")
        vSel = k.v(4, 4); vCs = k.v(4, 4); vF = k.vStage; vTr = k.v(); vTt = k.vLt
        sel16(k, vSel, vTt)
        for r in range(4): k(f"v_mov_b32 v{vCs+r}, 0")
        tr_base(k, vTr, vTt, natural=False)
        k(f"s_lshl_b32 s{k.sT0}, s{k.sLw}, 10")
        k(f"v_add_u32 v{vTr}, s{k.sT0}, v{vTr}")
        def cs_read(u):
            k(f"v_add_u32 v{vTt}, {self.S.addr[('W', u)]}, v{vTr}")
            for i in range(4):
                k(f"ds_read_b64_tr_b16 {vr(vF+4*i,2)}, v{vTt} offset:{i*4096}")
                k(f"ds_read_b64_tr_b16 {vr(vF+4*i+2,2)}, v{vTt} offset:{i*4096+512}")
        def colsum(u):
            k(f"s_waitcnt lgkmcnt(0)")
            for i in range(4):
                k(f"v_mfma_f32_16x16x32_bf16 {vr(vCs,4)}, {vr(vSel,4)}, {vr(vF+4*i,4)}, {vr(vCs,4)}")
        if not first: k(f"s_barrier")
        dumped = set(u for _, u, _ in self.S.pre)
        todo = list(range(len(st6)))
        def iss(kd, u, a):
            self.issue(k, kd, u, a, LD)
            if kd == 'W': dumped.add(u)
        safe = set(dumped)
        vH = k.vStage + 16
        def hs_fin():
            for j in range(4):
                k(f"v_add_f32 v{vH+j}, v{vH+j}, v{vH+4+j}")
                k(f"v_add_f32 v{vH+8+j}, v{vH+8+j}, v{vH+12+j}")
                k(f"v_add_f32 v{vH+j}, v{vH+j}, v{vH+8+j}")
            half_combine(k, [vH+j for j in range(4)], [vH+4+j for j in range(4)])
            for j in range(4): k(f"v_mov_b32 v{vH+4+j}, v{vH+j}")
            k(f"s_nop 1")
            for j in range(4): k(f"v_permlane16_swap_b32 v{vH+4+j}, v{vH+j}")
            k(f"s_nop 1")
            for j in range(4): k(f"v_add_f32 v{vH+j}, v{vH+j}, v{vH+4+j}")
            for j in (0, 2):
                k(f"v_mul_f32 v{vH+j}, {f32(1/512):#x}, v{vH+j}")
                k(f"v_mul_f32 v{vH+j+1}, {f32(1/512):#x}, v{vH+j+1}")
                k(f"v_fma_f32 v{vH+j+1}, -v{vH+j}, v{vH+j}, v{vH+j+1}")
                k(f"v_max_f32 v{vH+j+1}, 0, v{vH+j+1}")
                k(f"v_add_f32 v{vH+j+1}, {f32(1e-5):#x}, v{vH+j+1}")
                k(f"v_rsq_f32 v{vH+4+j}, v{vH+j+1}")
                k(f"s_nop 0")
                k(f"v_mul_f32 v{vH+5+j}, v{vH+j}, v{vH+4+j}")
                k(f"v_sub_f32 v{vH+5+j}, 0, v{vH+5+j}")
            k(f"s_lshl_b32 s{k.sT0}, s{k.sLw}, 8")
            k(f"s_add_u32 s{k.sT0}, s{k.sT0}, {self.SCR + 512}")
            k(f"v_and_b32 v{vH}, 15, v{k.vLane}")
            k(f"v_lshl_add_u32 v{vH}, v{vH}, 4, s{k.sT0}")
            k(f"ds_write_b128 v{vH}, {vr(vH+4,4)}")
        def extra(s, free, remaining):
            n = 0
            if s == 0:
                k(f"s_sub_u32 s{k.sT0}, s{self.sAo}, {WS_HF:#x}")
                k(f"s_lshr_b32 s{k.sT0}, s{k.sT0}, 3")
                k(f"s_add_u32 s{k.sT0}, s{k.sT0}, {WS_HS:#x}")
                for i in range(4):
                    k(f"buffer_load_dwordx4 {vr(vH+4*i,4)}, v{k.vL16}, {sr(k.sWS,4)}, s{k.sT0} offen offset:{i*1024}{LD}")
                n += 4
            if s == 4:
                hs_fin(); k(f"s_waitcnt lgkmcnt(0)")
            if s == 7:
                colsum(s)
                k(f"s_lshl_b32 s{k.sT0}, s{k.sLw}, 7")
                k(f"s_add_u32 s{k.sT0}, s{k.sT0}, {self.SCR}")
                k(f"v_lshl_add_u32 v{vTt}, v{k.vLane}, 2, s{k.sT0}")
                k(f"s_mov_b64 exec, 0xffff")
                k(f"s_nop 4")
                k(f"ds_write2_b32 v{vTt}, v{vCs}, v{vCs+1} offset0:0 offset1:16")
                k(f"s_mov_b64 exec, -1")
                k(f"s_waitcnt lgkmcnt(0)")
                k(f"s_barrier")
            for _ in range(env("P4_X6", 0) if s >= 4 else 0):
                if todo and (not self.staged or (todo[0]+2)//2 in safe):
                    st6[todo.pop(0)](); n += 2
            safe.update(dumped)
            if self.p5 and remaining == 0:
                while self.p5.early < self.p5.NW and (self.p5.early//2)*16384 in free:
                    self.p5.iw(k); self.p5.early += 1; n += 2
            if s < 7: colsum(s)
            return n
        run_sched(k, self.S, iss, {'W': 0 if self.staged else 4, 'A': 4}, extra, after_bar=cs_read)
        for v in todo: st6[v]()
        if st6 and not self.staged:
            k(f"s_branch {k.L('end')}")
        k.label("idle")
        if not self.staged:
            for f in st6: f()
        k.label("end")
        if not last: next_pre(k)
```

```python
from base import *
from sched import Sched, run_sched

class Proj:
    def __init__(self, mode):
        self.mode = mode
        self.NKS = 32 if mode == 3 else 56
        self.N = self.NKS//4
        self.XR = 131072
    def plan(self, first):
        KB = 1024
        G = 2
        if self.mode == 3:
            w = [i*8*KB for i in range(4)] + [64*KB + i*8*KB for i in range(4)]
            a = [32*KB + i*8*KB for i in range(4)] + [96*KB + i*8*KB for i in range(4)]
            self.S = Sched(8, w + a, 0 if first else 8, 2, 2, look=env('P3_LOOK', 3), group=env('P3_G', 1))
        else:
            slots = [i*8*KB for i in range(20)]
            self.S = Sched(14, slots, 0 if first else env('P6_PW', 14), 2, 2, look=env('P6_LOOK', 6), group=env('P6_G', 2), wreg=self.wreg6(first))
    def wreg6(self, first): return (not first) and env('P6_PW', 14) < 14
    def roles(self, k):
        self.sTb = k.s(); self.sCb = k.s()
        k(f"s_lshl_b32 s{k.sT0}, s{k.sX}, 2")
        k(f"s_and_b32 s{k.sT1}, s{k.sJ}, 3")
        k(f"s_add_u32 s{self.sTb}, s{k.sT0}, s{k.sT1}")
        k(f"s_lshr_b32 s{self.sCb}, s{k.sJ}, 2")

    def c(self, k, first, last):
        mode = self.mode; N = self.N; XR = self.XR
        k.pfx = f"p{mode}c_"; m = k.mark()
        self.plan(first); S = self.S
        SC = "" if last else SCOPE_ST
        LD = "" if first else SCOPE_LD
        T0, T1 = k.sT0, k.sT1; WSr = sr(k.sWS, 4); vL16 = k.vL16; vLane = k.vLane
        self.roles(k)
        sTb, sCb = self.sTb, self.sCb
        vT0 = k.v(); vT1 = k.v(); vT2 = k.v(2, 2); vT3 = vT2+1
        k(f"s_cmp_ge_u32 s{k.sWave}, 4")
        k(f"s_cbranch_scc1 {k.L('idle')}")
        sTh = k.s(); sCt = k.s(); sTT = k.s(); sHo = k.s(); sXo = k.s(); sFl = k.s(); sSX = k.s(4, 4)
        vWa = k.v(); vAa = k.v()
        vR = k.v(8, 4)
        vW = [k.v(16, 4), k.v(16, 4)]
        vA = [k.v(16, 4), k.v(16, 4)]
        vAcc = k.v(16, 4)
        vE = k.v(16, 4)
        k(f"s_and_b32 s{sTh}, s{k.sWave}, 1")
        k(f"s_lshr_b32 s{sCt}, s{k.sWave}, 1")
        k(f"s_lshl_b32 s{sTT}, s{sTb}, 1")
        k(f"s_add_u32 s{sTT}, s{sTT}, s{sTh}")
        k(f"s_lshl_b32 s{sFl}, s{sTT}, 4")
        k(f"s_lshl_b32 s{T1}, s{sCb}, 1")
        k(f"s_add_u32 s{sFl}, s{sFl}, s{T1}")
        k(f"s_add_u32 s{sFl}, s{sFl}, s{sCt}")
        k(f"s_lshl_b32 s{sHo}, s{sFl}, 11")
        k(f"s_add_u32 s{sHo}, s{sHo}, {WS_HF:#x}")
        k(f"s_lshl_b32 s{sXo}, s{sTT}, 15")
        k(f"s_lshl_b32 s{T1}, s{sCb}, 7")
        k(f"s_add_u32 s{sXo}, s{sXo}, s{T1}")
        k(f"s_lshl_b32 s{T1}, s{sCt}, 6")
        k(f"s_add_u32 s{sXo}, s{sXo}, s{T1}")
        tr_base(k, vWa, vT0, natural=False)
        k(f"s_lshl_b32 s{T0}, s{sCt}, 10")
        k(f"v_add_u32 v{vWa}, s{T0}, v{vWa}")
        k(f"s_lshl_b32 s{T0}, s{sTh}, 12")
        k(f"v_add_u32 v{vAa}, s{T0}, v{vL16}")
        wins = sorted({a >> 16 for a in S.addr.values()})
        Ww = Win(k, vWa, wins); Aw = Win(k, vAa, wins)
        for i in range(16): k(f"v_mov_b32 v{vAcc+i}, 0")
        if mode == 3:
            k(f"v_and_b32 v{vT0}, 31, v{vLane}")
            k(f"v_lshlrev_b32 v{vT0}, 6, v{vT0}")
            k(f"v_lshrrev_b32 v{vT2}, 5, v{vLane}")
            k(f"v_lshl_add_u32 v{vT0}, v{vT2}, 3, v{vT0}")
            k(f"s_lshl_b32 s{T0}, s{k.sWave}, 11")
            k(f"s_add_u32 s{T0}, s{T0}, {XR}")
            k(f"v_add_u32 v{vT0}, s{T0}, v{vT0}")
            k(f"v_bfe_u32 v{vT2}, v{vLane}, 2, 2")
            for p in range(4):
                k(f"v_xor_b32 v{vE+p}, {p}, v{vT2}")
                k(f"v_lshl_add_u32 v{vE+p}, v{vE+p}, 4, v{vT0}")
        else:
            k(f"v_and_b32 v{vT0}, 31, v{vLane}")
            k(f"v_lshlrev_b32 v{vT0}, 10, v{vT0}")
            k(f"v_lshrrev_b32 v{vT2}, 5, v{vLane}")
            k(f"v_lshl_add_u32 v{vT0}, v{vT2}, 4, v{vT0}")
        if first:
            k.ptrs_ready()
            if not last: nonce_fetch(k, vW[0])
        if mode == 6:
            k.srd(sSX, k.ptr(KA_OUT), T*D*2)
            k(f"buffer_load_dwordx4 {vr(vR,4)}, v{vL16}, {WSr}, s{sHo} offen{LD}")
            k(f"buffer_load_dwordx4 {vr(vR+4,4)}, v{vL16}, {WSr}, s{sHo} offen offset:1024{LD}")
        if not first:
            k(f"s_cmp_lg_u32 s{k.sWave}, {PW}")
            k(f"s_cbranch_scc1 {k.L('nopoll')}")
            if mode == 6 and not P5N:
                k(f"s_cmp_lt_u32 s{k.sJ}, 28")
                k(f"s_cbranch_scc1 {k.L('nolong')}")
                k(f"s_lshl_b32 s{T0}, s{sTb}, 3")
                k(f"s_add_u32 s{T0}, s{T0}, {FL5}")
                poll(k, "poll0", T0, vT1, vT2, n=1, sleep=8, pipe=False)
                k.label("nolong")
            if mode == 3:
                k(f"s_lshl_b32 s{T0}, s{k.sX}, 5")
                k(f"s_add_u32 s{T0}, s{T0}, {FL2}")
                rep_off(k, T0, k.sJ, R2)
            else:
                k(f"s_lshl_b32 s{T0}, s{sTb}, 3")
                k(f"s_add_u32 s{T0}, s{T0}, {FL5}")
                rep_off(k, T0, sCb, R5)
            poll(k, "poll", T0, vT1, vT2, n=32 if mode == 3 else 7 + P5N)
            k.label("nopoll")
            k(f"s_barrier")
            k.stamp("ready")
        def reads(u):
            b = u & 1; l = []
            for i in range(4):
                l.append(f"ds_read_b128 {vr(vA[b]+4*i,4)}, {Aw.at(S.addr[('A',u)] + i*1024)}")
                l.append(f"ds_read_b64_tr_b16 {vr(vW[b]+4*i,2)}, {Ww.at(S.addr[('W',u)] + i*2048)}")
                l.append(f"ds_read_b64_tr_b16 {vr(vW[b]+4*i+2,2)}, {Ww.at(S.addr[('W',u)] + i*2048 + 512)}")
            return l
        def comp(u):
            b = u & 1
            return [f"v_mfma_f32_32x32x16_bf16 {vr(vAcc,16)}, {vr(vW[b]+4*i,4)}, {vr(vA[b]+4*i,4)}, {vr(vAcc,16)}" for i in range(4)]
        G = S.group
        for u in range(N):
            if u % G == 0:
                k(f"s_barrier")
                if u == 0: k.stamp("data")
            rd = reads(u)
            if u == 1 and mode == 3:
                rd += [f"ds_read_b64 {vr(vR+2*p,2)}, v{vE+p}" for p in range(4)]
            RLX = mode == 3 and env("P3_RLX", 1) and u != 2
            if u == 0 or (u % G == 0 and not RLX):
                interleave(k, comp(u-1) if u else [], rd, per=4)
            elif mode == 3 and u == 2:
                interleave(k, comp(u-1), rd, per=4)
            else:
                cp = comp(u-1)
                for i in range(4):
                    k.many(rd[3*i:3*i+3])
                    k(f"s_waitcnt lgkmcnt({min(15, 9 - 3*i + 3*(i+1))})")
                    k(cp[i])
                k.many(rd[12:])
            if u < N-1 and (((u+1) % G == 0 and not (mode == 3 and env("P3_RLX", 1))) or (mode == 3 and u == 1)): k(f"s_waitcnt lgkmcnt(0)")
            if u == 3:
                if mode == 6: k(f"s_waitcnt vmcnt(0)")
                for r in range(8):
                    k(f"v_lshlrev_b32 v{vE+2*r}, 16, v{vR+r}")
                    k(f"v_and_b32 v{vE+2*r+1}, 0xffff0000, v{vR+r}")
        last_c = comp(N-1)
        for i in range(4):
            k(f"s_waitcnt lgkmcnt({9-3*i})")
            k(last_c[i])
        if not last: k(f"s_barrier")
        k.stamp("loopend")
        k(f"s_nop {10 if last else 9}")
        for r in range(16): k(f"v_add_f32 v{vAcc+r}, v{vAcc+r}, v{vE+r}")
        for r in range(8): k(f"v_cvt_pk_bf16_f32 v{vR+r}, v{vAcc+2*r}, v{vAcc+2*r+1}")
        if mode == 3:
            k(f"buffer_store_dwordx4 {vr(vR,4)}, v{vL16}, {WSr}, s{sHo} offen{SC}")
            k(f"buffer_store_dwordx4 {vr(vR+4,4)}, v{vL16}, {WSr}, s{sHo} offen offset:1024{SC}")
            vS = vW[0]
            k(f"v_add_f32 v{vS}, v{vAcc}, v{vAcc+1}")
            k(f"v_mul_f32 v{vS+1}, v{vAcc}, v{vAcc}")
            k(f"v_add_f32 v{vS+2}, v{vAcc+2}, v{vAcc+3}")
            k(f"v_mul_f32 v{vS+3}, v{vAcc+1}, v{vAcc+1}")
            for r in range(2, 16):
                if r >= 4: k(f"v_add_f32 v{vS+2*(r&1)}, v{vS+2*(r&1)}, v{vAcc+r}")
                k(f"v_fmac_f32 v{vS+1+2*(r&1)}, v{vAcc+r}, v{vAcc+r}")
            k(f"v_add_f32 v{vS}, v{vS}, v{vS+2}")
            k(f"v_add_f32 v{vS+1}, v{vS+1}, v{vS+3}")
            half_combine(k, [vS, vS+1], [vT1, vT2])
            k(f"v_lshlrev_b32 v{vT0}, 3, v{vLane}")
            k(f"s_lshl_b32 s{T0}, s{sFl}, 8")
            k(f"s_add_u32 s{T0}, s{T0}, {WS_HS:#x}")
            k(f"s_mov_b32 exec_hi, 0")
            k(f"buffer_store_dwordx2 {vr(vS,2)}, v{vT0}, {WSr}, s{T0} offen{SC}")
            k(f"s_mov_b32 exec_hi, -1")
            k.stamp("stored")
            if not last:
                k(f"s_lshl_b32 s{sFl}, s{sTb}, 3")
                k(f"s_add_u32 s{sFl}, s{sFl}, s{sCb}")
                k(f"s_add_u32 s{sFl}, s{sFl}, {FL3}")
                publish(k, sFl, vT0, vT2, R3)
                k.stamp("flag")
        else:
            k(f"s_nop 1")
            for m_ in range(2):
                k(f"v_permlane32_swap_b32 v{vR+4*m_}, v{vR+4*m_+2}")
                k(f"v_permlane32_swap_b32 v{vR+4*m_+1}, v{vR+4*m_+3}")
            k(f"buffer_store_dwordx4 {vr(vR,4)}, v{vT0}, {sr(sSX,4)}, s{sXo} offen")
            k(f"buffer_store_dwordx4 {vr(vR+4,4)}, v{vT0}, {sr(sSX,4)}, s{sXo} offen offset:32")
            k.stamp("stored")
            if not first and env("STAMP_DBG", -1) < 0:
                k(f"s_or_b32 s{T0}, s2, s{k.sWave}")
                k(f"s_cbranch_scc1 {k.L('end')}")
                k(f"v_mov_b32 v{vT2}, 0"); k(f"v_mov_b32 v{vT3}, 0")
                k(f"s_mov_b64 exec, 1")
                k(f"global_store_dwordx2 v{vT2}, {vr(vT2,2)}, {sr(k.ptr(KA_DBG),2)}")
                k(f"s_mov_b64 exec, -1")
        k(f"s_branch {k.L('end')}")
        k.label("idle")
        if first and not last:
            k.ptrs_ready()
            nonce_publish(k, vW[0])
            nonce_fetch(k, vW[0], "nf2")
        if not first: k(f"s_barrier")
        if last: k(f"s_endpgm")
        else:
            for _ in range(S.NB+2): k(f"s_barrier")
        k.label("end")
        k.reset(m)

    def l_setup(self, k):
        mode = self.mode; T0, T1 = k.sT0, k.sT1; sLw = k.sLw
        k.pfx = f"p{mode}l_"
        self.roles(k)
        self.sSW = k.s(4, 4); self.sAo = k.s(); self.sWo = k.s(); self.sM = k.s(); self.sRot = k.s()
        self.vWd = k.v(2); self.vT = k.v(2) if mode == 3 else k.vLt
        vT = self.vT
        k(f"s_lshl_b32 s{self.sRot}, s{T1}, 1")
        k(f"s_add_u32 s{self.sRot}, s{self.sRot}, s{self.sCb}")
        k(f"s_and_b32 s{self.sRot}, s{self.sRot}, {7 if env('P36_ROT', 0) else 0}")
        if mode == 6:
            k(f"s_mul_i32 s{self.sRot}, s{self.sRot}, 7")
            k(f"s_lshr_b32 s{self.sRot}, s{self.sRot}, 2")
        k(f"v_lshrrev_b32 v{vT}, 2, v{k.vLane}")
        k(f"v_lshlrev_b32 v{vT}, 10, v{vT}")
        k(f"v_and_b32 v{vT+1}, 3, v{k.vLane}")
        k(f"v_lshl_add_u32 v{self.vWd}, v{vT+1}, 4, v{vT}")
        k(f"v_add_u32 v{self.vWd+1}, 64, v{self.vWd}")
        k(f"v_add_u32 v{self.vWd}, 1024, v{self.vWd}")
        k(f"s_lshr_b32 s{T0}, s{sLw}, 1")
        k(f"s_lshl_b32 s{T1}, s{self.sTb}, 1")
        k(f"s_add_u32 s{T0}, s{T0}, s{T1}")
        k(f"s_mul_i32 s{self.sAo}, s{T0}, {self.NKS*1024}")
        k(f"s_and_b32 s{T0}, s{sLw}, 1")
        k(f"s_lshl_b32 s{T0}, s{T0}, 11")
        k(f"s_add_u32 s{self.sAo}, s{self.sAo}, s{T0}")
        k(f"s_add_u32 s{self.sAo}, s{self.sAo}, {(WS_OF if mode == 3 else WS_UF):#x}")
        k(f"s_lshl_b32 s{self.sM}, s{sLw}, 11")
        k(f"s_lshl_b32 s{self.sWo}, s{sLw}, 14")
        k(f"s_lshl_b32 s{T0}, s{self.sCb}, 7")
        k(f"s_add_u32 s{self.sWo}, s{self.sWo}, s{T0}")
    def l_srd(self, k):
        k.srd(self.sSW, k.ptr(KA_WO if self.mode == 3 else KA_WOUT), self.NKS*16*1024, bias=1024)
    def issue(self, k, kind, u, a, LD):
        T0 = k.sT0; N = self.N
        if kind == 'W' and self.staged and self.mode == 6:
            for i in range(2):
                ad = self.Wn.at(a + i*1024).split(" ")
                k(f"ds_write_b128 {ad[0]}, {vr(k.vStage+16+8*u+4*i,4)} {ad[1]}")
            return
        k(f"s_add_u32 s{T0}, s{self.sRot}, {u}")
        if N == 8: k(f"s_and_b32 s{T0}, s{T0}, 7")
        else:
            k(f"s_sub_u32 s{k.sT1}, s{T0}, {N}")
            k(f"s_cselect_b32 s{T0}, s{T0}, s{k.sT1}")
        k(f"s_add_u32 m0, s{self.sM}, {a}")
        if kind == 'W':
            k(f"s_lshl_b32 s{T0}, s{T0}, 16")
            k(f"s_add_u32 s{T0}, s{T0}, s{self.sWo}")
            k(f"buffer_load_dwordx4 v{self.vWd}, {sr(self.sSW,4)}, s{T0} offen lds")
            k(f"buffer_load_dwordx4 v{self.vWd+1}, {sr(self.sSW,4)}, s{T0} offen offset:1024 lds")
        else:
            k(f"s_lshl_b32 s{T0}, s{T0}, 12")
            k(f"s_add_u32 s{T0}, s{T0}, s{self.sAo}")
            k(f"buffer_load_dwordx4 v{k.vL16}, {sr(k.sWS,4)}, s{T0} offen{LD} lds")
            k(f"buffer_load_dwordx4 v{k.vL16}, {sr(k.sWS,4)}, s{T0} offen offset:1024{LD} lds")
    def stage_regs(self, k):
        m = k.mark()
        self.l_setup(k); self.l_srd(k)
        out = []
        for u in range(self.N):
            def f(u=u, sRot=self.sRot, sWo=self.sWo, vWd=self.vWd, sSW=self.sSW):
                T0 = k.sT0
                k(f"s_add_u32 s{T0}, s{sRot}, {u}")
                k(f"s_sub_u32 s{k.sT1}, s{T0}, {self.N}")
                k(f"s_cselect_b32 s{T0}, s{T0}, s{k.sT1}")
                k(f"s_lshl_b32 s{T0}, s{T0}, 16")
                k(f"s_add_u32 s{T0}, s{T0}, s{sWo}")
                k(f"buffer_load_dwordx4 {vr(k.vStage+16+8*u,4)}, v{vWd}, {sr(sSW,4)}, s{T0} offen")
                k(f"buffer_load_dwordx4 {vr(k.vStage+16+8*u+4,4)}, v{vWd+1}, {sr(sSW,4)}, s{T0} offen offset:1024")
            out.append(f)
        self.staged = True
        return out
    staged = False
    p4n = None
    def mid(self, k):
        if not P5N:
            k(f"s_cmp_ge_u32 s{k.sJ}, 28")
            k(f"s_cbranch_scc1 {k.L('nomid')}")
        k(f"s_barrier")
        k.label("nomid")
    def l_pre(self, k):
        k.reset(k.lbase)
        self.plan(False)
        self.l_setup(k); self.l_srd(k)
        if self.staged:
            vD = k.v()
            k(f"v_add_u32 v{vD}, s{self.sM}, v{k.vL16}")
            Wn = self.Wn = Win(k, vD, [0, 1, 2])
            k(f"s_waitcnt vmcnt(0)")
            for kd, u, a in self.S.pre:
                if u == env("P6_SPLIT", 4): self.mid(k)
                for i in range(2):
                    ad = Wn.at(a + i*1024).split(" ")
                    k(f"ds_write_b128 {ad[0]}, {vr(k.vStage+16+8*u+4*i,4)} {ad[1]}")
            k(f"s_waitcnt lgkmcnt(0)")
        else:
            if self.mode == 6: self.mid(k)
            for kd, u, a in self.S.pre: self.issue(k, kd, u, a, "")
    def xres(self, k):
        T0, T1 = k.sT0, k.sT1; vT = self.vT; sLw = k.sLw
        sSX = k.s(4, 4); vX = k.v()
        k.srd(sSX, k.ptr(KA_X), T*D*2)
        k(f"v_lshrrev_b32 v{vX}, 4, v{k.vLane}")
        k(f"v_xor_b32 v{vX}, v{vT+1}, v{vX}")
        k(f"v_lshl_add_u32 v{vX}, v{vX}, 4, v{vT}")
        k(f"s_lshl_b32 s{T0}, s{self.sTb}, 16")
        k(f"s_and_b32 s{T1}, s{sLw}, 1")
        k(f"s_lshl_b32 s{T1}, s{T1}, 15")
        k(f"s_add_u32 s{T0}, s{T0}, s{T1}")
        k(f"s_lshl_b32 s{T1}, s{self.sCb}, 7")
        k(f"s_add_u32 s{T0}, s{T0}, s{T1}")
        k(f"s_lshr_b32 s{T1}, s{sLw}, 1")
        k(f"s_lshl_b32 s{T1}, s{T1}, 6")
        k(f"s_add_u32 m0, s{self.sM}, {self.XR}")
        k(f"s_add_u32 s{T0}, s{T0}, s{T1}")
        k(f"buffer_load_dwordx4 v{vX}, {sr(sSX,4)}, s{T0} offen lds")
        k(f"s_add_u32 m0, m0, 1024")
        k(f"s_add_u32 s{T0}, s{T0}, 16384")
        k(f"buffer_load_dwordx4 v{vX}, {sr(sSX,4)}, s{T0} offen lds")
    def l(self, k, first, last, next_pre):
        LD = "" if first else SCOPE_LD
        if first:
            self.plan(True)
            self.l_setup(k); k.ptrs_ready(); self.l_srd(k)
        k.pfx = f"p{self.mode}l_"
        if self.mode == 3:
            self.xres(k)
            if not first: k(f"s_barrier")
            if self.p4n: self.p4n.cs_pre(k)
        if not first: k(f"s_barrier")
        run_sched(k, self.S, lambda kd, u, a: self.issue(k, kd, u, a, LD), {'W': 0 if (self.staged and self.mode == 6) else 2, 'A': 2})
        if not last:
            k(f"s_barrier")
            next_pre(k)
            k(f"s_barrier")
```

```python
import sys
from base import *
if env("P1N", 2) == 3: from p1v import P1
elif env("P1N", 2) == 2: from p1n_v1 import P1
elif env("P1N", 2): from p1n import P1
else: from p1 import P1
from p2 import P2
from p36 import Proj
if env('P4N', 1): from p4n import P4
else: from p4 import P4
if P5D: from p5d import P5
elif P5N: from p5n import P5
else: from p5 import P5
st = env("STAMP", 0) == 1
groups = [[int(c) for c in g] for g in env("GRP", "1,2,3,4,5,6").split(",")]
mk = {1: P1, 2: P2, 3: lambda: Proj(3), 4: P4, 5: P5, 6: lambda: Proj(6)}
NAME = "sequential_preLN__mha_block__mixer_gmlp__prompt_kernel"
ks = []
for gi, g in enumerate(groups):
    k = K(NAME if len(groups) == 1 else "ph" + "".join(map(str, g)) + "_kernel", stamps=st, kidx=gi)
    ph = [mk[p]() for p in g]
    d = dict(zip(g, ph))
    if 4 in d and 5 in d: d[4].p5n = d[5]
    if env('P4N', 1) and 3 in d and 4 in d: d[3].p4n = d[4]
    if env("REGSTAGE", 1):
        if 2 in d and 4 in d: d[2].p4 = d[4]; d[4].staged = True
        if 4 in d and 6 in d and env('ST6', 1): d[4].p6 = d[6]
        if 4 in d and 5 in d and env('EARLY5', 0): d[4].p5 = d[5]
    k(f"s_cmp_ge_u32 s2, 256")
    k(f"s_cbranch_scc1 L_{k.name}_exit")
    k.prologue()
    k.sLw = k.s()
    k(f"s_sub_u32 s{k.sLw}, s{k.sWave}, 8")
    k(f"s_cbranch_scc0 L_{k.name}_loader")
    k.lbase = k.mark()
    for i, p in enumerate(ph):
        mx = k.vmax; k.vmax = 0
        p.c(k, i == 0, i == len(ph)-1)
        print('phase', g[i], 'compute vgprs', k.vmax)
        k.vmax = max(mx, k.vmax)
    k.pfx = ""
    k.stamp_flush()
    k.label("exit")
    k("s_endpgm")
    k.label("loader")
    k("s_setprio 3")
    k.reset(k.lbase)
    k.vDump = k.v()
    k.vLt = k.v(2)
    k.vStage = k.v(128, 4)
    if env('P4N', 1): k.vCsp = k.v(16, 4)
    k.lbase = k.mark()
    k.pfx = "l0_"
    code_touch(k, k.vLt, k.vDump)
    for i, p in enumerate(ph):
        def pre(k, q=ph[i+1] if i+1 < len(ph) else None):
            k.stamp("pre0"); q.l_pre(k); k.stamp("pre1")
        p.l(k, i == 0, i == len(ph)-1, pre)
    k.pfx = "l_"
    k.stamp_flush()
    k("s_endpgm")
    k.pfx = ""
    k.label("codeend")
    if env('ALIGN', 0):
        import align
        print('align fixes', align.align(k, env('ALIGN', 0)))
    ks.append(k)
emit(ks, sys.argv[1] if len(sys.argv) > 1 else "cur.s")
for k in ks: print(k.name, "vgpr", k.vmax, "sgpr", k.smax, "lines", len(k.lines))
```

```python
import os, struct
def env(n, d): return type(d)(os.environ.get(n, d))
T = 2048; D = 512; H = 32; DH = 16; F = 1792; FH = 896
KA_X, KA_WQKV, KA_WO, KA_BX, KA_WIN, KA_WSP, KA_BSP, KA_WOUT, KA_OUT, KA_DBG, KA_WS = [8*i for i in range(11)]
WS_QF  = 0x000000
WS_KVF = 0x200000
WS_OF  = 0x600000
WS_HF  = 0x800000
WS_Z1F = 0xA00000
WS_Z2I = 0xE00000
WS_UF  = 0x1200000
WS_PS  = 0x1600000
WS_HS  = 0x1680000
WS_FL  = 0x1700000
FS = 128; FSH = 7
NFL = 24576
RS = 256; RSH = 8
R1 = env("R1", 8); R2 = env("R2", 8); R3 = env("R3", 4); R4 = env("R4", 8); R5 = env("R5", 2)
FL1 = 0
FL2 = FL1 + 8*RS
FL3 = FL2 + 8*RS
FL4 = FL3 + 8*RS
FL5 = FL4 + 8*RS
FL4B = FL5 + 4*RS
assert R5 <= 4 and FL5 + 8*RS <= NFL
WS_END = 0x1A00000
WS_STAMP = 0x1C00000
LDS_MAX = 163840

def f32(x): return struct.unpack('<I', struct.pack('<f', x))[0]
def vr(a, n=1): return f"v{a}" if n == 1 else f"v[{a}:{a+n-1}]"
def sr(a, n=1): return f"s{a}" if n == 1 else f"s[{a}:{a+n-1}]"

P5N = env('P5N', 1)
P5D = env('P5D', 1)
SCOPE_ST = {0: "", 1: " sc1", 2: " sc0 sc1"}[env("SC_ST", 1)]
SCOPE_LD = {0: "", 1: " sc1", 2: " sc0 sc1"}[env("SC_LD", 1)]
SCOPE_PL = {1: " sc1", 2: " sc0 sc1"}[env("SC_PL", 1)]
SLEEP = env("POLL_SLEEP", 2)
PW = env('POLL_WAVE', 0)
THR = env("PRE_THR", 0)

class K:
    def __init__(self, name, stamps=False, kidx=0):
        self.name = name; self.grid = 256; self.block = 768; self.lds = LDS_MAX
        self.lines = []; self.vnext = 1; self.snext = 3; self.vmax = 1; self.smax = 3
        self.stamps = stamps; self.kidx = kidx; self.pfx = ""; self.nst = 0; self.stnames = []
    def __call__(self, s):
        for ln in s.strip("\n").split("\n"): self.lines.append("  " + ln.strip())
    def many(self, l):
        for s in l: self(s)
    def L(self, l): return f"L_{self.name}_{self.pfx}{l}"
    def label(self, l): self.lines.append(f"{self.L(l)}:")
    def v(self, n=1, align=1):
        a = (self.vnext + align - 1)//align*align
        self.vnext = a + n; self.vmax = max(self.vmax, self.vnext); return a
    def s(self, n=1, align=1):
        a = (self.snext + align - 1)//align*align
        self.snext = a + n; self.smax = max(self.smax, self.snext); assert self.snext <= 100; return a
    def mark(self): return (self.vnext, self.snext)
    def reset(self, m): self.vnext, self.snext = m
    def srd(self, s, lo, size, bias=0):
        if bias:
            self(f"s_sub_u32 s{s}, s{lo}, {bias}")
            self(f"s_subb_u32 s{s+1}, s{lo+1}, 0")
            self(f"s_and_b32 s{s+1}, s{s+1}, 0xffff")
        else:
            self(f"s_mov_b32 s{s}, s{lo}")
            self(f"s_and_b32 s{s+1}, s{lo+1}, 0xffff")
        self(f"s_mov_b32 s{s+2}, {size+bias:#x}")
        self(f"s_mov_b32 s{s+3}, 0x20000")
    def prologue(self):
        k = self
        k.sIn = k.s(16, 4)
        k.sP2 = k.s(4, 4)
        k.sWSp = k.s(2, 2)
        k.sWS = k.s(4, 4)
        k.sT0 = k.s(2, 2); k.sT1 = k.sT0 + 1; k.sWave = k.s(); k.sX = k.s(); k.sJ = k.s(); k.sCnt = k.s()
        k.sNon = k.s(2, 2)
        k.vLane = k.v(); k.vL16 = k.v()
        if k.stamps:
            k.sSt = k.s(2, 2); k.vSt = k.v()
            k(f"s_memrealtime s[{k.sSt}:{k.sSt+1}]")
            k(f"v_mov_b32 v{k.vSt}, 0")
            k(f"s_waitcnt lgkmcnt(0)")
            k(f"v_writelane_b32 v{k.vSt}, s{k.sSt}, 62")
            k.stamp("start")
        k(f"s_load_dwordx2 {sr(k.sWSp,2)}, s[0:1], {KA_WS}")
        k(f"s_load_dwordx16 {sr(k.sIn,16)}, s[0:1], 0")
        k(f"s_load_dwordx4 {sr(k.sP2,4)}, s[0:1], {KA_OUT}")
        k(f"v_lshrrev_b32 v{k.vL16}, 6, v0")
        k(f"v_and_b32 v{k.vLane}, 63, v0")
        k(f"v_readfirstlane_b32 s{k.sWave}, v{k.vL16}")
        k(f"v_lshlrev_b32 v{k.vL16}, 4, v{k.vLane}")
        k(f"s_and_b32 s{k.sX}, s2, 7")
        k(f"s_lshr_b32 s{k.sJ}, s2, 3")
    def ptrs_ready(self):
        self(f"s_waitcnt lgkmcnt(0)")
        self.srd(self.sWS, self.sWSp, WS_END)
    def ptr(self, ka):
        return self.sIn + ka//4 if ka < 64 else self.sP2 + (ka-64)//4
    def stamp(self, name):
        if not self.stamps: return
        if env("STAMP_DBG", -1) >= 0 and self.pfx + name not in ("start p1c_xin p1c_loopend p1c_flag p2c_data p2c_xch p3c_data p3c_flag p4c_data p4c_loopend p4c_flag p5c_ready p5c_loopend p6c_data").split(): return
        if name != "start" and (env("STAMP_WAVE", 0) >= 8) != (self.pfx[2:3] == "l"): return
        i = self.nst; self.nst += 1; self.stnames.append(self.pfx + name); assert i < 62
        self(f"{'s_memrealtime' if env('STAMP_RT', 1) else 's_memtime'} s[{self.sSt}:{self.sSt+1}]")
        self(f"s_waitcnt lgkmcnt(0)")
        self(f"v_writelane_b32 v{self.vSt}, s{self.sSt}, {i}")
    def stamp_flush(self):
        if not self.stamps: return
        k = self
        w = env("STAMP_WAVE", 0)
        k(f"s_cmp_lg_u32 s{k.sWave}, {w}")
        k(f"s_cbranch_scc1 {k.L('nostamp')}")
        k(f"s_waitcnt vmcnt(0)")
        k(f"s_memrealtime s[{k.sSt}:{k.sSt+1}]")
        k(f"s_waitcnt lgkmcnt(0)")
        k(f"v_writelane_b32 v{k.vSt}, s{k.sSt}, 63")
        if env("STAMP_DBG", -1) >= 0:
            k(f"s_cmp_lg_u32 s2, {env('STAMP_DBG', -1)}")
            k(f"s_cbranch_scc1 {k.L('nostamp')}")
            k(f"v_readlane_b32 s{k.sT0}, v{k.vSt}, 0")
            k(f"v_writelane_b32 v{k.vSt}, s{k.sSt}, 0")
            k(f"s_nop 1")
            k(f"v_subrev_u32 v{k.vSt}, s{k.sT0}, v{k.vSt}")
            k(f"v_lshlrev_b32 v{k.vL16}, 2, v{k.vLane}")
            k(f"s_mov_b64 exec, 0x3fff")
            k(f"global_store_dword v{k.vL16}, v{k.vSt}, {sr(k.ptr(KA_DBG),2)} offset:8")
            k.label('nostamp')
            return
        k(f"s_add_u32 s{k.sSt}, s{k.sWSp}, {WS_STAMP + k.kidx*65536}")
        k(f"s_addc_u32 s{k.sSt+1}, s{k.sWSp+1}, 0")
        k(f"s_lshl_b32 s{k.sT0}, s2, 8")
        k(f"v_lshl_add_u32 v{k.vL16}, v{k.vLane}, 2, s{k.sT0}")
        k(f"global_store_dword v{k.vL16}, v{k.vSt}, s[{k.sSt}:{k.sSt+1}]")
        k.label('nostamp')
    def header(self):
        if env("PLAIN", 0): return f"; @launch grid=({self.grid},1,1) block=({self.block},1,1) lds={self.lds}"
        return f"; @launch kernel={self.name} grid=({self.grid},1,1) block=({self.block},1,1) lds={self.lds}"
    def text(self):
        nv = (max(self.vmax, 8) + 3)//4*4
        assert nv <= 168, (self.name, nv)
        body = "\n".join(self.lines)
        return f"""
.text
.globl {self.name}
.p2align 8
.type {self.name},@function
{self.name}:
{body}
.section .rodata,"a"
.p2align 6
.amdhsa_kernel {self.name}
  .amdhsa_next_free_vgpr {nv}
  .amdhsa_next_free_sgpr {max(self.smax, 16)}
  .amdhsa_accum_offset {nv}
  .amdhsa_group_segment_fixed_size 0
  .amdhsa_kernarg_size 88
  .amdhsa_user_sgpr_count 2
  .amdhsa_user_sgpr_kernarg_segment_ptr 1
  .amdhsa_system_sgpr_workgroup_id_x 1
.end_amdhsa_kernel
"""

HEADER = """; Kernarg layout for this problem (88 bytes, ptrs only, base s[0:1]):
"""
def emit(kernels, path):
    s = HEADER + "\n".join(k.header() for k in kernels) + "\n"
    s += '.amdgcn_target "amdgcn-amd-amdhsa--gfx950"\n'
    for k in kernels: s += k.text()
    open(path, "w").write(s)
    import json
    json.dump([k.stnames for k in kernels], open(path + ".stn", "w"))

def tr_base(k, vTr, vTmp, natural):
    L = k.vLane
    k(f"v_lshrrev_b32 v{vTmp}, 5, v{L}")
    k(f"v_lshlrev_b32 v{vTr}, {9 if natural else 8}, v{vTmp}")
    k(f"v_bfe_u32 v{vTmp}, v{L}, 2, 2")
    k(f"v_lshl_add_u32 v{vTr}, v{vTmp}, 6, v{vTr}")
    k(f"v_bfe_u32 v{vTmp}, v{L}, 4, 1")
    k(f"v_lshl_add_u32 v{vTr}, v{vTmp}, 5, v{vTr}")
    k(f"v_and_b32 v{vTmp}, 3, v{L}")
    k(f"v_lshl_add_u32 v{vTr}, v{vTmp}, 3, v{vTr}")

def half_combine(k, regs, vT, op="v_add_f32"):
    for r, t in zip(regs, vT): k(f"v_mov_b32 v{t}, v{r}")
    k("s_nop 1")
    for r, t in zip(regs, vT): k(f"v_permlane32_swap_b32 v{t}, v{r}")
    k("s_nop 1")
    for r, t in zip(regs, vT): k(f"{op} v{r}, v{r}, v{t}")

def interleave(k, mm, rd, tail=(), per=4):
    mm = list(mm); rd = list(rd); tail = list(tail)
    while rd or mm:
        if mm:
            g = mm.pop(0)
            if isinstance(g, str): k(g)
            elif callable(g): g()
            else: k.many(g)
        for _ in range(per):
            if rd: k(rd.pop(0))
            elif tail: k(tail.pop(0))
    k.many(tail)

class Win:
    def __init__(self, k, vbase, wins):
        self.regs = {}
        for w in wins:
            if w == 0: self.regs[0] = vbase
            else:
                r = k.v(); k(f"v_add_u32 v{r}, {w*65536}, v{vbase}"); self.regs[w] = r
    def at(self, off):
        w = off >> 16
        return f"v{self.regs[w]} offset:{off & 0xffff}"

def nonce_publish(k, vA, wave=7):
    m = k.mark(); sD = k.s(4, 4)
    k(f"s_cmp_lg_u32 s2, 0")
    k(f"s_cbranch_scc1 {k.L('nopub')}")
    k(f"s_cmp_lg_u32 s{k.sWave}, {wave}")
    k(f"s_cbranch_scc1 {k.L('nopub')}")
    k(f"s_memrealtime {sr(k.sNon,2)}")
    k.srd(sD, k.ptr(KA_DBG), 256)
    k(f"s_waitcnt lgkmcnt(0)")
    k(f"s_or_b32 s{k.sNon+1}, s{k.sNon+1}, 0x80000000")
    k(f"v_mov_b32 v{vA}, s{k.sNon}")
    k(f"v_mov_b32 v{vA+1}, s{k.sNon+1}")
    k(f"v_mov_b32 v{vA+2}, 0")
    k(f"s_mov_b64 exec, 1")
    k(f"buffer_store_dwordx2 {vr(vA,2)}, v{vA+2}, {sr(sD,4)}, 0 offen{SCOPE_PL}")
    k(f"s_mov_b64 exec, -1")
    k.label("nopub")
    k.reset(m)

def nonce_fetch(k, vA, name="nf"):
    m = k.mark(); sD = k.s(4, 4)
    k.srd(sD, k.ptr(KA_DBG), 256)
    k(f"v_mov_b32 v{vA+2}, 0")
    k(f"s_mov_b32 s{k.sCnt}, 100000")
    k.label(name)
    k(f"buffer_load_dwordx2 {vr(vA,2)}, v{vA+2}, {sr(sD,4)}, 0 offen{SCOPE_PL}")
    k(f"s_waitcnt vmcnt(0)")
    k(f"v_readfirstlane_b32 s{k.sNon+1}, v{vA+1}")
    k(f"v_readfirstlane_b32 s{k.sNon}, v{vA}")
    k(f"s_sub_u32 s{k.sCnt}, s{k.sCnt}, 1")
    k(f"s_cbranch_scc1 {k.L(name+'x')}")
    k(f"s_cmp_lt_u32 s{k.sNon+1}, 0x80000000")
    k(f"s_cbranch_scc1 {k.L(name)}")
    k.label(name+'x')
    k.reset(m)

def poll(k, name, sIdx, vA, vD, n=64, spin=100000, sleep=None, pipe=True, stride=0):
    vD2 = None
    if pipe and env('POLL_PIPE', 0): vD, vD2 = k.vPoll, k.vPoll + 4
    if sleep is None: sleep = SLEEP
    k(f"s_lshl_b32 s{sIdx}, s{sIdx}, {FSH}")
    k(f"s_add_u32 s{sIdx}, s{sIdx}, {WS_FL:#x}")
    if n < 64:
        k(f"v_min_u32 v{vA}, {n-1}, v{k.vLane}")
        k(f"v_lshlrev_b32 v{vA}, {FSH + stride}, v{vA}")
    else:
        k(f"v_lshlrev_b32 v{vA}, {FSH + (n == 128)}, v{k.vLane}")
    k(f"s_mov_b32 s{k.sCnt}, {spin}")
    if n < 64: k(f"s_mov_b64 exec, {(1 << n) - 1:#x}" if n <= 31 else f"s_mov_b32 exec_hi, {(1 << (n-32)) - 1:#x}")
    nl = 2 if n == 128 else 1
    def ld(d):
        k(f"buffer_load_dwordx2 {vr(d,2)}, v{vA}, {sr(k.sWS,4)}, s{sIdx} offen{SCOPE_PL}")
        if n == 128: k(f"buffer_load_dwordx2 {vr(d+2,2)}, v{vA}, {sr(k.sWS,4)}, s{sIdx} offen offset:{FS}{SCOPE_PL}")
    def chk(d):
        k(f"v_cmp_ne_u64 vcc, {sr(k.sNon,2)}, {vr(d,2)}")
        if n == 128:
            m = k.mark(); sM = k.s(2, 2)
            k(f"v_cmp_ne_u64 {sr(sM,2)}, {sr(k.sNon,2)}, {vr(d+2,2)}")
            k(f"s_or_b64 vcc, vcc, {sr(sM,2)}")
            k.reset(m)
        k(f"s_and_b64 exec, exec, vcc")
    if vD2 is None:
        d0 = env("PD_" + k.pfx[:2], 0) if name == "poll" else 0
        if d0: k(f"s_sleep {d0}")
        k(f"s_branch {k.L(name+'g')}")
        k.label(name)
        k(f"s_sleep {sleep}")
        k.label(name+'g')
        ld(vD)
        k(f"s_sub_u32 s{k.sCnt}, s{k.sCnt}, 1")
        k(f"s_cbranch_scc1 {k.L(name+'x')}")
        k(f"s_waitcnt vmcnt(0)")
        chk(vD)
        k(f"s_cbranch_scc1 {k.L(name)}")
    else:
        ld(vD)
        k(f"s_sleep {env('POLL_HALF', 5)}")
        k.label(name)
        ld(vD2)
        k(f"s_sub_u32 s{k.sCnt}, s{k.sCnt}, 1")
        k(f"s_cbranch_scc1 {k.L(name+'x')}")
        k(f"s_waitcnt vmcnt({nl})")
        chk(vD)
        k(f"s_cbranch_scc0 {k.L(name+'x')}")
        ld(vD)
        k(f"s_waitcnt vmcnt({nl})")
        chk(vD2)
        k(f"s_cbranch_scc1 {k.L(name)}")
    k.label(name+'x')
    k(f"s_mov_b64 exec, -1")

def stored(k):
    k(f"s_waitcnt vmcnt(0)")
    k(f"s_barrier")

def set_flag(k, sIdx, vA, vD, rep):
    k(f"s_cmp_lg_u32 s{k.sWave}, {PW}")
    k(f"s_cbranch_scc1 {k.L('nofl')}")
    k(f"s_mov_b64 exec, {(1 << rep) - 1}")
    k(f"buffer_store_dwordx2 {vr(vD,2)}, v{vA}, {sr(k.sWS,4)}, s{sIdx} offen{SCOPE_PL}")
    k(f"s_mov_b64 exec, -1")
    k.label("nofl")
def prep_flag(k, sIdx, vA, vD):
    k(f"s_lshl_b32 s{sIdx}, s{sIdx}, {FSH}")
    k(f"s_add_u32 s{sIdx}, s{sIdx}, {WS_FL:#x}")
    k(f"v_lshlrev_b32 v{vA}, {RSH + FSH}, v{k.vLane}")
    k(f"v_mov_b32 v{vD}, s{k.sNon}")
    k(f"v_mov_b32 v{vD+1}, s{k.sNon+1}")
def publish(k, sIdx, vA, vD, rep):
    prep_flag(k, sIdx, vA, vD); stored(k); set_flag(k, sIdx, vA, vD, rep)
def rep_off(k, sIdx, sSel, rep):
    k(f"s_and_b32 s{k.sT1}, s{sSel}, {rep-1}")
    k(f"s_lshl_b32 s{k.sT1}, s{k.sT1}, {RSH}")
    k(f"s_add_u32 s{sIdx}, s{sIdx}, s{k.sT1}")

def sel16(k, vSel, vT):
    k(f"v_and_b32 v{vT}, 31, v{k.vLane}")
    k(f"v_cmp_eq_u32 vcc, 0, v{vT}")
    k(f"v_cmp_eq_u32 {sr(k.sT0 if k.sT0 % 2 == 0 else k.sT0+1,2)}, 17, v{vT}")
    k(f"v_mov_b32 v{vT}, 0x3f803f80")
    k(f"s_or_b64 vcc, vcc, {sr(k.sT0 if k.sT0 % 2 == 0 else k.sT0+1,2)}")
    k(f"s_nop 0")
    for i in range(4): k(f"v_cndmask_b32 v{vSel+i}, 0, v{vT}, vcc")

def code_touch(k, vA, vD):
    if not env("CODE_PF", 1): return
    m = k.mark(); sP = k.s(2, 2)
    k(f"s_lshl_b32 s{k.sT0}, s{k.sJ}, 2")
    k(f"s_add_u32 s{k.sT0}, s{k.sT0}, s{k.sLw}")
    k(f"s_lshl_b32 s{k.sT0}, s{k.sT0}, 13")
    k(f"s_cmp_ge_u32 s{k.sT0}, L_{k.name}_codeend-{k.name}")
    k(f"s_cbranch_scc1 {k.L('noct')}")
    k(f"s_getpc_b64 {sr(sP,2)}")
    k.label("pc")
    k(f"s_sub_u32 s{sP}, s{sP}, {k.L('pc')}-{k.name}")
    k(f"s_subb_u32 s{sP+1}, s{sP+1}, 0")
    k(f"v_lshl_add_u32 v{vA}, v{k.vLane}, 7, s{k.sT0}")
    k(f"v_min_u32 v{vA}, L_{k.name}_codeend-{k.name}-4, v{vA}")
    k(f"global_load_dword v{vD}, v{vA}, {sr(sP,2)}")
    k.label("noct")
    k.reset(m)

def warm(k, vA, vD, what):
    T0, T1 = k.sT0, k.sT1; WSr = sr(k.sWS, 4)
    def fl(n=1):
        k(f"s_lshl_b32 s{T0}, s{T0}, {FSH}")
        k(f"s_add_u32 s{T0}, s{T0}, {WS_FL:#x}")
        for i in range(n):
            k(f"buffer_load_dword v{vD}, v{vA}, {WSr}, s{T0} offen{SCOPE_PL}")
            if i < n-1: k(f"s_add_u32 s{T0}, s{T0}, {64*FS}")
    if "t" in what:
        k(f"v_lshlrev_b32 v{vA}, 19, v{k.vLane}")
        k(f"buffer_load_dword v{vD}, v{vA}, {WSr}, 0 offen{SCOPE_PL}")
    k(f"v_lshlrev_b32 v{vA}, {FSH}, v{k.vLane}")
    if "1" in what:
        k(f"s_lshl_b32 s{T0}, s2, 3")
        k(f"s_mov_b64 exec, 0xff")
        fl()
        k(f"s_mov_b64 exec, -1")
    if "a" in what:
        k(f"s_lshl_b32 s{T0}, s2, 5")
        k(f"s_add_u32 s{T0}, s{T0}, {FL2}")
        k(f"s_mov_b32 exec_hi, 0")
        fl()
        k(f"s_mov_b64 exec, -1")
        k(f"s_lshl_b32 s{T0}, s2, 12")
        k(f"s_add_u32 s{T0}, s{T0}, {WS_PS:#x}")
        k(f"v_lshlrev_b32 v{vA}, 6, v{k.vLane}")
        k(f"buffer_load_dword v{vD}, v{vA}, {WSr}, s{T0} offen{SCOPE_PL}")
```

```python
from base import *
from sched import Sched, run_sched

class Proj:
    def __init__(self, mode):
        self.mode = mode
        self.NKS = 32 if mode == 3 else 56
        self.N = self.NKS//4
        self.XR = 131072
    def plan(self, first):
        KB = 1024
        G = 2
        if self.mode == 3:
            w = [i*8*KB for i in range(4)] + [64*KB + i*8*KB for i in range(4)]
            a = [32*KB + i*8*KB for i in range(4)] + [96*KB + i*8*KB for i in range(4)]
            self.S = Sched(8, w + a, 0 if first else 8, 2, 2, look=env('P3_LOOK', 3), group=env('P3_G', 1))
        else:
            slots = [i*8*KB for i in range(20)]
            self.S = Sched(14, slots, 0 if first else env('P6_PW', 14), 2, 2, look=env('P6_LOOK', 4), group=env('P6_G', 1), wreg=self.wreg6(first))
    def wreg6(self, first): return (not first) and env('P6_PW', 14) < 14
    def roles(self, k):
        self.sTb = k.s(); self.sCb = k.s()
        k(f"s_lshl_b32 s{k.sT0}, s{k.sX}, 2")
        k(f"s_and_b32 s{k.sT1}, s{k.sJ}, 3")
        k(f"s_add_u32 s{self.sTb}, s{k.sT0}, s{k.sT1}")
        k(f"s_lshr_b32 s{self.sCb}, s{k.sJ}, 2")

    def c(self, k, first, last):
        mode = self.mode; N = self.N; XR = self.XR
        k.pfx = f"p{mode}c_"; m = k.mark()
        self.plan(first); S = self.S
        SC = "" if last else SCOPE_ST
        LD = "" if first else SCOPE_LD
        T0, T1 = k.sT0, k.sT1; WSr = sr(k.sWS, 4); vL16 = k.vL16; vLane = k.vLane
        self.roles(k)
        sTb, sCb = self.sTb, self.sCb
        vT0 = k.v(); vT1 = k.v(); vT2 = k.v(2, 2); vT3 = vT2+1
        k(f"s_cmp_ge_u32 s{k.sWave}, 4")
        k(f"s_cbranch_scc1 {k.L('idle')}")
        sTh = k.s(); sCt = k.s(); sTT = k.s(); sHo = k.s(); sXo = k.s(); sFl = k.s(); sSX = k.s(4, 4)
        vWa = k.v(); vAa = k.v()
        vR = k.v(8, 4)
        vW = [k.v(16, 4), k.v(16, 4), k.v(16, 4)]
        vA = [k.v(16, 4), k.v(16, 4)]
        vAcc = k.v(16, 4)
        vE = k.v(16, 4)
        k(f"s_and_b32 s{sTh}, s{k.sWave}, 1")
        k(f"s_lshr_b32 s{sCt}, s{k.sWave}, 1")
        k(f"s_lshl_b32 s{sTT}, s{sTb}, 1")
        k(f"s_add_u32 s{sTT}, s{sTT}, s{sTh}")
        k(f"s_lshl_b32 s{sFl}, s{sTT}, 4")
        k(f"s_lshl_b32 s{T1}, s{sCb}, 1")
        k(f"s_add_u32 s{sFl}, s{sFl}, s{T1}")
        k(f"s_add_u32 s{sFl}, s{sFl}, s{sCt}")
        k(f"s_lshl_b32 s{sHo}, s{sFl}, 11")
        k(f"s_add_u32 s{sHo}, s{sHo}, {WS_HF:#x}")
        k(f"s_lshl_b32 s{sXo}, s{sTT}, 15")
        k(f"s_lshl_b32 s{T1}, s{sCb}, 7")
        k(f"s_add_u32 s{sXo}, s{sXo}, s{T1}")
        k(f"s_lshl_b32 s{T1}, s{sCt}, 6")
        k(f"s_add_u32 s{sXo}, s{sXo}, s{T1}")
        tr_base(k, vWa, vT0, natural=False)
        k(f"s_lshl_b32 s{T0}, s{sCt}, 10")
        k(f"v_add_u32 v{vWa}, s{T0}, v{vWa}")
        k(f"s_lshl_b32 s{T0}, s{sTh}, 12")
        k(f"v_add_u32 v{vAa}, s{T0}, v{vL16}")
        wins = sorted({a >> 16 for a in S.addr.values()})
        Ww = Win(k, vWa, wins); Aw = Win(k, vAa, wins)
        for i in range(16): k(f"v_mov_b32 v{vAcc+i}, 0")
        if mode == 3:
            k(f"v_and_b32 v{vT0}, 31, v{vLane}")
            k(f"v_lshlrev_b32 v{vT0}, 6, v{vT0}")
            k(f"v_lshrrev_b32 v{vT2}, 5, v{vLane}")
            k(f"v_lshl_add_u32 v{vT0}, v{vT2}, 3, v{vT0}")
            k(f"s_lshl_b32 s{T0}, s{k.sWave}, 11")
            k(f"s_add_u32 s{T0}, s{T0}, {XR}")
            k(f"v_add_u32 v{vT0}, s{T0}, v{vT0}")
            k(f"v_bfe_u32 v{vT2}, v{vLane}, 2, 2")
            for p in range(4):
                k(f"v_xor_b32 v{vE+p}, {p}, v{vT2}")
                k(f"v_lshl_add_u32 v{vE+p}, v{vE+p}, 4, v{vT0}")
        else:
            k(f"v_and_b32 v{vT0}, 31, v{vLane}")
            k(f"v_lshlrev_b32 v{vT0}, 10, v{vT0}")
            k(f"v_lshrrev_b32 v{vT2}, 5, v{vLane}")
            k(f"v_lshl_add_u32 v{vT0}, v{vT2}, 4, v{vT0}")
        if first:
            k.ptrs_ready()
            if not last: nonce_fetch(k, vW[0])
        if mode == 6:
            k.srd(sSX, k.ptr(KA_OUT), T*D*2)
            k(f"buffer_load_dwordx4 {vr(vR,4)}, v{vL16}, {WSr}, s{sHo} offen{LD}")
            k(f"buffer_load_dwordx4 {vr(vR+4,4)}, v{vL16}, {WSr}, s{sHo} offen offset:1024{LD}")
        if not first:
            k(f"s_cmp_lg_u32 s{k.sWave}, {PW}")
            k(f"s_cbranch_scc1 {k.L('nopoll')}")
            if mode == 6 and not P5N:
                k(f"s_cmp_lt_u32 s{k.sJ}, 28")
                k(f"s_cbranch_scc1 {k.L('nolong')}")
                k(f"s_lshl_b32 s{T0}, s{sTb}, 3")
                k(f"s_add_u32 s{T0}, s{T0}, {FL5}")
                poll(k, "poll0", T0, vT1, vT2, n=1, sleep=8, pipe=False)
                k.label("nolong")
            if mode == 3:
                k(f"s_lshl_b32 s{T0}, s{k.sX}, 5")
                k(f"s_add_u32 s{T0}, s{T0}, {FL2}")
                rep_off(k, T0, k.sJ, R2)
            else:
                k(f"s_lshl_b32 s{T0}, s{sTb}, 3")
                k(f"s_add_u32 s{T0}, s{T0}, {FL5}")
                rep_off(k, T0, sCb, R5)
            poll(k, "poll", T0, vT1, vT2, n=32 if mode == 3 else 7 + P5N)
            k.label("nopoll")
            k(f"s_barrier")
            k.stamp("ready")
            def rdW(u):
                l = []
                for i in range(4):
                    l.append(f"ds_read_b64_tr_b16 {vr(vW[u%3]+4*i,2)}, {Ww.at(S.addr[('W',u)] + i*2048)}")
                    l.append(f"ds_read_b64_tr_b16 {vr(vW[u%3]+4*i+2,2)}, {Ww.at(S.addr[('W',u)] + i*2048 + 512)}")
                return l
            if env("P36_WPF", 1): k.many(rdW(0))
        def reads(u):
            b = u & 1; l = []
            for i in range(4):
                l.append(f"ds_read_b128 {vr(vA[b]+4*i,4)}, {Aw.at(S.addr[('A',u)] + i*1024)}")
                l.append(f"ds_read_b64_tr_b16 {vr(vW[b]+4*i,2)}, {Ww.at(S.addr[('W',u)] + i*2048)}")
                l.append(f"ds_read_b64_tr_b16 {vr(vW[b]+4*i+2,2)}, {Ww.at(S.addr[('W',u)] + i*2048 + 512)}")
            return l
        def comp(u):
            b = u & 1
            return [f"v_mfma_f32_32x32x16_bf16 {vr(vAcc,16)}, {vr(vW[b]+4*i,4)}, {vr(vA[b]+4*i,4)}, {vr(vAcc,16)}" for i in range(4)]
        G = S.group
        WPF = env("P36_WPF", 1) and not first
        if WPF:
            def rdA(u): return [f"ds_read_b128 {vr(vA[u&1]+4*i,4)}, {Aw.at(S.addr[('A',u)] + i*1024)}" for i in range(4)]
            def cmp3(u): return [f"v_mfma_f32_32x32x16_bf16 {vr(vAcc,16)}, {vr(vW[u%3]+4*i,4)}, {vr(vA[u&1]+4*i,4)}, {vr(vAcc,16)}" for i in range(4)]
            for u in range(N):
                if u % G == 0:
                    k(f"s_barrier")
                    if u == 0: k.stamp("data")
                rd = rdA(u)
                if u == 1 and mode == 3:
                    rd += [f"ds_read_b64 {vr(vR+2*p,2)}, v{vE+p}" for p in range(4)]
                nW = rdW(u+1) if u+1 < N else []
                k.many(rd[:2])
                interleave(k, cmp3(u-1) if u else [], rd[2:] + nW, per=3)
                if u == 3:
                    if mode == 6: k(f"s_waitcnt vmcnt(0)")
                    for r in range(8):
                        k(f"v_lshlrev_b32 v{vE+2*r}, 16, v{vR+r}")
                        k(f"v_and_b32 v{vE+2*r+1}, 0xffff0000, v{vR+r}")
                if u < N-1: k(f"s_waitcnt lgkmcnt({len(nW)})")
            for i in range(4):
                k(f"s_waitcnt lgkmcnt({3-i})")
                k(cmp3(N-1)[i])
        else:
            for u in range(N):
                if u % G == 0:
                    k(f"s_barrier")
                    if u == 0: k.stamp("data")
                rd = reads(u)
                if u == 1 and mode == 3:
                    rd += [f"ds_read_b64 {vr(vR+2*p,2)}, v{vE+p}" for p in range(4)]
                RLX = mode == 3 and env("P3_RLX", 1) and u != 2
                if u == 0 or (u % G == 0 and not RLX):
                    interleave(k, comp(u-1) if u else [], rd, per=4)
                elif mode == 3 and u == 2:
                    interleave(k, comp(u-1), rd, per=4)
                else:
                    cp = comp(u-1)
                    for i in range(4):
                        k.many(rd[3*i:3*i+3])
                        k(f"s_waitcnt lgkmcnt({min(15, 9 - 3*i + 3*(i+1))})")
                        k(cp[i])
                    k.many(rd[12:])
                if u < N-1 and (((u+1) % G == 0 and not (mode == 3 and env("P3_RLX", 1))) or (mode == 3 and u == 1)): k(f"s_waitcnt lgkmcnt(0)")
                if u == 3:
                    if mode == 6: k(f"s_waitcnt vmcnt(0)")
                    for r in range(8):
                        k(f"v_lshlrev_b32 v{vE+2*r}, 16, v{vR+r}")
                        k(f"v_and_b32 v{vE+2*r+1}, 0xffff0000, v{vR+r}")
            last_c = comp(N-1)
            for i in range(4):
                k(f"s_waitcnt lgkmcnt({9-3*i})")
                k(last_c[i])
        if not last: k(f"s_barrier")
        k.stamp("loopend")
        k(f"s_nop {11 if last else 10}")
        for r in range(16): k(f"v_add_f32 v{vAcc+r}, v{vAcc+r}, v{vE+r}")
        for r in range(8): k(f"v_cvt_pk_bf16_f32 v{vR+r}, v{vAcc+2*r}, v{vAcc+2*r+1}")
        if mode == 3:
            k(f"buffer_store_dwordx4 {vr(vR,4)}, v{vL16}, {WSr}, s{sHo} offen{SC}")
            k(f"buffer_store_dwordx4 {vr(vR+4,4)}, v{vL16}, {WSr}, s{sHo} offen offset:1024{SC}")
            vS = vW[0]
            k(f"v_add_f32 v{vS}, v{vAcc}, v{vAcc+1}")
            k(f"v_mul_f32 v{vS+1}, v{vAcc}, v{vAcc}")
            k(f"v_add_f32 v{vS+2}, v{vAcc+2}, v{vAcc+3}")
            k(f"v_mul_f32 v{vS+3}, v{vAcc+1}, v{vAcc+1}")
            for r in range(2, 16):
                if r >= 4: k(f"v_add_f32 v{vS+2*(r&1)}, v{vS+2*(r&1)}, v{vAcc+r}")
                k(f"v_fmac_f32 v{vS+1+2*(r&1)}, v{vAcc+r}, v{vAcc+r}")
            k(f"v_add_f32 v{vS}, v{vS}, v{vS+2}")
            k(f"v_add_f32 v{vS+1}, v{vS+1}, v{vS+3}")
            half_combine(k, [vS, vS+1], [vT1, vT2])
            k(f"v_lshlrev_b32 v{vT0}, 3, v{vLane}")
            k(f"s_lshl_b32 s{T0}, s{sFl}, 8")
            k(f"s_add_u32 s{T0}, s{T0}, {WS_HS:#x}")
            k(f"s_mov_b32 exec_hi, 0")
            k(f"buffer_store_dwordx2 {vr(vS,2)}, v{vT0}, {WSr}, s{T0} offen{SC}")
            k(f"s_mov_b32 exec_hi, -1")
            k.stamp("stored")
            if not last:
                k(f"s_lshl_b32 s{sFl}, s{sTb}, 3")
                k(f"s_add_u32 s{sFl}, s{sFl}, s{sCb}")
                k(f"s_add_u32 s{sFl}, s{sFl}, {FL3}")
                publish(k, sFl, vT0, vT2, R3)
                k.stamp("flag")
        else:
            k(f"s_nop 1")
            for m_ in range(2):
                k(f"v_permlane32_swap_b32 v{vR+4*m_}, v{vR+4*m_+2}")
                k(f"v_permlane32_swap_b32 v{vR+4*m_+1}, v{vR+4*m_+3}")
            k(f"buffer_store_dwordx4 {vr(vR,4)}, v{vT0}, {sr(sSX,4)}, s{sXo} offen{env('OUT_SC', '')}")
            k(f"buffer_store_dwordx4 {vr(vR+4,4)}, v{vT0}, {sr(sSX,4)}, s{sXo} offen offset:32{env('OUT_SC', '')}")
            k.stamp("stored")
            if not first and env("STAMP_DBG", -1) < 0:
                k(f"s_or_b32 s{T0}, s2, s{k.sWave}")
                k(f"s_cbranch_scc1 {k.L('end')}")
                k(f"v_mov_b32 v{vT2}, 0"); k(f"v_mov_b32 v{vT3}, 0")
                k(f"s_mov_b64 exec, 1")
                k(f"global_store_dwordx2 v{vT2}, {vr(vT2,2)}, {sr(k.ptr(KA_DBG),2)}")
                k(f"s_mov_b64 exec, -1")
        k(f"s_branch {k.L('end')}")
        k.label("idle")
        if first and not last:
            k.ptrs_ready()
            nonce_publish(k, vW[0])
            nonce_fetch(k, vW[0], "nf2")
        if not first: k(f"s_barrier")
        if last: k(f"s_endpgm")
        else:
            for _ in range(S.NB+2): k(f"s_barrier")
        k.label("end")
        k.reset(m)

    def l_setup(self, k):
        mode = self.mode; T0, T1 = k.sT0, k.sT1; sLw = k.sLw
        k.pfx = f"p{mode}l_"
        self.roles(k)
        self.sSW = k.s(4, 4); self.sAo = k.s(); self.sWo = k.s(); self.sM = k.s(); self.sRot = k.s()
        self.vWd = k.v(2); self.vT = k.v(2) if mode == 3 else k.vLt
        vT = self.vT
        k(f"s_lshl_b32 s{self.sRot}, s{T1}, 1")
        k(f"s_add_u32 s{self.sRot}, s{self.sRot}, s{self.sCb}")
        k(f"s_and_b32 s{self.sRot}, s{self.sRot}, {7 if env('P36_ROT', 0) else 0}")
        if mode == 6:
            k(f"s_mul_i32 s{self.sRot}, s{self.sRot}, 7")
            k(f"s_lshr_b32 s{self.sRot}, s{self.sRot}, 2")
        k(f"v_lshrrev_b32 v{vT}, 2, v{k.vLane}")
        k(f"v_lshlrev_b32 v{vT}, 10, v{vT}")
        k(f"v_and_b32 v{vT+1}, 3, v{k.vLane}")
        k(f"v_lshl_add_u32 v{self.vWd}, v{vT+1}, 4, v{vT}")
        k(f"v_add_u32 v{self.vWd+1}, 64, v{self.vWd}")
        k(f"v_add_u32 v{self.vWd}, 1024, v{self.vWd}")
        k(f"s_lshr_b32 s{T0}, s{sLw}, 1")
        k(f"s_lshl_b32 s{T1}, s{self.sTb}, 1")
        k(f"s_add_u32 s{T0}, s{T0}, s{T1}")
        k(f"s_mul_i32 s{self.sAo}, s{T0}, {self.NKS*1024}")
        k(f"s_and_b32 s{T0}, s{sLw}, 1")
        k(f"s_lshl_b32 s{T0}, s{T0}, 11")
        k(f"s_add_u32 s{self.sAo}, s{self.sAo}, s{T0}")
        k(f"s_add_u32 s{self.sAo}, s{self.sAo}, {(WS_OF if mode == 3 else WS_UF):#x}")
        k(f"s_lshl_b32 s{self.sM}, s{sLw}, 11")
        k(f"s_lshl_b32 s{self.sWo}, s{sLw}, 14")
        k(f"s_lshl_b32 s{T0}, s{self.sCb}, 7")
        k(f"s_add_u32 s{self.sWo}, s{self.sWo}, s{T0}")
    def l_srd(self, k):
        k.srd(self.sSW, k.ptr(KA_WO if self.mode == 3 else KA_WOUT), self.NKS*16*1024, bias=1024)
    def issue(self, k, kind, u, a, LD):
        T0 = k.sT0; N = self.N
        if kind == 'W' and self.staged and self.mode == 6:
            for i in range(2):
                ad = self.Wn.at(a + i*1024).split(" ")
                k(f"ds_write_b128 {ad[0]}, {vr(k.vStage+16+8*u+4*i,4)} {ad[1]}")
            return
        k(f"s_add_u32 s{T0}, s{self.sRot}, {u}")
        if N == 8: k(f"s_and_b32 s{T0}, s{T0}, 7")
        else:
            k(f"s_sub_u32 s{k.sT1}, s{T0}, {N}")
            k(f"s_cselect_b32 s{T0}, s{T0}, s{k.sT1}")
        k(f"s_add_u32 m0, s{self.sM}, {a}")
        if kind == 'W':
            k(f"s_lshl_b32 s{T0}, s{T0}, 16")
            k(f"s_add_u32 s{T0}, s{T0}, s{self.sWo}")
            k(f"buffer_load_dwordx4 v{self.vWd}, {sr(self.sSW,4)}, s{T0} offen lds")
            k(f"buffer_load_dwordx4 v{self.vWd+1}, {sr(self.sSW,4)}, s{T0} offen offset:1024 lds")
        else:
            k(f"s_lshl_b32 s{T0}, s{T0}, 12")
            k(f"s_add_u32 s{T0}, s{T0}, s{self.sAo}")
            k(f"buffer_load_dwordx4 v{k.vL16}, {sr(k.sWS,4)}, s{T0} offen{LD} lds")
            k(f"buffer_load_dwordx4 v{k.vL16}, {sr(k.sWS,4)}, s{T0} offen offset:1024{LD} lds")
    def stage_regs(self, k):
        m = k.mark()
        self.l_setup(k); self.l_srd(k)
        out = []
        for u in range(self.N):
            def f(u=u, sRot=self.sRot, sWo=self.sWo, vWd=self.vWd, sSW=self.sSW):
                T0 = k.sT0
                k(f"s_add_u32 s{T0}, s{sRot}, {u}")
                k(f"s_sub_u32 s{k.sT1}, s{T0}, {self.N}")
                k(f"s_cselect_b32 s{T0}, s{T0}, s{k.sT1}")
                k(f"s_lshl_b32 s{T0}, s{T0}, 16")
                k(f"s_add_u32 s{T0}, s{T0}, s{sWo}")
                k(f"buffer_load_dwordx4 {vr(k.vStage+16+8*u,4)}, v{vWd}, {sr(sSW,4)}, s{T0} offen")
                k(f"buffer_load_dwordx4 {vr(k.vStage+16+8*u+4,4)}, v{vWd+1}, {sr(sSW,4)}, s{T0} offen offset:1024")
            out.append(f)
        self.staged = True
        return out
    staged = False
    p4n = None
    def mid(self, k):
        if not P5N:
            k(f"s_cmp_ge_u32 s{k.sJ}, 28")
            k(f"s_cbranch_scc1 {k.L('nomid')}")
        k(f"s_barrier")
        k.label("nomid")
    def l_pre(self, k):
        k.reset(k.lbase)
        self.plan(False)
        self.l_setup(k); self.l_srd(k)
        if self.staged:
            vD = k.v()
            k(f"v_add_u32 v{vD}, s{self.sM}, v{k.vL16}")
            Wn = self.Wn = Win(k, vD, [0, 1, 2])
            k(f"s_waitcnt vmcnt(0)")
            for kd, u, a in self.S.pre:
                if u == env("P6_SPLIT", 4): self.mid(k)
                for i in range(2):
                    ad = Wn.at(a + i*1024).split(" ")
                    k(f"ds_write_b128 {ad[0]}, {vr(k.vStage+16+8*u+4*i,4)} {ad[1]}")
            k(f"s_waitcnt lgkmcnt(0)")
        else:
            if self.mode == 6: self.mid(k)
            for kd, u, a in self.S.pre: self.issue(k, kd, u, a, "")
    def xres(self, k):
        T0, T1 = k.sT0, k.sT1; vT = self.vT; sLw = k.sLw
        sSX = k.s(4, 4); vX = k.v()
        k.srd(sSX, k.ptr(KA_X), T*D*2)
        k(f"v_lshrrev_b32 v{vX}, 4, v{k.vLane}")
        k(f"v_xor_b32 v{vX}, v{vT+1}, v{vX}")
        k(f"v_lshl_add_u32 v{vX}, v{vX}, 4, v{vT}")
        k(f"s_lshl_b32 s{T0}, s{self.sTb}, 16")
        k(f"s_and_b32 s{T1}, s{sLw}, 1")
        k(f"s_lshl_b32 s{T1}, s{T1}, 15")
        k(f"s_add_u32 s{T0}, s{T0}, s{T1}")
        k(f"s_lshl_b32 s{T1}, s{self.sCb}, 7")
        k(f"s_add_u32 s{T0}, s{T0}, s{T1}")
        k(f"s_lshr_b32 s{T1}, s{sLw}, 1")
        k(f"s_lshl_b32 s{T1}, s{T1}, 6")
        k(f"s_add_u32 m0, s{self.sM}, {self.XR}")
        k(f"s_add_u32 s{T0}, s{T0}, s{T1}")
        k(f"buffer_load_dwordx4 v{vX}, {sr(sSX,4)}, s{T0} offen lds")
        k(f"s_add_u32 m0, m0, 1024")
        k(f"s_add_u32 s{T0}, s{T0}, 16384")
        k(f"buffer_load_dwordx4 v{vX}, {sr(sSX,4)}, s{T0} offen lds")
    def l(self, k, first, last, next_pre):
        LD = "" if first else SCOPE_LD
        if first:
            self.plan(True)
            self.l_setup(k); k.ptrs_ready(); self.l_srd(k)
        k.pfx = f"p{self.mode}l_"
        if self.mode == 3:
            self.xres(k)
            if not first: k(f"s_barrier")
            if self.p4n: self.p4n.cs_pre(k)
        if not first:
            k(f"s_waitcnt vmcnt(0)")
            k(f"s_barrier")
        run_sched(k, self.S, lambda kd, u, a: self.issue(k, kd, u, a, LD), {'W': 0 if (self.staged and self.mode == 6) else 2, 'A': 2})
        if not last:
            k(f"s_barrier")
            next_pre(k)
            k(f"s_barrier")
```

```python
from base import *

class P2:
    PAD = 131072
    XCH = 131072 + 12288
    def roles(self, k):
        self.sHead = k.s(); self.sQb = k.s()
        k(f"s_lshl_b32 s{k.sT0}, s{k.sX}, 2")
        k(f"s_lshr_b32 s{k.sT1}, s{k.sJ}, 3")
        k(f"s_add_u32 s{self.sHead}, s{k.sT0}, s{k.sT1}")
        k(f"s_and_b32 s{self.sQb}, s{k.sJ}, 7")

    def c(self, k, first, last):
        k.pfx = "p2c_"; m = k.mark()
        SC = "" if last else SCOPE_ST
        LD = "" if first else SCOPE_LD
        U = 4; PAD = self.PAD; XCH = self.XCH
        T0, T1 = k.sT0, k.sT1; WSr = sr(k.sWS, 4); vL16 = k.vL16; vLane = k.vLane
        self.roles(k)
        sHead, sQb = self.sHead, self.sQb
        sOoff = k.s(); sQo = k.s(); sKh = k.s(); sFl = k.s()
        vKa = k.v(); vVa = k.v(); vVinc = k.v(); vIdx = k.v(); vT0 = k.v(); vT1 = k.v(); vVa0 = k.v()
        vQ = [k.v(4, 4), k.v(4, 4)]
        vKf = [k.v(4, 4), k.v(4, 4)]
        vV0 = k.v(4, 4)
        vV1 = [k.v(4, 4), k.v(4, 4)]
        vS = [k.v(16, 4), k.v(16, 4)]
        vNM = [k.v(16, 4), k.v(16, 4)]
        vO = [k.v(16, 4), k.v(16, 4)]
        QK = lambda d, kf, q, c: k(f"v_mfma_f32_32x32x16_bf16 {vr(d,16)}, {vr(kf,4)}, {vr(q,4)}, {c}")
        PV = lambda o, v, s: k(f"v_smfmac_f32_32x32x32_bf16 {vr(o,16)}, {vr(v,4)}, {vr(s,8)}, v{vIdx}")
        k(f"s_lshr_b32 s{sKh}, s{k.sWave}, 2")
        k(f"s_and_b32 s{T0}, s{k.sWave}, 3")
        k(f"s_lshl_b32 s{T0}, s{T0}, 1")
        k(f"s_lshl_b32 s{T1}, s{sQb}, 3")
        k(f"s_add_u32 s{T0}, s{T0}, s{T1}")
        k(f"s_add_u32 s{sOoff}, s{T0}, s{sKh}")
        k(f"s_lshl_b32 s{sOoff}, s{sOoff}, 5")
        k(f"s_add_u32 s{sOoff}, s{sOoff}, s{sHead}")
        k(f"s_lshl_b32 s{sFl}, s{sQb}, 5")
        k(f"s_add_u32 s{sFl}, s{sFl}, s{sHead}")
        k(f"s_add_u32 s{sFl}, s{sFl}, {FL2}")
        k(f"s_lshl_b32 s{sOoff}, s{sOoff}, 10")
        k(f"s_add_u32 s{sOoff}, s{sOoff}, {WS_OF:#x}")
        k(f"s_lshl_b32 s{T1}, s{sHead}, 6")
        k(f"s_add_u32 s{sQo}, s{T0}, s{T1}")
        k(f"s_lshl_b32 s{sQo}, s{sQo}, 10")
        k(f"v_lshrrev_b32 v{vT0}, 5, v{vLane}")
        k(f"v_and_b32 v{vVa0}, 15, v{vLane}")
        k(f"v_lshl_add_u32 v{vVa0}, v{vT0}, 4, v{vVa0}")
        k(f"v_lshlrev_b32 v{vVa0}, 4, v{vVa0}")
        k(f"v_add_u32 v{vVa0}, 1024, v{vVa0}")
        k(f"v_and_b32 v{vT0}, 27, v{vLane}")
        k(f"v_cmp_eq_u32 vcc, 16, v{vT0}")
        k(f"v_mov_b32 v{vT1}, {PAD + 1024 + 16}")
        k(f"v_mov_b32 v{vKa}, {PAD + 1024}")
        k(f"v_cndmask_b32 v{vT1}, v{vT1}, v{vKa}, vcc")
        k(f"v_and_b32 v{vT0}, 16, v{vLane}")
        k(f"v_cmp_eq_u32 vcc, 0, v{vT0}")
        k(f"s_lshl_b32 s{T0}, s{sKh}, 16")
        k(f"v_mov_b32 v{vKa}, {U*2048}")
        k(f"v_cndmask_b32 v{vVinc}, 0, v{vKa}, vcc")
        k(f"v_add_u32 v{vVa}, s{T0}, v{vVa0}")
        k(f"v_cndmask_b32 v{vVa}, v{vT1}, v{vVa}, vcc")
        k(f"v_add_u32 v{vKa}, s{T0}, v{vL16}")
        k(f"v_mov_b32 v{vIdx}, 0xdddddddd")
        k(f"v_lshrrev_b32 v{vT0}, 1, v{vLane}")
        k(f"v_min_u32 v{vT0}, 23, v{vT0}")
        k(f"v_lshlrev_b32 v{vT0}, 9, v{vT0}")
        k(f"v_and_b32 v{vT1}, 1, v{vLane}")
        k(f"v_lshl_add_u32 v{vT0}, v{vT1}, 4, v{vT0}")
        k(f"v_add_u32 v{vT0}, {PAD}, v{vT0}")
        k(f"v_cmp_eq_u32 vcc, 0, v{vT1}")
        k(f"v_mov_b32 v{vT1}, 0x3f803f80")
        k(f"s_nop 0")
        for i in range(4): k(f"v_cndmask_b32 v{vV0+i}, 0, v{vT1}, vcc")
        k(f"ds_write_b128 v{vT0}, {vr(vV0,4)}")
        for t in range(2):
            for i in range(16): k(f"v_mov_b32 v{vO[t]+i}, 0")
        for i in range(8, 16): k(f"v_mov_b32 v{vS[1]+i}, 0")
        for i in range(4): k(f"v_mov_b32 v{vV1[1]+i}, 0")
        if first:
            k.ptrs_ready()
            if not last: nonce_publish(k, vS[0])
        else:
            if not env('P2_LP', 0):
                k(f"s_cmp_lg_u32 s{k.sWave}, {PW}")
                k(f"s_cbranch_scc1 {k.L('nopoll')}")
                k(f"s_lshl_b32 s{T0}, s{k.sX}, 5")
                rep_off(k, T0, k.sJ, R1)
                poll(k, "poll", T0, vT1, vQ[0], n=32)
                k.label("nopoll")
            k(f"s_barrier")
            k.stamp("ready")
        k(f"buffer_load_dwordx4 {vr(vQ[0],4)}, v{vL16}, {WSr}, s{sQo} offen{LD}")
        k(f"buffer_load_dwordx4 {vr(vQ[1],4)}, v{vL16}, {WSr}, s{sQo} offen offset:1024{LD}")
        k(f"s_waitcnt lgkmcnt(0)")
        k(f"s_barrier")
        k.stamp("data")
        k(f"ds_read_b128 {vr(vV0,4)}, v{vL16}")
        k(f"ds_read_b128 {vr(vKf[0],4)}, v{vKa}")
        k(f"ds_read_b128 {vr(vKf[1],4)}, v{vKa} offset:2048")
        k(f"s_waitcnt vmcnt(0) lgkmcnt(2)")
        QK(vNM[0], vV0, vQ[0], "0")
        QK(vNM[1], vV0, vQ[1], "0")
        k(f"ds_read_b128 {vr(vV0,4)}, v{vVa}")
        k(f"ds_read_b128 {vr(vV1[0],4)}, v{vVa} offset:512")
        k(f"s_nop 9")
        for t in range(2):
            N_ = vNM[t]
            k(f"v_max3_f32 v{vT0}, v{N_}, v{N_+1}, v{N_+2}")
            for i in range(3, 15, 2):
                k(f"v_max3_f32 v{vT0}, v{vT0}, v{N_+i}, v{N_+i+1}")
            k(f"v_max_f32 v{vT0}, v{vT0}, v{N_+15}")
            half_combine(k, [vT0], [vT1], op="v_max_f32")
            for i in range(16): k(f"v_sub_f32 v{N_+i}, 0, v{vT0}")
            if t == 0:
                k(f"s_waitcnt lgkmcnt(0)")
                k(f"s_nop 0")
                QK(vS[0], vKf[0], vQ[0], vr(vNM[0],16))
        e = lambda S, i, w="": k(f"v_exp_f32{w} v{S+i}, v{S+i}")
        A, B = vS[0], vS[1]
        LOOP = env("P2_LOOP", 32)
        FIX = "_e64" if env("P2_FIX", 1) else ""
        sPh = k.s()
        def step(st, unrolled, lastu):
            u = st % U; p = st & 1
            e(A,0); e(A,1)
            PV(vO[1], vV1[1-p], B+8)
            for i in range(2, 6): e(A,i)
            QK(B, vKf[p], vQ[1], vr(vNM[1],16))
            for i in range(6, 9): e(A,i)
            e(A, 9, FIX)
            k(f"s_waitcnt lgkmcnt(0)") if not FIX else None
            if FIX:
                k.lines.insert(len(k.lines)-1, "  s_waitcnt lgkmcnt(0)")
            PV(vO[0], vV0, A)
            for i in range(10, 16): e(A,i)
            e(B,0); e(B,1)
            PV(vO[0], vV1[p], A+8)
            for i in range(2, 6): e(B,i)
            if not (unrolled and st == 31): QK(A, vKf[1-p], vQ[0], vr(vNM[0],16))
            for i in range(6, 10): e(B,i)
            PV(vO[1], vV0, B)
            if not (unrolled and st == 31):
                k(f"ds_read_b128 {vr(vV0,4)}, v{vVa} offset:{(u+1)*2048}")
                k(f"ds_read_b128 {vr(vV1[1-p],4)}, v{vVa} offset:{(u+1)*2048+512}")
            if not (unrolled and st >= 30):
                k(f"ds_read_b128 {vr(vKf[p],4)}, v{vKa} offset:{(st+2)*2048}")
            elif st == 30:
                k(f"s_nop 0"); k(f"s_nop 0")
            for i in range(10, 12): e(B,i)
            if u == U-1: k(f"v_add_u32{FIX} v{vVa}, v{vVinc}, v{vVa}")
            if lastu:
                k(f"v_add_u32 v{vKa}, {LOOP*2048}, v{vKa}")
                k(f"s_sub_u32 s{k.sCnt}, s{k.sCnt}, 1")
                k(f"s_cmp_lg_u32 s{k.sCnt}, 0")
            for i in range(12, 16): e(B,i)
        if LOOP == 32:
            k(".p2align 3")
            for st in range(32):
                if st == 0 and env("P2_ST", 0): k.stamp("go"); k(".p2align 3")
                if st in self.BARS:
                    if env("P2_ST", 0): k.stamp(f"a{st}")
                    k(f"s_barrier")
                    if env("P2_ST", 0): k.stamp(f"b{st}")
                    k(".p2align 3")
                step(st, True, False)
        else:
            k(f"s_mov_b32 s{sPh}, 0")
            k(f"s_mov_b32 s{k.sCnt}, {self.BARS[0]//LOOP}")
            k(".p2align 3")
            k.label("loop")
            for st in range(LOOP): step(st, False, st == LOOP-1)
            k(f"s_cbranch_scc1 {k.L('loop')}")
            cn = [(b_ - a_)//LOOP for a_, b_ in zip(self.BARS, self.BARS[1:] + (32,))]
            k(f"s_cmp_ge_u32 s{sPh}, 3")
            k(f"s_cbranch_scc1 {k.L('fin')}")
            k(f"s_cmp_eq_u32 s{sPh}, 0")
            k(f"s_cselect_b32 s{k.sCnt}, {cn[0]}, {cn[1]}")
            k(f"s_cmp_eq_u32 s{sPh}, 2")
            k(f"s_cselect_b32 s{k.sCnt}, {cn[2]}, s{k.sCnt}")
            k(f"s_add_u32 s{sPh}, s{sPh}, 1")
            k(f"s_barrier")
            k(f"s_branch {k.L('loop')}")
            k.label("fin")
            k(f"s_waitcnt lgkmcnt(0)")
        k.stamp("loopend")
        k(f"s_mul_i32 s{T0}, s{k.sWave}, 2304")
        k(f"s_add_u32 s{T0}, s{T0}, {XCH}")
        PV(vO[1], vV1[1], vS[1]+8)
        k(f"v_add_u32 v{vT0}, s{T0}, v{vL16}")
        k(f"v_lshlrev_b32 v{vKa}, 2, v{vLane}")
        k(f"v_add_u32 v{vKa}, s{T0}, v{vKa}")
        k(f"s_xor_b32 s{T1}, s{k.sWave}, 4")
        k(f"s_mul_i32 s{T1}, s{T1}, 2304")
        k(f"s_add_u32 s{T1}, s{T1}, {XCH}")
        k(f"v_add_u32 v{vT1}, s{T1}, v{vL16}")
        k(f"v_lshlrev_b32 v{vVa}, 2, v{vLane}")
        k(f"v_add_u32 v{vVa}, s{T1}, v{vVa}")
        k(f"s_nop 2")
        k(f"s_cmp_eq_u32 s{sKh}, 0")
        k(f"s_cbranch_scc1 {k.L('kh0')}")
        k(f"ds_write_b128 v{vT0}, {vr(vO[0],4)}")
        k(f"ds_write_b128 v{vT0}, {vr(vO[0]+4,4)} offset:1024")
        k(f"ds_write_b32 v{vKa}, v{vO[0]+8} offset:2048")
        k(f"s_waitcnt lgkmcnt(0)")
        for i in range(9): k(f"v_mov_b32 v{vO[0]+i}, v{vO[1]+i}")
        for i in range(4): k(f"v_mov_b32 v{vQ[0]+i}, v{vQ[1]+i}")
        k(f"s_branch {k.L('xch')}")
        k.label("kh0")
        k(f"ds_write_b128 v{vT0}, {vr(vO[1],4)}")
        k(f"ds_write_b128 v{vT0}, {vr(vO[1]+4,4)} offset:1024")
        k(f"ds_write_b32 v{vKa}, v{vO[1]+8} offset:2048")
        k(f"s_waitcnt lgkmcnt(0)")
        k.label("xch")
        k(f"s_barrier")
        k.stamp("xch")
        k(f"ds_read_b128 {vr(vS[0],4)}, v{vT1}")
        k(f"ds_read_b128 {vr(vS[0]+4,4)}, v{vT1} offset:1024")
        k(f"ds_read_b32 v{vS[0]+8}, v{vVa} offset:2048")
        k(f"s_waitcnt lgkmcnt(0)")
        O = vO[0]
        for i in range(9): k(f"v_add_f32 v{O+i}, v{O+i}, v{vS[0]+i}")
        k(f"v_add_f32 v{vT0}, abs(v{O}), v{O+8}")
        for i in range(1, 8): k(f"v_add_f32 v{vT0}, abs(v{O+i}), v{vT0}")
        k(f"s_mov_b32 s{T0}, 0x71800000")
        k(f"v_cmp_gt_f32 vcc, s{T0}, v{vT0}")
        k(f"s_cmp_eq_u64 vcc, -1")
        k(f"s_cbranch_scc1 {k.L('store')}")
        sKV = sQo
        k(f"s_lshl_b32 s{sKV}, s{sHead}, 17")
        k(f"s_add_u32 s{sKV}, s{sKV}, {WS_KVF:#x}")
        k(f"s_mov_b32 s{k.sCnt}, 64")
        k(f"s_mov_b32 s{T1}, s{sKV}")
        k(f"v_mov_b32 v{vT0}, 0xff800000")
        k.label("fb1")
        k(f"buffer_load_dwordx4 {vr(vKf[0],4)}, v{vL16}, {WSr}, s{T1} offen{LD}")
        k(f"s_add_u32 s{T1}, s{T1}, 2048")
        k(f"s_waitcnt vmcnt(0)")
        QK(vS[0], vKf[0], vQ[0], "0")
        k(f"s_nop 15")
        for i in range(0, 16, 2): k(f"v_max3_f32 v{vT0}, v{vT0}, v{vS[0]+i}, v{vS[0]+i+1}")
        k(f"s_sub_u32 s{k.sCnt}, s{k.sCnt}, 1")
        k(f"s_cmp_lg_u32 s{k.sCnt}, 0")
        k(f"s_cbranch_scc1 {k.L('fb1')}")
        half_combine(k, [vT0], [vT1], op="v_max_f32")
        for i in range(16):
            k(f"v_sub_f32 v{vNM[0]+i}, 0, v{vT0}")
            k(f"v_mov_b32 v{O+i}, 0")
        for i in range(4):
            k(f"v_mov_b32 v{vV0+i}, 0x3f803f80")
            k(f"v_mov_b32 v{vV1[0]+i}, 0x3f803f80")
        k(f"s_mov_b32 s{k.sCnt}, 64")
        k.label("fb2")
        k(f"buffer_load_dwordx4 {vr(vKf[0],4)}, v{vL16}, {WSr}, s{sKV} offen{LD}")
        k(f"s_mov_b32 exec_lo, 0xffff")
        k(f"s_mov_b32 exec_hi, 0xffff")
        k(f"buffer_load_dwordx4 {vr(vV0,4)}, v{vVa0}, {WSr}, s{sKV} offen{LD}")
        k(f"buffer_load_dwordx4 {vr(vV1[0],4)}, v{vVa0}, {WSr}, s{sKV} offen offset:512{LD}")
        k(f"s_mov_b64 exec, -1")
        k(f"s_add_u32 s{sKV}, s{sKV}, 2048")
        k(f"s_waitcnt vmcnt(0)")
        QK(vS[0], vKf[0], vQ[0], vr(vNM[0],16))
        k(f"s_nop 15")
        for i in range(16): e(vS[0], i)
        k(f"s_nop 1")
        PV(O, vV0, vS[0])
        PV(O, vV1[0], vS[0]+8)
        k(f"s_nop 15")
        k(f"s_sub_u32 s{k.sCnt}, s{k.sCnt}, 1")
        k(f"s_cmp_lg_u32 s{k.sCnt}, 0")
        k(f"s_cbranch_scc1 {k.L('fb2')}")
        k.label("store")
        k(f"v_rcp_f32 v{vT1}, v{O+8}")
        k(f"s_nop 0")
        for i in range(8): k(f"v_mul_f32 v{O+i}, v{O+i}, v{vT1}")
        for i in range(4): k(f"v_cvt_pk_bf16_f32 v{vKf[0]+i}, v{O+2*i}, v{O+2*i+1}")
        k(f"buffer_store_dwordx4 {vr(vKf[0],4)}, v{vL16}, {WSr}, s{sOoff} offen{SC}")
        k.stamp("stored")
        if not last:
            if first: nonce_fetch(k, vS[0])
            publish(k, sFl, vT0, vS[0], R2)
            k.stamp("flag")
        k.reset(m)
    BARS = {32: (2, 8, env('P2_B3', 24)), 4: (4, 8, 24), 8: (8, 16, 24)}[env('P2_LOOP', 32)]

    def l_pre(self, k): k.reset(k.lbase)
    def l(self, k, first, last, next_pre):
        k.pfx = "p2l_"
        LD = "" if first else SCOPE_LD
        T0, T1 = k.sT0, k.sT1; WSr = sr(k.sWS, 4); vL16 = k.vL16; sLw = k.sLw
        self.roles(k)
        sKV = k.s(); sOff = k.s(); sPF = k.s(4, 4); sId = k.s()
        vT0 = k.v(); vT1 = k.v()
        k(f"s_lshl_b32 s{sKV}, s{self.sHead}, 17")
        k(f"s_and_b32 s{T0}, s{sLw}, 1")
        k(f"s_lshl_b32 s{T0}, s{T0}, 10")
        k(f"s_add_u32 s{sKV}, s{sKV}, s{T0}")
        k(f"s_add_u32 s{sKV}, s{sKV}, {WS_KVF:#x}")
        k(f"s_lshr_b32 s{T1}, s{sLw}, 1")
        k(f"s_lshl_b32 s{T1}, s{T1}, 16")
        k(f"s_add_u32 m0, s{T1}, s{T0}")
        k(f"s_lshl_b32 s{sOff}, s{self.sQb}, 14")
        k(f"s_add_u32 s{sOff}, s{sOff}, s{T1}")
        if first: k.ptrs_ready()
        else:
            if env('P2_LP', 0):
                vP_ = k.v(2, 2)
                k(f"s_cmp_lg_u32 s{sLw}, 0")
                k(f"s_cbranch_scc1 {k.L('nopoll')}")
                k(f"s_lshl_b32 s{sId}, s{k.sX}, 5")
                rep_off(k, sId, k.sJ, R1)
                poll(k, "poll", sId, vT0, vP_, n=32)
                k.label("nopoll")
            k(f"s_barrier")
        def issue2():
            k(f"s_and_b32 s{sOff}, s{sOff}, 0x1ffff")
            k(f"s_add_u32 s{T0}, s{sOff}, s{sKV}")
            k(f"buffer_load_dwordx4 v{vL16}, {WSr}, s{T0} offen{LD} lds")
            k(f"buffer_load_dwordx4 v{vL16}, {WSr}, s{T0} offen offset:2048{LD} lds")
            k(f"s_add_u32 m0, m0, 4096")
            k(f"s_add_u32 s{sOff}, s{sOff}, 4096")
        n0 = self.BARS[0] + 2; n1 = self.BARS[1] + 2
        i0 = n0//2 + 1; i1 = min(16, n1//2 + 2)
        for i in range(i0): issue2()
        k(f"s_waitcnt vmcnt({2*i0 - n0})")
        k(f"s_barrier")
        for i in range(i1 - i0): issue2()
        k(f"s_waitcnt vmcnt({2*i1 - n1})")
        k(f"s_barrier")
        for i in range(16 - i1): issue2()
        nt = [0]
        PF = env("P2_PF", "sUixo")
        k(f"s_lshl_b32 s{sId}, s{k.sJ}, 2")
        k(f"s_add_u32 s{sId}, s{sId}, s{sLw}")
        def touch(ka, size, per_wave, xcd_stride, xmask=7):
            k.srd(sPF, k.ptr(ka), size)
            k(f"s_mul_i32 s{T0}, s{sId}, {per_wave}")
            if xcd_stride:
                k(f"s_and_b32 s{T1}, s{k.sX}, {xmask}")
                k(f"s_mul_i32 s{T1}, s{T1}, {xcd_stride}")
                k(f"s_add_u32 s{T0}, s{T0}, s{T1}")
            stride = min(128, per_wave//64)
            n = -(-per_wave//(64*stride))
            k(f"v_mul_u32_u24 v{vT0}, {stride}, v{k.vLane}")
            for i in range(n):
                k(f"buffer_load_dword v{k.vDump}, v{vT0}, {sr(sPF,4)}, s{T0} offen")
                nt[0] += 1
                if i < n-1: k(f"s_add_u32 s{T0}, s{T0}, {64*stride}")
        k(f"s_waitcnt vmcnt(0)")
        k.stamp("kvin")
        k(f"s_barrier")
        k.stamp("b8")
        if "o" in PF: touch(KA_WO, D*D*2, 4096, 0)
        if self.p4:
            self.p4.stage_regs(k)
            k.pfx = "p2l_"
        k.stamp("staged")
        if "s" in PF:
            if P5N and env("P5_MAP", 1): touch(KA_WSP, T*T*2, 16384, 2097152, 3)
            else: touch(KA_WSP, T*T*2, 8192, 1048576)
        if "u" in PF: touch(KA_WOUT, FH*D*2, 1024, 131072)
        if "U" in PF: touch(KA_WOUT, FH*D*2, 8192, 0)
        if "i" in PF and not self.p4: touch(KA_WIN, D*F*2, 16384, 0)
        if "x" in PF: touch(KA_X, T*D*2, 2048, 262144)
        if last: k(f"s_barrier")
        if not last:
            k(f"s_cmp_lg_u32 s{sLw}, 3")
            k(f"s_cbranch_scc1 {k.L('nowarm')}")
            warm(k, vT0, k.vDump, env("WARM2", "a"))
            if env("WO2", 0): warm_out(k, vT0, k.vDump, env("WO2", 0))
            k.label("nowarm")
            k.stamp("touched")
            k(f"s_barrier")
            next_pre(k)
            k(f"s_barrier")
            k.stamp("done2")
    p4 = None
```

```python
from base import *
from sched import Sched, run_sched

class Proj:
    def __init__(self, mode):
        self.mode = mode
        self.NKS = 32 if mode == 3 else 56
        self.N = self.NKS//4
        self.XR = 131072
    def plan(self, first):
        KB = 1024
        G = 2
        if self.mode == 3:
            w = [i*8*KB for i in range(4)] + [64*KB + i*8*KB for i in range(4)]
            a = [32*KB + i*8*KB for i in range(4)] + [96*KB + i*8*KB for i in range(4)]
            self.S = Sched(8, w + a, 0 if first else 8, 2, 2, look=env('P3_LOOK', 3), group=env('P3_G', 1))
        else:
            slots = [i*8*KB for i in range(20)]
            self.S = Sched(14, slots, 0 if first else env('P6_PW', 14), 2, 2, look=env('P6_LOOK', 4), group=env('P6_G', 1), wreg=self.wreg6(first))
    def wreg6(self, first): return (not first) and env('P6_PW', 14) < 14
    def roles(self, k):
        self.sTb = k.s(); self.sCb = k.s()
        k(f"s_lshl_b32 s{k.sT0}, s{k.sX}, 2")
        k(f"s_and_b32 s{k.sT1}, s{k.sJ}, 3")
        k(f"s_add_u32 s{self.sTb}, s{k.sT0}, s{k.sT1}")
        k(f"s_lshr_b32 s{self.sCb}, s{k.sJ}, 2")

    def c(self, k, first, last):
        mode = self.mode; N = self.N; XR = self.XR
        k.pfx = f"p{mode}c_"; m = k.mark()
        self.plan(first); S = self.S
        SC = "" if last else SCOPE_ST
        LD = "" if first else SCOPE_LD
        T0, T1 = k.sT0, k.sT1; WSr = sr(k.sWS, 4); vL16 = k.vL16; vLane = k.vLane
        self.roles(k)
        sTb, sCb = self.sTb, self.sCb
        vT0 = k.v(); vT1 = k.v(); vT2 = k.v(2, 2); vT3 = vT2+1
        k(f"s_cmp_ge_u32 s{k.sWave}, 4")
        k(f"s_cbranch_scc1 {k.L('idle')}")
        sTh = k.s(); sCt = k.s(); sTT = k.s(); sHo = k.s(); sXo = k.s(); sFl = k.s(); sSX = k.s(4, 4)
        vWa = k.v(); vAa = k.v()
        vR = k.v(8, 4)
        vW = [k.v(16, 4), k.v(16, 4), k.v(16, 4)]
        vA = [k.v(16, 4), k.v(16, 4)]
        vAcc = k.v(16, 4)
        vE = k.v(16, 4)
        k(f"s_and_b32 s{sTh}, s{k.sWave}, 1")
        k(f"s_lshr_b32 s{sCt}, s{k.sWave}, 1")
        k(f"s_lshl_b32 s{sTT}, s{sTb}, 1")
        k(f"s_add_u32 s{sTT}, s{sTT}, s{sTh}")
        k(f"s_lshl_b32 s{sFl}, s{sTT}, 4")
        k(f"s_lshl_b32 s{T1}, s{sCb}, 1")
        k(f"s_add_u32 s{sFl}, s{sFl}, s{T1}")
        k(f"s_add_u32 s{sFl}, s{sFl}, s{sCt}")
        k(f"s_lshl_b32 s{sHo}, s{sFl}, 11")
        k(f"s_add_u32 s{sHo}, s{sHo}, {WS_HF:#x}")
        k(f"s_lshl_b32 s{sXo}, s{sTT}, 15")
        k(f"s_lshl_b32 s{T1}, s{sCb}, 7")
        k(f"s_add_u32 s{sXo}, s{sXo}, s{T1}")
        k(f"s_lshl_b32 s{T1}, s{sCt}, 6")
        k(f"s_add_u32 s{sXo}, s{sXo}, s{T1}")
        tr_base(k, vWa, vT0, natural=False)
        k(f"s_lshl_b32 s{T0}, s{sCt}, 10")
        k(f"v_add_u32 v{vWa}, s{T0}, v{vWa}")
        k(f"s_lshl_b32 s{T0}, s{sTh}, 12")
        k(f"v_add_u32 v{vAa}, s{T0}, v{vL16}")
        wins = sorted({a >> 16 for a in S.addr.values()})
        Ww = Win(k, vWa, wins); Aw = Win(k, vAa, wins)
        for i in range(16): k(f"v_mov_b32 v{vAcc+i}, 0")
        if mode == 3:
            k(f"v_and_b32 v{vT0}, 31, v{vLane}")
            k(f"v_lshlrev_b32 v{vT0}, 6, v{vT0}")
            k(f"v_lshrrev_b32 v{vT2}, 5, v{vLane}")
            k(f"v_lshl_add_u32 v{vT0}, v{vT2}, 3, v{vT0}")
            k(f"s_lshl_b32 s{T0}, s{k.sWave}, 11")
            k(f"s_add_u32 s{T0}, s{T0}, {XR}")
            k(f"v_add_u32 v{vT0}, s{T0}, v{vT0}")
            k(f"v_bfe_u32 v{vT2}, v{vLane}, 2, 2")
            for p in range(4):
                k(f"v_xor_b32 v{vE+p}, {p}, v{vT2}")
                k(f"v_lshl_add_u32 v{vE+p}, v{vE+p}, 4, v{vT0}")
        else:
            k(f"v_and_b32 v{vT0}, 31, v{vLane}")
            k(f"v_lshlrev_b32 v{vT0}, 10, v{vT0}")
            k(f"v_lshrrev_b32 v{vT2}, 5, v{vLane}")
            k(f"v_lshl_add_u32 v{vT0}, v{vT2}, 4, v{vT0}")
        if first:
            k.ptrs_ready()
            if not last: nonce_fetch(k, vW[0])
        if mode == 6:
            k.srd(sSX, k.ptr(KA_OUT), T*D*2)
            k(f"buffer_load_dwordx4 {vr(vR,4)}, v{vL16}, {WSr}, s{sHo} offen{LD}")
            k(f"buffer_load_dwordx4 {vr(vR+4,4)}, v{vL16}, {WSr}, s{sHo} offen offset:1024{LD}")
        if not first:
            def dopoll(w):
                k(f"s_cmp_lg_u32 s{k.sWave}, {w}")
                k(f"s_cbranch_scc1 {k.L('nopoll')}")
                if mode == 6 and not P5N:
                    k(f"s_cmp_lt_u32 s{k.sJ}, 28")
                    k(f"s_cbranch_scc1 {k.L('nolong')}")
                    k(f"s_lshl_b32 s{T0}, s{sTb}, 3")
                    k(f"s_add_u32 s{T0}, s{T0}, {FL5}")
                    poll(k, "poll0", T0, vT1, vT2, n=1, sleep=8, pipe=False)
                    k.label("nolong")
                if mode == 3:
                    k(f"s_lshl_b32 s{T0}, s{k.sX}, 5")
                    k(f"s_add_u32 s{T0}, s{T0}, {FL2}")
                    rep_off(k, T0, k.sJ, R2)
                else:
                    k(f"s_lshl_b32 s{T0}, s{sTb}, 3")
                    k(f"s_add_u32 s{T0}, s{T0}, {FL5}")
                    rep_off(k, T0, sCb, R5)
                poll(k, "poll", T0, vT1, vT2, n=32 if mode == 3 else 7 + P5N)
                k.label("nopoll")
            if not (env('PIDLE', 6) == mode): dopoll(PW)
            k(f"s_barrier")
            k.stamp("ready")
            def rdW(u):
                l = []
                for i in range(4):
                    l.append(f"ds_read_b64_tr_b16 {vr(vW[u%3]+4*i,2)}, {Ww.at(S.addr[('W',u)] + i*2048)}")
                    l.append(f"ds_read_b64_tr_b16 {vr(vW[u%3]+4*i+2,2)}, {Ww.at(S.addr[('W',u)] + i*2048 + 512)}")
                return l
            if env("P36_WPF", 1): k.many(rdW(0))
        def reads(u):
            b = u & 1; l = []
            for i in range(4):
                l.append(f"ds_read_b128 {vr(vA[b]+4*i,4)}, {Aw.at(S.addr[('A',u)] + i*1024)}")
                l.append(f"ds_read_b64_tr_b16 {vr(vW[b]+4*i,2)}, {Ww.at(S.addr[('W',u)] + i*2048)}")
                l.append(f"ds_read_b64_tr_b16 {vr(vW[b]+4*i+2,2)}, {Ww.at(S.addr[('W',u)] + i*2048 + 512)}")
            return l
        def comp(u):
            b = u & 1
            return [f"v_mfma_f32_32x32x16_bf16 {vr(vAcc,16)}, {vr(vW[b]+4*i,4)}, {vr(vA[b]+4*i,4)}, {vr(vAcc,16)}" for i in range(4)]
        G = S.group
        WPF = env("P36_WPF", 1) and not first
        if WPF:
            def rdA(u): return [f"ds_read_b128 {vr(vA[u&1]+4*i,4)}, {Aw.at(S.addr[('A',u)] + i*1024)}" for i in range(4)]
            def cmp3(u): return [f"v_mfma_f32_32x32x16_bf16 {vr(vAcc,16)}, {vr(vW[u%3]+4*i,4)}, {vr(vA[u&1]+4*i,4)}, {vr(vAcc,16)}" for i in range(4)]
            for u in range(N):
                if u % G == 0:
                    k(f"s_barrier")
                    if u == 0: k.stamp("data")
                rd = rdA(u)
                if u == 1 and mode == 3:
                    rd += [f"ds_read_b64 {vr(vR+2*p,2)}, v{vE+p}" for p in range(4)]
                nW = rdW(u+1) if u+1 < N else []
                k.many(rd[:2])
                interleave(k, cmp3(u-1) if u else [], rd[2:] + nW, per=3)
                if u == 3:
                    if mode == 6: k(f"s_waitcnt vmcnt(0)")
                    for r in range(8):
                        k(f"v_lshlrev_b32 v{vE+2*r}, 16, v{vR+r}")
                        k(f"v_and_b32 v{vE+2*r+1}, 0xffff0000, v{vR+r}")
                if u < N-1: k(f"s_waitcnt lgkmcnt({len(nW)})")
            for i in range(4):
                k(f"s_waitcnt lgkmcnt({3-i})")
                k(cmp3(N-1)[i])
        else:
            for u in range(N):
                if u % G == 0:
                    k(f"s_barrier")
                    if u == 0: k.stamp("data")
                rd = reads(u)
                if u == 1 and mode == 3:
                    rd += [f"ds_read_b64 {vr(vR+2*p,2)}, v{vE+p}" for p in range(4)]
                RLX = mode == 3 and env("P3_RLX", 1) and u != 2
                if u == 0 or (u % G == 0 and not RLX):
                    interleave(k, comp(u-1) if u else [], rd, per=4)
                elif mode == 3 and u == 2:
                    interleave(k, comp(u-1), rd, per=4)
                else:
                    cp = comp(u-1)
                    for i in range(4):
                        k.many(rd[3*i:3*i+3])
                        k(f"s_waitcnt lgkmcnt({min(15, 9 - 3*i + 3*(i+1))})")
                        k(cp[i])
                    k.many(rd[12:])
                if u < N-1 and (((u+1) % G == 0 and not (mode == 3 and env("P3_RLX", 1))) or (mode == 3 and u == 1)): k(f"s_waitcnt lgkmcnt(0)")
                if u == 3:
                    if mode == 6: k(f"s_waitcnt vmcnt(0)")
                    for r in range(8):
                        k(f"v_lshlrev_b32 v{vE+2*r}, 16, v{vR+r}")
                        k(f"v_and_b32 v{vE+2*r+1}, 0xffff0000, v{vR+r}")
            last_c = comp(N-1)
            for i in range(4):
                k(f"s_waitcnt lgkmcnt({9-3*i})")
                k(last_c[i])
        if not last: k(f"s_barrier")
        k.stamp("loopend")
        k(f"s_nop {11 if last else 10}")
        for r in range(16): k(f"v_add_f32 v{vAcc+r}, v{vAcc+r}, v{vE+r}")
        for r in range(8): k(f"v_cvt_pk_bf16_f32 v{vR+r}, v{vAcc+2*r}, v{vAcc+2*r+1}")
        if mode == 3:
            k(f"buffer_store_dwordx4 {vr(vR,4)}, v{vL16}, {WSr}, s{sHo} offen{SC}")
            k(f"buffer_store_dwordx4 {vr(vR+4,4)}, v{vL16}, {WSr}, s{sHo} offen offset:1024{SC}")
            vS = vW[0]
            k(f"v_add_f32 v{vS}, v{vAcc}, v{vAcc+1}")
            k(f"v_mul_f32 v{vS+1}, v{vAcc}, v{vAcc}")
            k(f"v_add_f32 v{vS+2}, v{vAcc+2}, v{vAcc+3}")
            k(f"v_mul_f32 v{vS+3}, v{vAcc+1}, v{vAcc+1}")
            for r in range(2, 16):
                if r >= 4: k(f"v_add_f32 v{vS+2*(r&1)}, v{vS+2*(r&1)}, v{vAcc+r}")
                k(f"v_fmac_f32 v{vS+1+2*(r&1)}, v{vAcc+r}, v{vAcc+r}")
            k(f"v_add_f32 v{vS}, v{vS}, v{vS+2}")
            k(f"v_add_f32 v{vS+1}, v{vS+1}, v{vS+3}")
            half_combine(k, [vS, vS+1], [vT1, vT2])
            k(f"v_lshlrev_b32 v{vT0}, 3, v{vLane}")
            k(f"s_lshl_b32 s{T0}, s{sFl}, 8")
            k(f"s_add_u32 s{T0}, s{T0}, {WS_HS:#x}")
            k(f"s_mov_b32 exec_hi, 0")
            k(f"buffer_store_dwordx2 {vr(vS,2)}, v{vT0}, {WSr}, s{T0} offen{SC}")
            k(f"s_mov_b32 exec_hi, -1")
            k.stamp("stored")
            if not last:
                k(f"s_lshl_b32 s{sFl}, s{sTb}, 3")
                k(f"s_add_u32 s{sFl}, s{sFl}, s{sCb}")
                k(f"s_add_u32 s{sFl}, s{sFl}, {FL3}")
                publish(k, sFl, vT0, vT2, R3)
                k.stamp("flag")
        else:
            k(f"s_nop 1")
            for m_ in range(2):
                k(f"v_permlane32_swap_b32 v{vR+4*m_}, v{vR+4*m_+2}")
                k(f"v_permlane32_swap_b32 v{vR+4*m_+1}, v{vR+4*m_+3}")
            k(f"buffer_store_dwordx4 {vr(vR,4)}, v{vT0}, {sr(sSX,4)}, s{sXo} offen{env('OUT_SC', '')}")
            k(f"buffer_store_dwordx4 {vr(vR+4,4)}, v{vT0}, {sr(sSX,4)}, s{sXo} offen offset:32{env('OUT_SC', '')}")
            k.stamp("stored")
            if not first and env("STAMP_DBG", -1) < 0:
                k(f"s_or_b32 s{T0}, s2, s{k.sWave}")
                k(f"s_cbranch_scc1 {k.L('end')}")
                k(f"v_mov_b32 v{vT2}, 0"); k(f"v_mov_b32 v{vT3}, 0")
                k(f"s_mov_b64 exec, 1")
                k(f"global_store_dwordx2 v{vT2}, {vr(vT2,2)}, {sr(k.ptr(KA_DBG),2)}")
                k(f"s_mov_b64 exec, -1")
        k(f"s_branch {k.L('end')}")
        k.label("idle")
        if first and not last:
            k.ptrs_ready()
            nonce_publish(k, vW[0])
            nonce_fetch(k, vW[0], "nf2")
        if not first:
            if (env('PIDLE', 6) == mode): dopoll(7)
            k(f"s_barrier")
        if last: k(f"s_endpgm")
        else:
            for _ in range(S.NB+2): k(f"s_barrier")
        k.label("end")
        k.reset(m)

    def l_setup(self, k):
        mode = self.mode; T0, T1 = k.sT0, k.sT1; sLw = k.sLw
        k.pfx = f"p{mode}l_"
        self.roles(k)
        self.sSW = k.s(4, 4); self.sAo = k.s(); self.sWo = k.s(); self.sM = k.s(); self.sRot = k.s()
        self.vWd = k.v(2); self.vT = k.v(2) if mode == 3 else k.vLt
        vT = self.vT
        k(f"s_lshl_b32 s{self.sRot}, s{T1}, 1")
        k(f"s_add_u32 s{self.sRot}, s{self.sRot}, s{self.sCb}")
        k(f"s_and_b32 s{self.sRot}, s{self.sRot}, {7 if env('P36_ROT', 0) else 0}")
        if mode == 6:
            k(f"s_mul_i32 s{self.sRot}, s{self.sRot}, 7")
            k(f"s_lshr_b32 s{self.sRot}, s{self.sRot}, 2")
        k(f"v_lshrrev_b32 v{vT}, 2, v{k.vLane}")
        k(f"v_lshlrev_b32 v{vT}, 10, v{vT}")
        k(f"v_and_b32 v{vT+1}, 3, v{k.vLane}")
        k(f"v_lshl_add_u32 v{self.vWd}, v{vT+1}, 4, v{vT}")
        k(f"v_add_u32 v{self.vWd+1}, 64, v{self.vWd}")
        k(f"v_add_u32 v{self.vWd}, 1024, v{self.vWd}")
        k(f"s_lshr_b32 s{T0}, s{sLw}, 1")
        k(f"s_lshl_b32 s{T1}, s{self.sTb}, 1")
        k(f"s_add_u32 s{T0}, s{T0}, s{T1}")
        k(f"s_mul_i32 s{self.sAo}, s{T0}, {self.NKS*1024}")
        k(f"s_and_b32 s{T0}, s{sLw}, 1")
        k(f"s_lshl_b32 s{T0}, s{T0}, 11")
        k(f"s_add_u32 s{self.sAo}, s{self.sAo}, s{T0}")
        k(f"s_add_u32 s{self.sAo}, s{self.sAo}, {(WS_OF if mode == 3 else WS_UF):#x}")
        k(f"s_lshl_b32 s{self.sM}, s{sLw}, 11")
        k(f"s_lshl_b32 s{self.sWo}, s{sLw}, 14")
        k(f"s_lshl_b32 s{T0}, s{self.sCb}, 7")
        k(f"s_add_u32 s{self.sWo}, s{self.sWo}, s{T0}")
    def l_srd(self, k):
        k.srd(self.sSW, k.ptr(KA_WO if self.mode == 3 else KA_WOUT), self.NKS*16*1024, bias=1024)
    def issue(self, k, kind, u, a, LD):
        T0 = k.sT0; N = self.N
        if kind == 'W' and self.staged and self.mode == 6:
            for i in range(2):
                ad = self.Wn.at(a + i*1024).split(" ")
                k(f"ds_write_b128 {ad[0]}, {vr(k.vStage+16+8*u+4*i,4)} {ad[1]}")
            return
        k(f"s_add_u32 s{T0}, s{self.sRot}, {u}")
        if N == 8: k(f"s_and_b32 s{T0}, s{T0}, 7")
        else:
            k(f"s_sub_u32 s{k.sT1}, s{T0}, {N}")
            k(f"s_cselect_b32 s{T0}, s{T0}, s{k.sT1}")
        k(f"s_add_u32 m0, s{self.sM}, {a}")
        if kind == 'W':
            k(f"s_lshl_b32 s{T0}, s{T0}, 16")
            k(f"s_add_u32 s{T0}, s{T0}, s{self.sWo}")
            k(f"buffer_load_dwordx4 v{self.vWd}, {sr(self.sSW,4)}, s{T0} offen lds")
            k(f"buffer_load_dwordx4 v{self.vWd+1}, {sr(self.sSW,4)}, s{T0} offen offset:1024 lds")
        else:
            k(f"s_lshl_b32 s{T0}, s{T0}, 12")
            k(f"s_add_u32 s{T0}, s{T0}, s{self.sAo}")
            k(f"buffer_load_dwordx4 v{k.vL16}, {sr(k.sWS,4)}, s{T0} offen{LD} lds")
            k(f"buffer_load_dwordx4 v{k.vL16}, {sr(k.sWS,4)}, s{T0} offen offset:1024{LD} lds")
    def stage_regs(self, k):
        m = k.mark()
        self.l_setup(k); self.l_srd(k)
        out = []
        for u in range(self.N):
            def f(u=u, sRot=self.sRot, sWo=self.sWo, vWd=self.vWd, sSW=self.sSW):
                T0 = k.sT0
                k(f"s_add_u32 s{T0}, s{sRot}, {u}")
                k(f"s_sub_u32 s{k.sT1}, s{T0}, {self.N}")
                k(f"s_cselect_b32 s{T0}, s{T0}, s{k.sT1}")
                k(f"s_lshl_b32 s{T0}, s{T0}, 16")
                k(f"s_add_u32 s{T0}, s{T0}, s{sWo}")
                k(f"buffer_load_dwordx4 {vr(k.vStage+16+8*u,4)}, v{vWd}, {sr(sSW,4)}, s{T0} offen")
                k(f"buffer_load_dwordx4 {vr(k.vStage+16+8*u+4,4)}, v{vWd+1}, {sr(sSW,4)}, s{T0} offen offset:1024")
            out.append(f)
        self.staged = True
        return out
    staged = False
    p4n = None
    def mid(self, k):
        if not P5N:
            k(f"s_cmp_ge_u32 s{k.sJ}, 28")
            k(f"s_cbranch_scc1 {k.L('nomid')}")
        k(f"s_barrier")
        k.label("nomid")
    def l_pre(self, k):
        k.reset(k.lbase)
        self.plan(False)
        self.l_setup(k); self.l_srd(k)
        if self.staged:
            vD = k.v()
            k(f"v_add_u32 v{vD}, s{self.sM}, v{k.vL16}")
            Wn = self.Wn = Win(k, vD, [0, 1, 2])
            k(f"s_waitcnt vmcnt(0)")
            for kd, u, a in self.S.pre:
                if u == env("P6_SPLIT", 4): self.mid(k)
                for i in range(2):
                    ad = Wn.at(a + i*1024).split(" ")
                    k(f"ds_write_b128 {ad[0]}, {vr(k.vStage+16+8*u+4*i,4)} {ad[1]}")
            k(f"s_waitcnt lgkmcnt(0)")
        else:
            if self.mode == 6: self.mid(k)
            for kd, u, a in self.S.pre: self.issue(k, kd, u, a, "")
    def xres(self, k):
        T0, T1 = k.sT0, k.sT1; vT = self.vT; sLw = k.sLw
        sSX = k.s(4, 4); vX = k.v()
        k.srd(sSX, k.ptr(KA_X), T*D*2)
        k(f"v_lshrrev_b32 v{vX}, 4, v{k.vLane}")
        k(f"v_xor_b32 v{vX}, v{vT+1}, v{vX}")
        k(f"v_lshl_add_u32 v{vX}, v{vX}, 4, v{vT}")
        k(f"s_lshl_b32 s{T0}, s{self.sTb}, 16")
        k(f"s_and_b32 s{T1}, s{sLw}, 1")
        k(f"s_lshl_b32 s{T1}, s{T1}, 15")
        k(f"s_add_u32 s{T0}, s{T0}, s{T1}")
        k(f"s_lshl_b32 s{T1}, s{self.sCb}, 7")
        k(f"s_add_u32 s{T0}, s{T0}, s{T1}")
        k(f"s_lshr_b32 s{T1}, s{sLw}, 1")
        k(f"s_lshl_b32 s{T1}, s{T1}, 6")
        k(f"s_add_u32 m0, s{self.sM}, {self.XR}")
        k(f"s_add_u32 s{T0}, s{T0}, s{T1}")
        k(f"buffer_load_dwordx4 v{vX}, {sr(sSX,4)}, s{T0} offen lds")
        k(f"s_add_u32 m0, m0, 1024")
        k(f"s_add_u32 s{T0}, s{T0}, 16384")
        k(f"buffer_load_dwordx4 v{vX}, {sr(sSX,4)}, s{T0} offen lds")
    def l(self, k, first, last, next_pre):
        LD = "" if first else SCOPE_LD
        if first:
            self.plan(True)
            self.l_setup(k); k.ptrs_ready(); self.l_srd(k)
        k.pfx = f"p{self.mode}l_"
        if self.mode == 3:
            self.xres(k)
            if not first: k(f"s_barrier")
            if self.p4n: self.p4n.cs_pre(k)
        if not first:
            k(f"s_waitcnt vmcnt(0)")
            k(f"s_barrier")
        run_sched(k, self.S, lambda kd, u, a: self.issue(k, kd, u, a, LD), {'W': 0 if (self.staged and self.mode == 6) else 2, 'A': 2})
        if not last:
            k(f"s_barrier")
            next_pre(k)
            k(f"s_barrier")
```

```python
import os, struct
def env(n, d): return type(d)(os.environ.get(n, d))
T = 2048; D = 512; H = 32; DH = 16; F = 1792; FH = 896
KA_X, KA_WQKV, KA_WO, KA_BX, KA_WIN, KA_WSP, KA_BSP, KA_WOUT, KA_OUT, KA_DBG, KA_WS = [8*i for i in range(11)]
WS_QF  = 0x000000
WS_KVF = 0x200000
WS_OF  = 0x600000
WS_HF  = 0x800000
WS_Z1F = 0xA00000
WS_Z2I = 0xE00000
WS_UF  = 0x1200000
WS_PS  = 0x1600000
WS_HS  = 0x1680000
WS_FL  = 0x1700000
FS = 128; FSH = 7
NFL = 24576
RS = 256; RSH = 8
R1 = env("R1", 8); R2 = env("R2", 8); R3 = env("R3", 4); R4 = env("R4", 8); R5 = env("R5", 2)
FL1 = 0
FL2 = FL1 + 8*RS
FL3 = FL2 + 8*RS
FL4 = FL3 + 8*RS
FL5 = FL4 + 8*RS
FL4B = FL5 + 4*RS
assert R5 <= 4 and FL5 + 8*RS <= NFL
WS_END = 0x1A00000
WS_STAMP = 0x1C00000
LDS_MAX = 163840

def f32(x): return struct.unpack('<I', struct.pack('<f', x))[0]
def vr(a, n=1): return f"v{a}" if n == 1 else f"v[{a}:{a+n-1}]"
def sr(a, n=1): return f"s{a}" if n == 1 else f"s[{a}:{a+n-1}]"

P5N = env('P5N', 1)
P5D = env('P5D', 1)
SCOPE_ST = {0: "", 1: " sc1", 2: " sc0 sc1"}[env("SC_ST", 1)]
SCOPE_LD = {0: "", 1: " sc1", 2: " sc0 sc1"}[env("SC_LD", 1)]
SCOPE_PL = {1: " sc1", 2: " sc0 sc1"}[env("SC_PL", 1)]
SLEEP = env("POLL_SLEEP", 2)
PW = env('POLL_WAVE', 0)
THR = env("PRE_THR", 0)

class K:
    def __init__(self, name, stamps=False, kidx=0):
        self.name = name; self.grid = 256; self.block = 768; self.lds = LDS_MAX
        self.lines = []; self.vnext = 1; self.snext = 3; self.vmax = 1; self.smax = 3
        self.stamps = stamps; self.kidx = kidx; self.pfx = ""; self.nst = 0; self.stnames = []
    def __call__(self, s):
        for ln in s.strip("\n").split("\n"): self.lines.append("  " + ln.strip())
    def many(self, l):
        for s in l: self(s)
    def L(self, l): return f"L_{self.name}_{self.pfx}{l}"
    def label(self, l): self.lines.append(f"{self.L(l)}:")
    def v(self, n=1, align=1):
        a = (self.vnext + align - 1)//align*align
        self.vnext = a + n; self.vmax = max(self.vmax, self.vnext); return a
    def s(self, n=1, align=1):
        a = (self.snext + align - 1)//align*align
        self.snext = a + n; self.smax = max(self.smax, self.snext); assert self.snext <= 100; return a
    def mark(self): return (self.vnext, self.snext)
    def reset(self, m): self.vnext, self.snext = m
    def srd(self, s, lo, size, bias=0):
        if bias:
            self(f"s_sub_u32 s{s}, s{lo}, {bias}")
            self(f"s_subb_u32 s{s+1}, s{lo+1}, 0")
            self(f"s_and_b32 s{s+1}, s{s+1}, 0xffff")
        else:
            self(f"s_mov_b32 s{s}, s{lo}")
            self(f"s_and_b32 s{s+1}, s{lo+1}, 0xffff")
        self(f"s_mov_b32 s{s+2}, {size+bias:#x}")
        self(f"s_mov_b32 s{s+3}, 0x20000")
    def prologue(self):
        k = self
        k.sIn = k.s(16, 4)
        k.sP2 = k.s(4, 4)
        k.sWSp = k.s(2, 2)
        k.sWS = k.s(4, 4)
        k.sT0 = k.s(2, 2); k.sT1 = k.sT0 + 1; k.sWave = k.s(); k.sX = k.s(); k.sJ = k.s(); k.sCnt = k.s()
        k.sNon = k.s(2, 2)
        k.vLane = k.v(); k.vL16 = k.v()
        if k.stamps:
            k.sSt = k.s(2, 2); k.vSt = k.v()
            k(f"s_memrealtime s[{k.sSt}:{k.sSt+1}]")
            k(f"v_mov_b32 v{k.vSt}, 0")
            k(f"s_waitcnt lgkmcnt(0)")
            k(f"v_writelane_b32 v{k.vSt}, s{k.sSt}, 62")
            k.stamp("start")
        k(f"s_load_dwordx2 {sr(k.sWSp,2)}, s[0:1], {KA_WS}")
        k(f"s_load_dwordx16 {sr(k.sIn,16)}, s[0:1], 0")
        k(f"s_load_dwordx4 {sr(k.sP2,4)}, s[0:1], {KA_OUT}")
        k(f"v_lshrrev_b32 v{k.vL16}, 6, v0")
        k(f"v_and_b32 v{k.vLane}, 63, v0")
        k(f"v_readfirstlane_b32 s{k.sWave}, v{k.vL16}")
        k(f"v_lshlrev_b32 v{k.vL16}, 4, v{k.vLane}")
        k(f"s_and_b32 s{k.sX}, s2, 7")
        k(f"s_lshr_b32 s{k.sJ}, s2, 3")
    def ptrs_ready(self):
        self(f"s_waitcnt lgkmcnt(0)")
        self.srd(self.sWS, self.sWSp, WS_END)
    def ptr(self, ka):
        return self.sIn + ka//4 if ka < 64 else self.sP2 + (ka-64)//4
    def stamp(self, name):
        if not self.stamps: return
        if env("STAMP_DBG", -1) >= 0 and self.pfx + name not in ("start p1c_xin p1c_loopend p1c_flag p2c_data p2c_xch p3c_data p3c_flag p4c_data p4c_loopend p4c_flag p5c_ready p5c_loopend p6c_data").split(): return
        if env("ECHO", "") and name != "start" and self.pfx + name not in env("ECHO", "").split(","): return
        if name != "start" and (env("STAMP_WAVE", 0) >= 8) != (self.pfx[2:3] == "l"): return
        i = self.nst; self.nst += 1; self.stnames.append(self.pfx + name); assert i < 62
        self(f"{'s_memrealtime' if env('STAMP_RT', 1) else 's_memtime'} s[{self.sSt}:{self.sSt+1}]")
        self(f"s_waitcnt lgkmcnt(0)")
        self(f"v_writelane_b32 v{self.vSt}, s{self.sSt}, {i}")
    def stamp_flush(self):
        if not self.stamps: return
        k = self
        w = env("STAMP_WAVE", 0)
        if (w >= 8) != (k.pfx == "l_"): return
        k(f"s_cmp_lg_u32 s{k.sWave}, {w}")
        k(f"s_cbranch_scc1 {k.L('nostamp')}")
        k(f"s_waitcnt vmcnt(0)")
        k(f"s_memrealtime s[{k.sSt}:{k.sSt+1}]")
        k(f"s_waitcnt lgkmcnt(0)")
        k(f"v_writelane_b32 v{k.vSt}, s{k.sSt}, 63")
        if env("ECHO", ""):
            na, nb = env("ECHO", "").split(",")
            ia = k.stnames.index(na); ib = 63 if nb == "end" else k.stnames.index(nb)
            k(f"s_cmp_lg_u32 s2, 9")
            k(f"s_cbranch_scc1 {k.L('nostamp')}")
            k(f"s_nop 1")
            k(f"v_readlane_b32 s{k.sT0}, v{k.vSt}, {ia}")
            k(f"v_readlane_b32 s{k.sT1}, v{k.vSt}, {ib}")
            k(f"s_sub_u32 s{k.sT1}, s{k.sT1}, s{k.sT0}")
            k(f"s_min_u32 s{k.sT1}, s{k.sT1}, 20000")
            k(f"s_mov_b32 s{k.sT0}, s{k.sSt}")
            k.label("echo")
            k(f"s_memrealtime s[{k.sSt}:{k.sSt+1}]")
            k(f"s_waitcnt lgkmcnt(0)")
            k(f"s_sub_u32 s{k.sCnt}, s{k.sSt}, s{k.sT0}")
            k(f"s_cmp_lt_u32 s{k.sCnt}, s{k.sT1}")
            k(f"s_cbranch_scc1 {k.L('echo')}")
            k.label('nostamp')
            return
        if env("STAMP_DBG", -1) >= 0:
            k(f"s_cmp_lg_u32 s2, {env('STAMP_DBG', -1)}")
            k(f"s_cbranch_scc1 {k.L('nostamp')}")
            k(f"v_readlane_b32 s{k.sT0}, v{k.vSt}, 0")
            k(f"v_writelane_b32 v{k.vSt}, s{k.sSt}, 0")
            k(f"s_nop 1")
            k(f"v_subrev_u32 v{k.vSt}, s{k.sT0}, v{k.vSt}")
            k(f"v_lshlrev_b32 v{k.vL16}, 2, v{k.vLane}")
            k(f"s_mov_b64 exec, 0x3fff")
            k(f"global_store_dword v{k.vL16}, v{k.vSt}, {sr(k.ptr(KA_DBG),2)} offset:8")
            k.label('nostamp')
            return
        k(f"s_add_u32 s{k.sSt}, s{k.sWSp}, {WS_STAMP + k.kidx*65536}")
        k(f"s_addc_u32 s{k.sSt+1}, s{k.sWSp+1}, 0")
        k(f"s_lshl_b32 s{k.sT0}, s2, 8")
        k(f"v_lshl_add_u32 v{k.vL16}, v{k.vLane}, 2, s{k.sT0}")
        k(f"global_store_dword v{k.vL16}, v{k.vSt}, s[{k.sSt}:{k.sSt+1}]")
        k.label('nostamp')
    def header(self):
        if env("PLAIN", 0): return f"; @launch grid=({self.grid},1,1) block=({self.block},1,1) lds={self.lds}"
        return f"; @launch kernel={self.name} grid=({self.grid},1,1) block=({self.block},1,1) lds={self.lds}"
    def text(self):
        nv = (max(self.vmax, 8) + 3)//4*4
        assert nv <= 168, (self.name, nv)
        body = "\n".join(self.lines)
        return f"""
.text
.globl {self.name}
.p2align 8
.type {self.name},@function
{self.name}:
{body}
.section .rodata,"a"
.p2align 6
.amdhsa_kernel {self.name}
  .amdhsa_next_free_vgpr {nv}
  .amdhsa_next_free_sgpr {max(self.smax, 16)}
  .amdhsa_accum_offset {nv}
  .amdhsa_group_segment_fixed_size 0
  .amdhsa_kernarg_size 88
  .amdhsa_user_sgpr_count 2
  .amdhsa_user_sgpr_kernarg_segment_ptr 1
  .amdhsa_system_sgpr_workgroup_id_x 1
.end_amdhsa_kernel
"""

HEADER = """; Kernarg layout for this problem (88 bytes, ptrs only, base s[0:1]):
"""
def emit(kernels, path):
    s = HEADER + "\n".join(k.header() for k in kernels) + "\n"
    s += '.amdgcn_target "amdgcn-amd-amdhsa--gfx950"\n'
    for k in kernels: s += k.text()
    open(path, "w").write(s)
    import json
    json.dump([k.stnames for k in kernels], open(path + ".stn", "w"))

def tr_base(k, vTr, vTmp, natural):
    L = k.vLane
    k(f"v_lshrrev_b32 v{vTmp}, 5, v{L}")
    k(f"v_lshlrev_b32 v{vTr}, {9 if natural else 8}, v{vTmp}")
    k(f"v_bfe_u32 v{vTmp}, v{L}, 2, 2")
    k(f"v_lshl_add_u32 v{vTr}, v{vTmp}, 6, v{vTr}")
    k(f"v_bfe_u32 v{vTmp}, v{L}, 4, 1")
    k(f"v_lshl_add_u32 v{vTr}, v{vTmp}, 5, v{vTr}")
    k(f"v_and_b32 v{vTmp}, 3, v{L}")
    k(f"v_lshl_add_u32 v{vTr}, v{vTmp}, 3, v{vTr}")

def half_combine(k, regs, vT, op="v_add_f32"):
    for r, t in zip(regs, vT): k(f"v_mov_b32 v{t}, v{r}")
    k("s_nop 1")
    for r, t in zip(regs, vT): k(f"v_permlane32_swap_b32 v{t}, v{r}")
    k("s_nop 1")
    for r, t in zip(regs, vT): k(f"{op} v{r}, v{r}, v{t}")

def interleave(k, mm, rd, tail=(), per=4):
    mm = list(mm); rd = list(rd); tail = list(tail)
    while rd or mm:
        if mm:
            g = mm.pop(0)
            if isinstance(g, str): k(g)
            elif callable(g): g()
            else: k.many(g)
        for _ in range(per):
            if rd: k(rd.pop(0))
            elif tail: k(tail.pop(0))
    k.many(tail)

class Win:
    def __init__(self, k, vbase, wins):
        self.regs = {}
        for w in wins:
            if w == 0: self.regs[0] = vbase
            else:
                r = k.v(); k(f"v_add_u32 v{r}, {w*65536}, v{vbase}"); self.regs[w] = r
    def at(self, off):
        w = off >> 16
        return f"v{self.regs[w]} offset:{off & 0xffff}"

def nonce_publish(k, vA, wave=7):
    m = k.mark(); sD = k.s(4, 4)
    k(f"s_cmp_lg_u32 s2, 0")
    k(f"s_cbranch_scc1 {k.L('nopub')}")
    k(f"s_cmp_lg_u32 s{k.sWave}, {wave}")
    k(f"s_cbranch_scc1 {k.L('nopub')}")
    k(f"s_memrealtime {sr(k.sNon,2)}")
    k.srd(sD, k.ptr(KA_DBG), 256)
    k(f"s_waitcnt lgkmcnt(0)")
    k(f"s_or_b32 s{k.sNon+1}, s{k.sNon+1}, 0x80000000")
    k(f"v_mov_b32 v{vA}, s{k.sNon}")
    k(f"v_mov_b32 v{vA+1}, s{k.sNon+1}")
    k(f"v_mov_b32 v{vA+2}, 0")
    k(f"s_mov_b64 exec, 1")
    k(f"buffer_store_dwordx2 {vr(vA,2)}, v{vA+2}, {sr(sD,4)}, 0 offen{SCOPE_PL}")
    k(f"s_mov_b64 exec, -1")
    k.label("nopub")
    k.reset(m)

def nonce_fetch(k, vA, name="nf"):
    m = k.mark(); sD = k.s(4, 4)
    k.srd(sD, k.ptr(KA_DBG), 256)
    k(f"v_mov_b32 v{vA+2}, 0")
    k(f"s_mov_b32 s{k.sCnt}, 100000")
    k.label(name)
    k(f"buffer_load_dwordx2 {vr(vA,2)}, v{vA+2}, {sr(sD,4)}, 0 offen{SCOPE_PL}")
    k(f"s_waitcnt vmcnt(0)")
    k(f"v_readfirstlane_b32 s{k.sNon+1}, v{vA+1}")
    k(f"v_readfirstlane_b32 s{k.sNon}, v{vA}")
    k(f"s_sub_u32 s{k.sCnt}, s{k.sCnt}, 1")
    k(f"s_cbranch_scc1 {k.L(name+'x')}")
    k(f"s_cmp_lt_u32 s{k.sNon+1}, 0x80000000")
    k(f"s_cbranch_scc1 {k.L(name)}")
    k.label(name+'x')
    k.reset(m)

def poll(k, name, sIdx, vA, vD, n=64, spin=100000, sleep=None, pipe=True, stride=0):
    vD2 = None
    if pipe and env('POLL_PIPE', 0): vD, vD2 = k.vPoll, k.vPoll + 4
    if sleep is None: sleep = SLEEP
    k(f"s_lshl_b32 s{sIdx}, s{sIdx}, {FSH}")
    k(f"s_add_u32 s{sIdx}, s{sIdx}, {WS_FL:#x}")
    if n < 64:
        k(f"v_min_u32 v{vA}, {n-1}, v{k.vLane}")
        k(f"v_lshlrev_b32 v{vA}, {FSH + stride}, v{vA}")
    else:
        k(f"v_lshlrev_b32 v{vA}, {FSH + (n == 128)}, v{k.vLane}")
    k(f"s_mov_b32 s{k.sCnt}, {spin}")
    if n < 64: k(f"s_mov_b64 exec, {(1 << n) - 1:#x}" if n <= 31 else f"s_mov_b32 exec_hi, {(1 << (n-32)) - 1:#x}")
    nl = 2 if n == 128 else 1
    def ld(d):
        k(f"buffer_load_dwordx2 {vr(d,2)}, v{vA}, {sr(k.sWS,4)}, s{sIdx} offen{SCOPE_PL}")
        if n == 128: k(f"buffer_load_dwordx2 {vr(d+2,2)}, v{vA}, {sr(k.sWS,4)}, s{sIdx} offen offset:{FS}{SCOPE_PL}")
    def chk(d):
        k(f"v_cmp_ne_u64 vcc, {sr(k.sNon,2)}, {vr(d,2)}")
        if n == 128:
            m = k.mark(); sM = k.s(2, 2)
            k(f"v_cmp_ne_u64 {sr(sM,2)}, {sr(k.sNon,2)}, {vr(d+2,2)}")
            k(f"s_or_b64 vcc, vcc, {sr(sM,2)}")
            k.reset(m)
        k(f"s_and_b64 exec, exec, vcc")
    if vD2 is None:
        d0 = env("PD_" + k.pfx[:2], 0) if name == "poll" else 0
        if d0: k(f"s_sleep {d0}")
        k(f"s_branch {k.L(name+'g')}")
        k.label(name)
        k(f"s_sleep {sleep}")
        k.label(name+'g')
        ld(vD)
        k(f"s_sub_u32 s{k.sCnt}, s{k.sCnt}, 1")
        k(f"s_cbranch_scc1 {k.L(name+'x')}")
        k(f"s_waitcnt vmcnt(0)")
        chk(vD)
        k(f"s_cbranch_scc1 {k.L(name)}")
    else:
        ld(vD)
        k(f"s_sleep {env('POLL_HALF', 5)}")
        k.label(name)
        ld(vD2)
        k(f"s_sub_u32 s{k.sCnt}, s{k.sCnt}, 1")
        k(f"s_cbranch_scc1 {k.L(name+'x')}")
        k(f"s_waitcnt vmcnt({nl})")
        chk(vD)
        k(f"s_cbranch_scc0 {k.L(name+'x')}")
        ld(vD)
        k(f"s_waitcnt vmcnt({nl})")
        chk(vD2)
        k(f"s_cbranch_scc1 {k.L(name)}")
    k.label(name+'x')
    k(f"s_mov_b64 exec, -1")

def stored(k):
    k(f"s_waitcnt vmcnt(0)")
    k(f"s_barrier")

def set_flag(k, sIdx, vA, vD, rep):
    k(f"s_cmp_lg_u32 s{k.sWave}, {PW}")
    k(f"s_cbranch_scc1 {k.L('nofl')}")
    k(f"s_mov_b64 exec, {(1 << rep) - 1}")
    k(f"buffer_store_dwordx2 {vr(vD,2)}, v{vA}, {sr(k.sWS,4)}, s{sIdx} offen{SCOPE_PL}")
    k(f"s_mov_b64 exec, -1")
    k.label("nofl")
def prep_flag(k, sIdx, vA, vD):
    k(f"s_lshl_b32 s{sIdx}, s{sIdx}, {FSH}")
    k(f"s_add_u32 s{sIdx}, s{sIdx}, {WS_FL:#x}")
    k(f"v_lshlrev_b32 v{vA}, {RSH + FSH}, v{k.vLane}")
    k(f"v_mov_b32 v{vD}, s{k.sNon}")
    k(f"v_mov_b32 v{vD+1}, s{k.sNon+1}")
def publish(k, sIdx, vA, vD, rep):
    prep_flag(k, sIdx, vA, vD); stored(k); set_flag(k, sIdx, vA, vD, rep)
def rep_off(k, sIdx, sSel, rep):
    k(f"s_and_b32 s{k.sT1}, s{sSel}, {rep-1}")
    k(f"s_lshl_b32 s{k.sT1}, s{k.sT1}, {RSH}")
    k(f"s_add_u32 s{sIdx}, s{sIdx}, s{k.sT1}")

def sel16(k, vSel, vT):
    k(f"v_and_b32 v{vT}, 31, v{k.vLane}")
    k(f"v_cmp_eq_u32 vcc, 0, v{vT}")
    k(f"v_cmp_eq_u32 {sr(k.sT0 if k.sT0 % 2 == 0 else k.sT0+1,2)}, 17, v{vT}")
    k(f"v_mov_b32 v{vT}, 0x3f803f80")
    k(f"s_or_b64 vcc, vcc, {sr(k.sT0 if k.sT0 % 2 == 0 else k.sT0+1,2)}")
    k(f"s_nop 0")
    for i in range(4): k(f"v_cndmask_b32 v{vSel+i}, 0, v{vT}, vcc")

def code_touch(k, vA, vD):
    if not env("CODE_PF", 1): return
    m = k.mark(); sP = k.s(2, 2)
    k(f"s_lshl_b32 s{k.sT0}, s{k.sJ}, 2")
    k(f"s_add_u32 s{k.sT0}, s{k.sT0}, s{k.sLw}")
    k(f"s_lshl_b32 s{k.sT0}, s{k.sT0}, 13")
    k(f"s_cmp_ge_u32 s{k.sT0}, L_{k.name}_codeend-{k.name}")
    k(f"s_cbranch_scc1 {k.L('noct')}")
    k(f"s_getpc_b64 {sr(sP,2)}")
    k.label("pc")
    k(f"s_sub_u32 s{sP}, s{sP}, {k.L('pc')}-{k.name}")
    k(f"s_subb_u32 s{sP+1}, s{sP+1}, 0")
    k(f"v_lshl_add_u32 v{vA}, v{k.vLane}, 7, s{k.sT0}")
    k(f"v_min_u32 v{vA}, L_{k.name}_codeend-{k.name}-4, v{vA}")
    k(f"global_load_dword v{vD}, v{vA}, {sr(sP,2)}")
    k.label("noct")
    k.reset(m)

def warm(k, vA, vD, what):
    T0, T1 = k.sT0, k.sT1; WSr = sr(k.sWS, 4)
    def fl(n=1):
        k(f"s_lshl_b32 s{T0}, s{T0}, {FSH}")
        k(f"s_add_u32 s{T0}, s{T0}, {WS_FL:#x}")
        for i in range(n):
            k(f"buffer_load_dword v{vD}, v{vA}, {WSr}, s{T0} offen{SCOPE_PL}")
            if i < n-1: k(f"s_add_u32 s{T0}, s{T0}, {64*FS}")
    if "t" in what:
        k(f"v_lshlrev_b32 v{vA}, 19, v{k.vLane}")
        k(f"buffer_load_dword v{vD}, v{vA}, {WSr}, 0 offen{SCOPE_PL}")
    k(f"v_lshlrev_b32 v{vA}, {FSH}, v{k.vLane}")
    if "1" in what:
        k(f"s_lshl_b32 s{T0}, s2, 3")
        k(f"s_mov_b64 exec, 0xff")
        fl()
        k(f"s_mov_b64 exec, -1")
    if "a" in what:
        k(f"s_lshl_b32 s{T0}, s2, 5")
        k(f"s_add_u32 s{T0}, s{T0}, {FL2}")
        k(f"s_mov_b32 exec_hi, 0")
        fl()
        k(f"s_mov_b64 exec, -1")
        k(f"s_lshl_b32 s{T0}, s2, 12")
        k(f"s_add_u32 s{T0}, s{T0}, {WS_PS:#x}")
        k(f"v_lshlrev_b32 v{vA}, 6, v{k.vLane}")
        k(f"buffer_load_dword v{vD}, v{vA}, {WSr}, s{T0} offen{SCOPE_PL}")
```

```python
from base import *
from sched import Sched, run_sched

class Proj:
    def __init__(self, mode):
        self.mode = mode
        self.NKS = 32 if mode == 3 else 56
        self.N = self.NKS//4
        self.XR = 131072
    def plan(self, first):
        KB = 1024
        G = 2
        if self.mode == 3:
            w = [i*8*KB for i in range(4)] + [64*KB + i*8*KB for i in range(4)]
            a = [32*KB + i*8*KB for i in range(4)] + [96*KB + i*8*KB for i in range(4)]
            self.S = Sched(8, w + a, 0 if first else 8, 2, 2, look=env('P3_LOOK', 3), group=env('P3_G', 1))
        else:
            slots = [i*8*KB for i in range(20)]
            self.S = Sched(14, slots, 0 if first else env('P6_PW', 14), 2, 2, look=env('P6_LOOK', 4), group=env('P6_G', 1), wreg=self.wreg6(first))
    def wreg6(self, first): return (not first) and env('P6_PW', 14) < 14
    def roles(self, k):
        self.sTb = k.s(); self.sCb = k.s()
        k(f"s_lshl_b32 s{k.sT0}, s{k.sX}, 2")
        k(f"s_and_b32 s{k.sT1}, s{k.sJ}, 3")
        k(f"s_add_u32 s{self.sTb}, s{k.sT0}, s{k.sT1}")
        k(f"s_lshr_b32 s{self.sCb}, s{k.sJ}, 2")

    def c(self, k, first, last):
        mode = self.mode; N = self.N; XR = self.XR
        k.pfx = f"p{mode}c_"; m = k.mark()
        self.plan(first); S = self.S
        SC = "" if last else SCOPE_ST
        LD = "" if first else SCOPE_LD
        T0, T1 = k.sT0, k.sT1; WSr = sr(k.sWS, 4); vL16 = k.vL16; vLane = k.vLane
        self.roles(k)
        sTb, sCb = self.sTb, self.sCb
        vT0 = k.v(); vT1 = k.v(); vT2 = k.v(2, 2); vT3 = vT2+1
        k(f"s_cmp_ge_u32 s{k.sWave}, 4")
        k(f"s_cbranch_scc1 {k.L('idle')}")
        sTh = k.s(); sCt = k.s(); sTT = k.s(); sHo = k.s(); sXo = k.s(); sFl = k.s(); sSX = k.s(4, 4)
        vWa = k.v(); vAa = k.v()
        vR = k.v(8, 4)
        vW = [k.v(16, 4), k.v(16, 4), k.v(16, 4)]
        vA = [k.v(16, 4), k.v(16, 4)]
        vAcc = k.v(16, 4)
        vE = k.v(16, 4)
        k(f"s_and_b32 s{sTh}, s{k.sWave}, 1")
        k(f"s_lshr_b32 s{sCt}, s{k.sWave}, 1")
        k(f"s_lshl_b32 s{sTT}, s{sTb}, 1")
        k(f"s_add_u32 s{sTT}, s{sTT}, s{sTh}")
        k(f"s_lshl_b32 s{sFl}, s{sTT}, 4")
        k(f"s_lshl_b32 s{T1}, s{sCb}, 1")
        k(f"s_add_u32 s{sFl}, s{sFl}, s{T1}")
        k(f"s_add_u32 s{sFl}, s{sFl}, s{sCt}")
        k(f"s_lshl_b32 s{sHo}, s{sFl}, 11")
        k(f"s_add_u32 s{sHo}, s{sHo}, {WS_HF:#x}")
        k(f"s_lshl_b32 s{sXo}, s{sTT}, 15")
        k(f"s_lshl_b32 s{T1}, s{sCb}, 7")
        k(f"s_add_u32 s{sXo}, s{sXo}, s{T1}")
        k(f"s_lshl_b32 s{T1}, s{sCt}, 6")
        k(f"s_add_u32 s{sXo}, s{sXo}, s{T1}")
        tr_base(k, vWa, vT0, natural=False)
        k(f"s_lshl_b32 s{T0}, s{sCt}, 10")
        k(f"v_add_u32 v{vWa}, s{T0}, v{vWa}")
        k(f"s_lshl_b32 s{T0}, s{sTh}, 12")
        k(f"v_add_u32 v{vAa}, s{T0}, v{vL16}")
        wins = sorted({a >> 16 for a in S.addr.values()})
        Ww = Win(k, vWa, wins); Aw = Win(k, vAa, wins)
        for i in range(16): k(f"v_mov_b32 v{vAcc+i}, 0")
        if mode == 3:
            k(f"v_and_b32 v{vT0}, 31, v{vLane}")
            k(f"v_lshlrev_b32 v{vT0}, 6, v{vT0}")
            k(f"v_lshrrev_b32 v{vT2}, 5, v{vLane}")
            k(f"v_lshl_add_u32 v{vT0}, v{vT2}, 3, v{vT0}")
            k(f"s_lshl_b32 s{T0}, s{k.sWave}, 11")
            k(f"s_add_u32 s{T0}, s{T0}, {XR}")
            k(f"v_add_u32 v{vT0}, s{T0}, v{vT0}")
            k(f"v_bfe_u32 v{vT2}, v{vLane}, 2, 2")
            for p in range(4):
                k(f"v_xor_b32 v{vE+p}, {p}, v{vT2}")
                k(f"v_lshl_add_u32 v{vE+p}, v{vE+p}, 4, v{vT0}")
        elif env("OUT_LDS", 1):
            live_late = {a_ for (kd, u), a_ in S.addr.items() if u >= N - 3}
            OB = next(a_ for (kd, u), a_ in sorted(S.addr.items(), key=lambda t: -t[0][1]) if a_ not in live_late)
            vOw = k.v(3)
            k(f"v_and_b32 v{vT0}, 31, v{vLane}")
            k(f"v_lshrrev_b32 v{vT2}, 5, v{vLane}")
            k(f"s_lshl_b32 s{T0}, s{sCt}, 2")
            k(f"v_add_u32 v{vT2}, s{T0}, v{vT2}")
            k(f"v_and_b32 v{vT1}, 7, v{vLane}")
            k(f"v_xor_b32 v{vT2}, v{vT2}, v{vT1}")
            k(f"s_lshl_b32 s{T0}, s{sTh}, 12")
            k(f"s_add_u32 s{T0}, s{T0}, {OB}")
            k(f"v_lshl_add_u32 v{vOw}, v{vT0}, 7, s{T0}")
            k(f"v_lshl_add_u32 v{vOw}, v{vT2}, 4, v{vOw}")
            k(f"v_xor_b32 v{vOw+1}, 32, v{vOw}")
            k(f"s_lshl_b32 s{T0}, s{k.sWave}, 11")
            k(f"s_add_u32 s{T0}, s{T0}, {OB}")
            k(f"v_add_u32 v{vOw+2}, s{T0}, v{vL16}")
            k(f"v_lshrrev_b32 v{vT2}, 3, v{vLane}")
            k(f"v_xor_b32 v{vT1}, v{vT1}, v{vT2}")
            k(f"v_lshlrev_b32 v{vT0}, 10, v{vT2}")
            k(f"v_lshl_add_u32 v{vT0}, v{vT1}, 4, v{vT0}")
            k(f"s_lshl_b32 s{sXo}, s{sTb}, 16")
            k(f"s_lshl_b32 s{T1}, s{k.sWave}, 14")
            k(f"s_add_u32 s{sXo}, s{sXo}, s{T1}")
            k(f"s_lshl_b32 s{T1}, s{sCb}, 7")
            k(f"s_add_u32 s{sXo}, s{sXo}, s{T1}")
        else:
            k(f"v_and_b32 v{vT0}, 31, v{vLane}")
            k(f"v_lshlrev_b32 v{vT0}, 10, v{vT0}")
            k(f"v_lshrrev_b32 v{vT2}, 5, v{vLane}")
            k(f"v_lshl_add_u32 v{vT0}, v{vT2}, 4, v{vT0}")
        if first:
            k.ptrs_ready()
            if not last: nonce_fetch(k, vW[0])
        if mode == 6:
            k.srd(sSX, k.ptr(KA_OUT), T*D*2)
            k(f"buffer_load_dwordx4 {vr(vR,4)}, v{vL16}, {WSr}, s{sHo} offen{LD}")
            k(f"buffer_load_dwordx4 {vr(vR+4,4)}, v{vL16}, {WSr}, s{sHo} offen offset:1024{LD}")
        if not first:
            def dopoll(w):
                k(f"s_cmp_lg_u32 s{k.sWave}, {w}")
                k(f"s_cbranch_scc1 {k.L('nopoll')}")
                if mode == 6 and not P5N:
                    k(f"s_cmp_lt_u32 s{k.sJ}, 28")
                    k(f"s_cbranch_scc1 {k.L('nolong')}")
                    k(f"s_lshl_b32 s{T0}, s{sTb}, 3")
                    k(f"s_add_u32 s{T0}, s{T0}, {FL5}")
                    poll(k, "poll0", T0, vT1, vT2, n=1, sleep=8, pipe=False)
                    k.label("nolong")
                if mode == 3:
                    k(f"s_lshl_b32 s{T0}, s{k.sX}, 5")
                    k(f"s_add_u32 s{T0}, s{T0}, {FL2}")
                    rep_off(k, T0, k.sJ, R2)
                else:
                    k(f"s_lshl_b32 s{T0}, s{sTb}, 3")
                    k(f"s_add_u32 s{T0}, s{T0}, {FL5}")
                    rep_off(k, T0, sCb, R5)
                poll(k, "poll", T0, vT1, vT2, n=32 if mode == 3 else 7 + P5N)
                k.label("nopoll")
            if not (env('PIDLE', 6) == mode): dopoll(PW)
            k(f"s_barrier")
            k.stamp("ready")
            def rdW(u):
                l = []
                for i in range(4):
                    l.append(f"ds_read_b64_tr_b16 {vr(vW[u%3]+4*i,2)}, {Ww.at(S.addr[('W',u)] + i*2048)}")
                    l.append(f"ds_read_b64_tr_b16 {vr(vW[u%3]+4*i+2,2)}, {Ww.at(S.addr[('W',u)] + i*2048 + 512)}")
                return l
            if env("P36_WPF", 1): k.many(rdW(0))
        def reads(u):
            b = u & 1; l = []
            for i in range(4):
                l.append(f"ds_read_b128 {vr(vA[b]+4*i,4)}, {Aw.at(S.addr[('A',u)] + i*1024)}")
                l.append(f"ds_read_b64_tr_b16 {vr(vW[b]+4*i,2)}, {Ww.at(S.addr[('W',u)] + i*2048)}")
                l.append(f"ds_read_b64_tr_b16 {vr(vW[b]+4*i+2,2)}, {Ww.at(S.addr[('W',u)] + i*2048 + 512)}")
            return l
        def comp(u):
            b = u & 1
            return [f"v_mfma_f32_32x32x16_bf16 {vr(vAcc,16)}, {vr(vW[b]+4*i,4)}, {vr(vA[b]+4*i,4)}, {vr(vAcc,16)}" for i in range(4)]
        G = S.group
        WPF = env("P36_WPF", 1) and not first
        if WPF:
            def rdA(u): return [f"ds_read_b128 {vr(vA[u&1]+4*i,4)}, {Aw.at(S.addr[('A',u)] + i*1024)}" for i in range(4)]
            def cmp3(u): return [f"v_mfma_f32_32x32x16_bf16 {vr(vAcc,16)}, {vr(vW[u%3]+4*i,4)}, {vr(vA[u&1]+4*i,4)}, {vr(vAcc,16)}" for i in range(4)]
            for u in range(N):
                if u % G == 0:
                    k(f"s_barrier")
                    if u == 0: k.stamp("data")
                rd = rdA(u)
                if u == 1 and mode == 3:
                    rd += [f"ds_read_b64 {vr(vR+2*p,2)}, v{vE+p}" for p in range(4)]
                nW = rdW(u+1) if u+1 < N else []
                k.many(rd[:2])
                interleave(k, cmp3(u-1) if u else [], rd[2:] + nW, per=3)
                if u == 3:
                    if mode == 6: k(f"s_waitcnt vmcnt(0)")
                    for r in range(8):
                        k(f"v_lshlrev_b32 v{vE+2*r}, 16, v{vR+r}")
                        k(f"v_and_b32 v{vE+2*r+1}, 0xffff0000, v{vR+r}")
                if u < N-1: k(f"s_waitcnt lgkmcnt({len(nW)})")
            for i in range(4):
                k(f"s_waitcnt lgkmcnt({3-i})")
                k(cmp3(N-1)[i])
        else:
            for u in range(N):
                if u % G == 0:
                    k(f"s_barrier")
                    if u == 0: k.stamp("data")
                rd = reads(u)
                if u == 1 and mode == 3:
                    rd += [f"ds_read_b64 {vr(vR+2*p,2)}, v{vE+p}" for p in range(4)]
                RLX = mode == 3 and env("P3_RLX", 1) and u != 2
                if u == 0 or (u % G == 0 and not RLX):
                    interleave(k, comp(u-1) if u else [], rd, per=4)
                elif mode == 3 and u == 2:
                    interleave(k, comp(u-1), rd, per=4)
                else:
                    cp = comp(u-1)
                    for i in range(4):
                        k.many(rd[3*i:3*i+3])
                        k(f"s_waitcnt lgkmcnt({min(15, 9 - 3*i + 3*(i+1))})")
                        k(cp[i])
                    k.many(rd[12:])
                if u < N-1 and (((u+1) % G == 0 and not (mode == 3 and env("P3_RLX", 1))) or (mode == 3 and u == 1)): k(f"s_waitcnt lgkmcnt(0)")
                if u == 3:
                    if mode == 6: k(f"s_waitcnt vmcnt(0)")
                    for r in range(8):
                        k(f"v_lshlrev_b32 v{vE+2*r}, 16, v{vR+r}")
                        k(f"v_and_b32 v{vE+2*r+1}, 0xffff0000, v{vR+r}")
            last_c = comp(N-1)
            for i in range(4):
                k(f"s_waitcnt lgkmcnt({9-3*i})")
                k(last_c[i])
        if not last: k(f"s_barrier")
        k.stamp("loopend")
        k(f"s_nop {11 if last else 10}")
        for r in range(16): k(f"v_add_f32 v{vAcc+r}, v{vAcc+r}, v{vE+r}")
        for r in range(8): k(f"v_cvt_pk_bf16_f32 v{vR+r}, v{vAcc+2*r}, v{vAcc+2*r+1}")
        if mode == 3:
            k(f"buffer_store_dwordx4 {vr(vR,4)}, v{vL16}, {WSr}, s{sHo} offen{SC}")
            k(f"buffer_store_dwordx4 {vr(vR+4,4)}, v{vL16}, {WSr}, s{sHo} offen offset:1024{SC}")
            vS = vW[0]
            k(f"v_add_f32 v{vS}, v{vAcc}, v{vAcc+1}")
            k(f"v_mul_f32 v{vS+1}, v{vAcc}, v{vAcc}")
            k(f"v_add_f32 v{vS+2}, v{vAcc+2}, v{vAcc+3}")
            k(f"v_mul_f32 v{vS+3}, v{vAcc+1}, v{vAcc+1}")
            for r in range(2, 16):
                if r >= 4: k(f"v_add_f32 v{vS+2*(r&1)}, v{vS+2*(r&1)}, v{vAcc+r}")
                k(f"v_fmac_f32 v{vS+1+2*(r&1)}, v{vAcc+r}, v{vAcc+r}")
            k(f"v_add_f32 v{vS}, v{vS}, v{vS+2}")
            k(f"v_add_f32 v{vS+1}, v{vS+1}, v{vS+3}")
            half_combine(k, [vS, vS+1], [vT1, vT2])
            k(f"v_lshlrev_b32 v{vT0}, 3, v{vLane}")
            k(f"s_lshl_b32 s{T0}, s{sFl}, 8")
            k(f"s_add_u32 s{T0}, s{T0}, {WS_HS:#x}")
            k(f"s_mov_b32 exec_hi, 0")
            k(f"buffer_store_dwordx2 {vr(vS,2)}, v{vT0}, {WSr}, s{T0} offen{SC}")
            k(f"s_mov_b32 exec_hi, -1")
            k.stamp("stored")
            if not last:
                k(f"s_lshl_b32 s{sFl}, s{sTb}, 3")
                k(f"s_add_u32 s{sFl}, s{sFl}, s{sCb}")
                k(f"s_add_u32 s{sFl}, s{sFl}, {FL3}")
                publish(k, sFl, vT0, vT2, R3)
                k.stamp("flag")
        else:
            k(f"s_nop 1")
            for m_ in range(2):
                k(f"v_permlane32_swap_b32 v{vR+4*m_}, v{vR+4*m_+2}")
                k(f"v_permlane32_swap_b32 v{vR+4*m_+1}, v{vR+4*m_+3}")
            if env("OUT_LDS", 1):
                k(f"ds_write_b128 v{vOw}, {vr(vR,4)}")
                k(f"ds_write_b128 v{vOw+1}, {vr(vR+4,4)}")
                k(f"s_waitcnt lgkmcnt(0)")
                k(f"s_barrier")
                k(f"ds_read_b128 {vr(vR,4)}, v{vOw+2}")
                k(f"ds_read_b128 {vr(vR+4,4)}, v{vOw+2} offset:1024")
                k(f"s_add_u32 s{T0}, s{sXo}, 8192")
                k(f"s_waitcnt lgkmcnt(1)")
                k(f"buffer_store_dwordx4 {vr(vR,4)}, v{vT0}, {sr(sSX,4)}, s{sXo} offen{env('OUT_SC', '')}")
                k(f"s_waitcnt lgkmcnt(0)")
                k(f"buffer_store_dwordx4 {vr(vR+4,4)}, v{vT0}, {sr(sSX,4)}, s{T0} offen{env('OUT_SC', '')}")
            else:
                k(f"buffer_store_dwordx4 {vr(vR,4)}, v{vT0}, {sr(sSX,4)}, s{sXo} offen{env('OUT_SC', '')}")
                k(f"buffer_store_dwordx4 {vr(vR+4,4)}, v{vT0}, {sr(sSX,4)}, s{sXo} offen offset:32{env('OUT_SC', '')}")
            k.stamp("stored")
            if not first and env("STAMP_DBG", -1) < 0:
                k(f"s_or_b32 s{T0}, s2, s{k.sWave}")
                k(f"s_cbranch_scc1 {k.L('end')}")
                k(f"v_mov_b32 v{vT2}, 0"); k(f"v_mov_b32 v{vT3}, 0")
                k(f"s_mov_b64 exec, 1")
                k(f"global_store_dwordx2 v{vT2}, {vr(vT2,2)}, {sr(k.ptr(KA_DBG),2)}")
                k(f"s_mov_b64 exec, -1")
        k(f"s_branch {k.L('end')}")
        k.label("idle")
        if first and not last:
            k.ptrs_ready()
            nonce_publish(k, vW[0])
            nonce_fetch(k, vW[0], "nf2")
        if not first:
            if (env('PIDLE', 6) == mode): dopoll(7)
            k(f"s_barrier")
        if last: k(f"s_endpgm")
        else:
            for _ in range(S.NB+2): k(f"s_barrier")
        k.label("end")
        k.reset(m)

    def l_setup(self, k):
        mode = self.mode; T0, T1 = k.sT0, k.sT1; sLw = k.sLw
        k.pfx = f"p{mode}l_"
        self.roles(k)
        self.sSW = k.s(4, 4); self.sAo = k.s(); self.sWo = k.s(); self.sM = k.s(); self.sRot = k.s()
        self.vWd = k.v(2); self.vT = k.v(2) if mode == 3 else k.vLt
        vT = self.vT
        k(f"s_lshl_b32 s{self.sRot}, s{T1}, 1")
        k(f"s_add_u32 s{self.sRot}, s{self.sRot}, s{self.sCb}")
        k(f"s_and_b32 s{self.sRot}, s{self.sRot}, {7 if env('P36_ROT', 0) else 0}")
        if mode == 6:
            k(f"s_mul_i32 s{self.sRot}, s{self.sRot}, 7")
            k(f"s_lshr_b32 s{self.sRot}, s{self.sRot}, 2")
        k(f"v_lshrrev_b32 v{vT}, 2, v{k.vLane}")
        k(f"v_lshlrev_b32 v{vT}, 10, v{vT}")
        k(f"v_and_b32 v{vT+1}, 3, v{k.vLane}")
        k(f"v_lshl_add_u32 v{self.vWd}, v{vT+1}, 4, v{vT}")
        k(f"v_add_u32 v{self.vWd+1}, 64, v{self.vWd}")
        k(f"v_add_u32 v{self.vWd}, 1024, v{self.vWd}")
        k(f"s_lshr_b32 s{T0}, s{sLw}, 1")
        k(f"s_lshl_b32 s{T1}, s{self.sTb}, 1")
        k(f"s_add_u32 s{T0}, s{T0}, s{T1}")
        k(f"s_mul_i32 s{self.sAo}, s{T0}, {self.NKS*1024}")
        k(f"s_and_b32 s{T0}, s{sLw}, 1")
        k(f"s_lshl_b32 s{T0}, s{T0}, 11")
        k(f"s_add_u32 s{self.sAo}, s{self.sAo}, s{T0}")
        k(f"s_add_u32 s{self.sAo}, s{self.sAo}, {(WS_OF if mode == 3 else WS_UF):#x}")
        k(f"s_lshl_b32 s{self.sM}, s{sLw}, 11")
        k(f"s_lshl_b32 s{self.sWo}, s{sLw}, 14")
        k(f"s_lshl_b32 s{T0}, s{self.sCb}, 7")
        k(f"s_add_u32 s{self.sWo}, s{self.sWo}, s{T0}")
    def l_srd(self, k):
        k.srd(self.sSW, k.ptr(KA_WO if self.mode == 3 else KA_WOUT), self.NKS*16*1024, bias=1024)
    def issue(self, k, kind, u, a, LD):
        T0 = k.sT0; N = self.N
        if kind == 'W' and self.staged and self.mode == 6:
            for i in range(2):
                ad = self.Wn.at(a + i*1024).split(" ")
                k(f"ds_write_b128 {ad[0]}, {vr(k.vStage+16+8*u+4*i,4)} {ad[1]}")
            return
        k(f"s_add_u32 s{T0}, s{self.sRot}, {u}")
        if N == 8: k(f"s_and_b32 s{T0}, s{T0}, 7")
        else:
            k(f"s_sub_u32 s{k.sT1}, s{T0}, {N}")
            k(f"s_cselect_b32 s{T0}, s{T0}, s{k.sT1}")
        k(f"s_add_u32 m0, s{self.sM}, {a}")
        if kind == 'W':
            k(f"s_lshl_b32 s{T0}, s{T0}, 16")
            k(f"s_add_u32 s{T0}, s{T0}, s{self.sWo}")
            k(f"buffer_load_dwordx4 v{self.vWd}, {sr(self.sSW,4)}, s{T0} offen lds")
            k(f"buffer_load_dwordx4 v{self.vWd+1}, {sr(self.sSW,4)}, s{T0} offen offset:1024 lds")
        else:
            k(f"s_lshl_b32 s{T0}, s{T0}, 12")
            k(f"s_add_u32 s{T0}, s{T0}, s{self.sAo}")
            k(f"buffer_load_dwordx4 v{k.vL16}, {sr(k.sWS,4)}, s{T0} offen{LD} lds")
            k(f"buffer_load_dwordx4 v{k.vL16}, {sr(k.sWS,4)}, s{T0} offen offset:1024{LD} lds")
    def stage_regs(self, k):
        m = k.mark()
        self.l_setup(k); self.l_srd(k)
        out = []
        for u in range(self.N):
            def f(u=u, sRot=self.sRot, sWo=self.sWo, vWd=self.vWd, sSW=self.sSW):
                T0 = k.sT0
                k(f"s_add_u32 s{T0}, s{sRot}, {u}")
                k(f"s_sub_u32 s{k.sT1}, s{T0}, {self.N}")
                k(f"s_cselect_b32 s{T0}, s{T0}, s{k.sT1}")
                k(f"s_lshl_b32 s{T0}, s{T0}, 16")
                k(f"s_add_u32 s{T0}, s{T0}, s{sWo}")
                k(f"buffer_load_dwordx4 {vr(k.vStage+16+8*u,4)}, v{vWd}, {sr(sSW,4)}, s{T0} offen")
                k(f"buffer_load_dwordx4 {vr(k.vStage+16+8*u+4,4)}, v{vWd+1}, {sr(sSW,4)}, s{T0} offen offset:1024")
            out.append(f)
        self.staged = True
        return out
    staged = False
    p4n = None
    def mid(self, k):
        if not P5N:
            k(f"s_cmp_ge_u32 s{k.sJ}, 28")
            k(f"s_cbranch_scc1 {k.L('nomid')}")
        k(f"s_barrier")
        k.label("nomid")
    def l_pre(self, k):
        k.reset(k.lbase)
        self.plan(False)
        self.l_setup(k); self.l_srd(k)
        if self.staged:
            vD = k.v()
            k(f"v_add_u32 v{vD}, s{self.sM}, v{k.vL16}")
            Wn = self.Wn = Win(k, vD, [0, 1, 2])
            k(f"s_waitcnt vmcnt(0)")
            for kd, u, a in self.S.pre:
                if u == env("P6_SPLIT", 4): self.mid(k)
                for i in range(2):
                    ad = Wn.at(a + i*1024).split(" ")
                    k(f"ds_write_b128 {ad[0]}, {vr(k.vStage+16+8*u+4*i,4)} {ad[1]}")
            k(f"s_waitcnt lgkmcnt(0)")
        else:
            if self.mode == 6: self.mid(k)
            for kd, u, a in self.S.pre: self.issue(k, kd, u, a, "")
    def xres(self, k):
        T0, T1 = k.sT0, k.sT1; vT = self.vT; sLw = k.sLw
        sSX = k.s(4, 4); vX = k.v()
        k.srd(sSX, k.ptr(KA_X), T*D*2)
        k(f"v_lshrrev_b32 v{vX}, 4, v{k.vLane}")
        k(f"v_xor_b32 v{vX}, v{vT+1}, v{vX}")
        k(f"v_lshl_add_u32 v{vX}, v{vX}, 4, v{vT}")
        k(f"s_lshl_b32 s{T0}, s{self.sTb}, 16")
        k(f"s_and_b32 s{T1}, s{sLw}, 1")
        k(f"s_lshl_b32 s{T1}, s{T1}, 15")
        k(f"s_add_u32 s{T0}, s{T0}, s{T1}")
        k(f"s_lshl_b32 s{T1}, s{self.sCb}, 7")
        k(f"s_add_u32 s{T0}, s{T0}, s{T1}")
        k(f"s_lshr_b32 s{T1}, s{sLw}, 1")
        k(f"s_lshl_b32 s{T1}, s{T1}, 6")
        k(f"s_add_u32 m0, s{self.sM}, {self.XR}")
        k(f"s_add_u32 s{T0}, s{T0}, s{T1}")
        k(f"buffer_load_dwordx4 v{vX}, {sr(sSX,4)}, s{T0} offen lds")
        k(f"s_add_u32 m0, m0, 1024")
        k(f"s_add_u32 s{T0}, s{T0}, 16384")
        k(f"buffer_load_dwordx4 v{vX}, {sr(sSX,4)}, s{T0} offen lds")
    def l(self, k, first, last, next_pre):
        LD = "" if first else SCOPE_LD
        if first:
            self.plan(True)
            self.l_setup(k); k.ptrs_ready(); self.l_srd(k)
        k.pfx = f"p{self.mode}l_"
        if self.mode == 3:
            self.xres(k)
            if not first: k(f"s_barrier")
            if self.p4n: self.p4n.cs_pre(k)
        if not first:
            k(f"s_waitcnt vmcnt(0)")
            k(f"s_barrier")
        run_sched(k, self.S, lambda kd, u, a: self.issue(k, kd, u, a, LD), {'W': 0 if (self.staged and self.mode == 6) else 2, 'A': 2})
        if not last:
            k(f"s_barrier")
            next_pre(k)
            k(f"s_barrier")
```

```python
import os, struct
def env(n, d): return type(d)(os.environ.get(n, d))
T = 2048; D = 512; H = 32; DH = 16; F = 1792; FH = 896
KA_X, KA_WQKV, KA_WO, KA_BX, KA_WIN, KA_WSP, KA_BSP, KA_WOUT, KA_OUT, KA_DBG, KA_WS = [8*i for i in range(11)]
WS_QF  = 0x000000
WS_KVF = 0x200000
WS_OF  = 0x600000
WS_HF  = 0x800000
WS_Z1F = 0xA00000
WS_Z2I = 0xE00000
WS_UF  = 0x1200000
WS_PS  = 0x1600000
WS_HS  = 0x1680000
WS_FL  = 0x1700000
FS = 128; FSH = 7
NFL = 24576
RS = 256; RSH = 8
R1 = env("R1", 8); R2 = env("R2", 8); R3 = env("R3", 4); R4 = env("R4", 8); R5 = env("R5", 2)
FL1 = 0
FL2 = FL1 + 8*RS
FL3 = FL2 + 8*RS
FL4 = FL3 + 8*RS
FL5 = FL4 + 8*RS
FL4B = FL5 + 4*RS
assert R5 <= 4 and FL5 + 8*RS <= NFL
WS_END = 0x1A00000
WS_STAMP = 0x1C00000
LDS_MAX = 163840

def f32(x): return struct.unpack('<I', struct.pack('<f', x))[0]
def vr(a, n=1): return f"v{a}" if n == 1 else f"v[{a}:{a+n-1}]"
def sr(a, n=1): return f"s{a}" if n == 1 else f"s[{a}:{a+n-1}]"

P5N = env('P5N', 1)
P5D = env('P5D', 1)
SCOPE_ST = {0: "", 1: " sc1", 2: " sc0 sc1"}[env("SC_ST", 1)]
SCOPE_LD = {0: "", 1: " sc1", 2: " sc0 sc1"}[env("SC_LD", 1)]
SCOPE_PL = {1: " sc1", 2: " sc0 sc1"}[env("SC_PL", 1)]
SLEEP = env("POLL_SLEEP", 2)
PW = env('POLL_WAVE', 0)
THR = env("PRE_THR", 0)

class K:
    def __init__(self, name, stamps=False, kidx=0):
        self.name = name; self.grid = 256; self.block = 768; self.lds = LDS_MAX
        self.lines = []; self.vnext = 1; self.snext = 3; self.vmax = 1; self.smax = 3
        self.stamps = stamps; self.kidx = kidx; self.pfx = ""; self.nst = 0; self.stnames = []
    def __call__(self, s):
        for ln in s.strip("\n").split("\n"): self.lines.append("  " + ln.strip())
    def many(self, l):
        for s in l: self(s)
    def L(self, l): return f"L_{self.name}_{self.pfx}{l}"
    def label(self, l): self.lines.append(f"{self.L(l)}:")
    def v(self, n=1, align=1):
        a = (self.vnext + align - 1)//align*align
        self.vnext = a + n; self.vmax = max(self.vmax, self.vnext); return a
    def s(self, n=1, align=1):
        a = (self.snext + align - 1)//align*align
        self.snext = a + n; self.smax = max(self.smax, self.snext); assert self.snext <= 100; return a
    def mark(self): return (self.vnext, self.snext)
    def reset(self, m): self.vnext, self.snext = m
    def srd(self, s, lo, size, bias=0):
        if bias:
            self(f"s_sub_u32 s{s}, s{lo}, {bias}")
            self(f"s_subb_u32 s{s+1}, s{lo+1}, 0")
            self(f"s_and_b32 s{s+1}, s{s+1}, 0xffff")
        else:
            self(f"s_mov_b32 s{s}, s{lo}")
            self(f"s_and_b32 s{s+1}, s{lo+1}, 0xffff")
        self(f"s_mov_b32 s{s+2}, {size+bias:#x}")
        self(f"s_mov_b32 s{s+3}, 0x20000")
    def prologue(self):
        k = self
        k.sIn = k.s(16, 4)
        k.sP2 = k.s(4, 4)
        k.sWSp = k.s(2, 2)
        k.sWS = k.s(4, 4)
        k.sT0 = k.s(2, 2); k.sT1 = k.sT0 + 1; k.sWave = k.s(); k.sX = k.s(); k.sJ = k.s(); k.sCnt = k.s()
        k.sNon = k.s(2, 2)
        k.vLane = k.v(); k.vL16 = k.v()
        if k.stamps:
            k.sSt = k.s(2, 2); k.vSt = k.v()
            k(f"s_memrealtime s[{k.sSt}:{k.sSt+1}]")
            k(f"v_mov_b32 v{k.vSt}, 0")
            k(f"s_waitcnt lgkmcnt(0)")
            k(f"v_writelane_b32 v{k.vSt}, s{k.sSt}, 62")
            k.stamp("start")
        k(f"s_load_dwordx2 {sr(k.sWSp,2)}, s[0:1], {KA_WS}")
        k(f"s_load_dwordx16 {sr(k.sIn,16)}, s[0:1], 0")
        k(f"s_load_dwordx4 {sr(k.sP2,4)}, s[0:1], {KA_OUT}")
        k(f"v_lshrrev_b32 v{k.vL16}, 6, v0")
        k(f"v_and_b32 v{k.vLane}, 63, v0")
        k(f"v_readfirstlane_b32 s{k.sWave}, v{k.vL16}")
        k(f"v_lshlrev_b32 v{k.vL16}, 4, v{k.vLane}")
        k(f"s_and_b32 s{k.sX}, s2, 7")
        k(f"s_lshr_b32 s{k.sJ}, s2, 3")
    def ptrs_ready(self):
        self(f"s_waitcnt lgkmcnt(0)")
        self.srd(self.sWS, self.sWSp, WS_END)
    def ptr(self, ka):
        return self.sIn + ka//4 if ka < 64 else self.sP2 + (ka-64)//4
    def stamp(self, name):
        if not self.stamps: return
        if env("STAMP_DBG", -1) >= 0 and self.pfx + name not in ("start p1c_xin p1c_loopend p1c_flag p2c_data p2c_xch p3c_data p3c_flag p4c_data p4c_loopend p4c_flag p5c_ready p5c_loopend p6c_data").split(): return
        if env("ECHO", "") and name != "start" and self.pfx + name not in env("ECHO", "").split(","): return
        if name != "start" and (env("STAMP_WAVE", 0) >= 8) != (self.pfx[2:3] == "l"): return
        i = self.nst; self.nst += 1; self.stnames.append(self.pfx + name); assert i < 62
        self(f"{'s_memrealtime' if env('STAMP_RT', 1) else 's_memtime'} s[{self.sSt}:{self.sSt+1}]")
        self(f"s_waitcnt lgkmcnt(0)")
        self(f"v_writelane_b32 v{self.vSt}, s{self.sSt}, {i}")
    def stamp_flush(self):
        if not self.stamps: return
        k = self
        w = env("STAMP_WAVE", 0)
        if (w >= 8) != (k.pfx == "l_"): return
        k(f"s_cmp_lg_u32 s{k.sWave}, {w}")
        k(f"s_cbranch_scc1 {k.L('nostamp')}")
        k(f"s_waitcnt vmcnt(0)")
        k(f"s_memrealtime s[{k.sSt}:{k.sSt+1}]")
        k(f"s_waitcnt lgkmcnt(0)")
        k(f"v_writelane_b32 v{k.vSt}, s{k.sSt}, 63")
        if env("ECHO", ""):
            na, nb = env("ECHO", "").split(",")
            ia = k.stnames.index(na); ib = 63 if nb == "end" else k.stnames.index(nb)
            k(f"s_cmp_lg_u32 s2, 9")
            k(f"s_cbranch_scc1 {k.L('nostamp')}")
            k(f"s_nop 1")
            k(f"v_readlane_b32 s{k.sT0}, v{k.vSt}, {ia}")
            k(f"v_readlane_b32 s{k.sT1}, v{k.vSt}, {ib}")
            k(f"s_sub_u32 s{k.sT1}, s{k.sT1}, s{k.sT0}")
            k(f"s_min_u32 s{k.sT1}, s{k.sT1}, 20000")
            k(f"s_mov_b32 s{k.sT0}, s{k.sSt}")
            k.label("echo")
            k(f"s_memrealtime s[{k.sSt}:{k.sSt+1}]")
            k(f"s_waitcnt lgkmcnt(0)")
            k(f"s_sub_u32 s{k.sCnt}, s{k.sSt}, s{k.sT0}")
            k(f"s_cmp_lt_u32 s{k.sCnt}, s{k.sT1}")
            k(f"s_cbranch_scc1 {k.L('echo')}")
            k.label('nostamp')
            return
        if env("STAMP_DBG", -1) >= 0:
            k(f"s_cmp_lg_u32 s2, {env('STAMP_DBG', -1)}")
            k(f"s_cbranch_scc1 {k.L('nostamp')}")
            k(f"v_readlane_b32 s{k.sT0}, v{k.vSt}, 0")
            k(f"v_writelane_b32 v{k.vSt}, s{k.sSt}, 0")
            k(f"s_nop 1")
            k(f"v_subrev_u32 v{k.vSt}, s{k.sT0}, v{k.vSt}")
            k(f"v_lshlrev_b32 v{k.vL16}, 2, v{k.vLane}")
            k(f"s_mov_b64 exec, 0x3fff")
            k(f"global_store_dword v{k.vL16}, v{k.vSt}, {sr(k.ptr(KA_DBG),2)} offset:8")
            k.label('nostamp')
            return
        k(f"s_add_u32 s{k.sSt}, s{k.sWSp}, {WS_STAMP + k.kidx*65536}")
        k(f"s_addc_u32 s{k.sSt+1}, s{k.sWSp+1}, 0")
        k(f"s_lshl_b32 s{k.sT0}, s2, 8")
        k(f"v_lshl_add_u32 v{k.vL16}, v{k.vLane}, 2, s{k.sT0}")
        k(f"global_store_dword v{k.vL16}, v{k.vSt}, s[{k.sSt}:{k.sSt+1}]")
        k.label('nostamp')
    def header(self):
        if env("PLAIN", 0): return f"; @launch grid=({self.grid},1,1) block=({self.block},1,1) lds={self.lds}"
        return f"; @launch kernel={self.name} grid=({self.grid},1,1) block=({self.block},1,1) lds={self.lds}"
    def text(self):
        nv = (max(self.vmax, 8) + 3)//4*4
        assert nv <= 168, (self.name, nv)
        body = "\n".join(self.lines)
        return f"""
.text
.globl {self.name}
.p2align 8
.type {self.name},@function
{self.name}:
{body}
.section .rodata,"a"
.p2align 6
.amdhsa_kernel {self.name}
  .amdhsa_next_free_vgpr {nv}
  .amdhsa_next_free_sgpr {max(self.smax, 16)}
  .amdhsa_accum_offset {nv}
  .amdhsa_group_segment_fixed_size 0
  .amdhsa_kernarg_size 88
  .amdhsa_user_sgpr_count 2
  .amdhsa_user_sgpr_kernarg_segment_ptr 1
  .amdhsa_system_sgpr_workgroup_id_x 1
.end_amdhsa_kernel
"""

HEADER = """; Kernarg layout for this problem (88 bytes, ptrs only, base s[0:1]):
"""
def emit(kernels, path):
    s = HEADER + "\n".join(k.header() for k in kernels) + "\n"
    s += '.amdgcn_target "amdgcn-amd-amdhsa--gfx950"\n'
    for k in kernels: s += k.text()
    open(path, "w").write(s)
    import json
    json.dump([k.stnames for k in kernels], open(path + ".stn", "w"))

def tr_base(k, vTr, vTmp, natural):
    L = k.vLane
    k(f"v_lshrrev_b32 v{vTmp}, 5, v{L}")
    k(f"v_lshlrev_b32 v{vTr}, {9 if natural else 8}, v{vTmp}")
    k(f"v_bfe_u32 v{vTmp}, v{L}, 2, 2")
    k(f"v_lshl_add_u32 v{vTr}, v{vTmp}, 6, v{vTr}")
    k(f"v_bfe_u32 v{vTmp}, v{L}, 4, 1")
    k(f"v_lshl_add_u32 v{vTr}, v{vTmp}, 5, v{vTr}")
    k(f"v_and_b32 v{vTmp}, 3, v{L}")
    k(f"v_lshl_add_u32 v{vTr}, v{vTmp}, 3, v{vTr}")

def half_combine(k, regs, vT, op="v_add_f32"):
    for r, t in zip(regs, vT): k(f"v_mov_b32 v{t}, v{r}")
    k("s_nop 1")
    for r, t in zip(regs, vT): k(f"v_permlane32_swap_b32 v{t}, v{r}")
    k("s_nop 1")
    for r, t in zip(regs, vT): k(f"{op} v{r}, v{r}, v{t}")

def interleave(k, mm, rd, tail=(), per=4):
    mm = list(mm); rd = list(rd); tail = list(tail)
    while rd or mm:
        if mm:
            g = mm.pop(0)
            if isinstance(g, str): k(g)
            elif callable(g): g()
            else: k.many(g)
        for _ in range(per):
            if rd: k(rd.pop(0))
            elif tail: k(tail.pop(0))
    k.many(tail)

class Win:
    def __init__(self, k, vbase, wins):
        self.regs = {}
        for w in wins:
            if w == 0: self.regs[0] = vbase
            else:
                r = k.v(); k(f"v_add_u32 v{r}, {w*65536}, v{vbase}"); self.regs[w] = r
    def at(self, off):
        w = off >> 16
        return f"v{self.regs[w]} offset:{off & 0xffff}"

def nonce_publish(k, vA, wave=7):
    m = k.mark(); sD = k.s(4, 4)
    k(f"s_cmp_lg_u32 s2, 0")
    k(f"s_cbranch_scc1 {k.L('nopub')}")
    k(f"s_cmp_lg_u32 s{k.sWave}, {wave}")
    k(f"s_cbranch_scc1 {k.L('nopub')}")
    k(f"s_memrealtime {sr(k.sNon,2)}")
    k.srd(sD, k.ptr(KA_DBG), 256)
    k(f"s_waitcnt lgkmcnt(0)")
    k(f"s_or_b32 s{k.sNon+1}, s{k.sNon+1}, 0x80000000")
    k(f"v_mov_b32 v{vA}, s{k.sNon}")
    k(f"v_mov_b32 v{vA+1}, s{k.sNon+1}")
    k(f"v_mov_b32 v{vA+2}, 0")
    k(f"s_mov_b64 exec, 1")
    k(f"buffer_store_dwordx2 {vr(vA,2)}, v{vA+2}, {sr(sD,4)}, 0 offen{SCOPE_PL}")
    k(f"s_mov_b64 exec, -1")
    k.label("nopub")
    k.reset(m)

def nonce_fetch(k, vA, name="nf"):
    m = k.mark(); sD = k.s(4, 4)
    k.srd(sD, k.ptr(KA_DBG), 256)
    k(f"v_mov_b32 v{vA+2}, 0")
    k(f"s_mov_b32 s{k.sCnt}, 100000")
    k.label(name)
    k(f"buffer_load_dwordx2 {vr(vA,2)}, v{vA+2}, {sr(sD,4)}, 0 offen{SCOPE_PL}")
    k(f"s_waitcnt vmcnt(0)")
    k(f"v_readfirstlane_b32 s{k.sNon+1}, v{vA+1}")
    k(f"v_readfirstlane_b32 s{k.sNon}, v{vA}")
    k(f"s_sub_u32 s{k.sCnt}, s{k.sCnt}, 1")
    k(f"s_cbranch_scc1 {k.L(name+'x')}")
    k(f"s_cmp_lt_u32 s{k.sNon+1}, 0x80000000")
    k(f"s_cbranch_scc1 {k.L(name)}")
    k.label(name+'x')
    k.reset(m)

def poll(k, name, sIdx, vA, vD, n=64, spin=100000, sleep=None, pipe=True, stride=0):
    vD2 = None
    if pipe and env('POLL_PIPE', 0): vD, vD2 = k.vPoll, k.vPoll + 4
    if sleep is None: sleep = SLEEP
    k(f"s_lshl_b32 s{sIdx}, s{sIdx}, {FSH}")
    k(f"s_add_u32 s{sIdx}, s{sIdx}, {WS_FL:#x}")
    if n < 64:
        k(f"v_min_u32 v{vA}, {n-1}, v{k.vLane}")
        k(f"v_lshlrev_b32 v{vA}, {FSH + stride}, v{vA}")
    else:
        k(f"v_lshlrev_b32 v{vA}, {FSH + (n == 128)}, v{k.vLane}")
    k(f"s_mov_b32 s{k.sCnt}, {spin}")
    if n < 64: k(f"s_mov_b64 exec, {(1 << n) - 1:#x}" if n <= 31 else f"s_mov_b32 exec_hi, {(1 << (n-32)) - 1:#x}")
    nl = 2 if n == 128 else 1
    def ld(d):
        k(f"buffer_load_dwordx2 {vr(d,2)}, v{vA}, {sr(k.sWS,4)}, s{sIdx} offen{SCOPE_PL}")
        if n == 128: k(f"buffer_load_dwordx2 {vr(d+2,2)}, v{vA}, {sr(k.sWS,4)}, s{sIdx} offen offset:{FS}{SCOPE_PL}")
    def chk(d):
        k(f"v_cmp_ne_u64 vcc, {sr(k.sNon,2)}, {vr(d,2)}")
        if n == 128:
            m = k.mark(); sM = k.s(2, 2)
            k(f"v_cmp_ne_u64 {sr(sM,2)}, {sr(k.sNon,2)}, {vr(d+2,2)}")
            k(f"s_or_b64 vcc, vcc, {sr(sM,2)}")
            k.reset(m)
        k(f"s_and_b64 exec, exec, vcc")
    if vD2 is None:
        d0 = env("PD_" + k.pfx[:2], 0) if name == "poll" else 0
        if d0: k(f"s_sleep {d0}")
        k(f"s_branch {k.L(name+'g')}")
        k.label(name)
        k(f"s_sleep {sleep}")
        k.label(name+'g')
        ld(vD)
        k(f"s_sub_u32 s{k.sCnt}, s{k.sCnt}, 1")
        k(f"s_cbranch_scc1 {k.L(name+'x')}")
        k(f"s_waitcnt vmcnt(0)")
        chk(vD)
        k(f"s_cbranch_scc1 {k.L(name)}")
    else:
        ld(vD)
        k(f"s_sleep {env('POLL_HALF', 5)}")
        k.label(name)
        ld(vD2)
        k(f"s_sub_u32 s{k.sCnt}, s{k.sCnt}, 1")
        k(f"s_cbranch_scc1 {k.L(name+'x')}")
        k(f"s_waitcnt vmcnt({nl})")
        chk(vD)
        k(f"s_cbranch_scc0 {k.L(name+'x')}")
        ld(vD)
        k(f"s_waitcnt vmcnt({nl})")
        chk(vD2)
        k(f"s_cbranch_scc1 {k.L(name)}")
    k.label(name+'x')
    k(f"s_mov_b64 exec, -1")

def stored(k):
    k(f"s_waitcnt vmcnt(0)")
    k(f"s_barrier")

def set_flag(k, sIdx, vA, vD, rep):
    k(f"s_cmp_lg_u32 s{k.sWave}, {PW}")
    k(f"s_cbranch_scc1 {k.L('nofl')}")
    k(f"s_mov_b64 exec, {(1 << rep) - 1}")
    k(f"buffer_store_dwordx2 {vr(vD,2)}, v{vA}, {sr(k.sWS,4)}, s{sIdx} offen{SCOPE_PL}")
    k(f"s_mov_b64 exec, -1")
    k.label("nofl")
def prep_flag(k, sIdx, vA, vD):
    k(f"s_lshl_b32 s{sIdx}, s{sIdx}, {FSH}")
    k(f"s_add_u32 s{sIdx}, s{sIdx}, {WS_FL:#x}")
    k(f"v_lshlrev_b32 v{vA}, {RSH + FSH}, v{k.vLane}")
    k(f"v_mov_b32 v{vD}, s{k.sNon}")
    k(f"v_mov_b32 v{vD+1}, s{k.sNon+1}")
def publish(k, sIdx, vA, vD, rep):
    prep_flag(k, sIdx, vA, vD); stored(k); set_flag(k, sIdx, vA, vD, rep)
def rep_off(k, sIdx, sSel, rep):
    k(f"s_and_b32 s{k.sT1}, s{sSel}, {rep-1}")
    k(f"s_lshl_b32 s{k.sT1}, s{k.sT1}, {RSH}")
    k(f"s_add_u32 s{sIdx}, s{sIdx}, s{k.sT1}")

def sel16(k, vSel, vT):
    k(f"v_and_b32 v{vT}, 31, v{k.vLane}")
    k(f"v_cmp_eq_u32 vcc, 0, v{vT}")
    k(f"v_cmp_eq_u32 {sr(k.sT0 if k.sT0 % 2 == 0 else k.sT0+1,2)}, 17, v{vT}")
    k(f"v_mov_b32 v{vT}, 0x3f803f80")
    k(f"s_or_b64 vcc, vcc, {sr(k.sT0 if k.sT0 % 2 == 0 else k.sT0+1,2)}")
    k(f"s_nop 0")
    for i in range(4): k(f"v_cndmask_b32 v{vSel+i}, 0, v{vT}, vcc")

def code_touch(k, vA, vD):
    if not env("CODE_PF", 1): return
    m = k.mark(); sP = k.s(2, 2)
    k(f"s_lshl_b32 s{k.sT0}, s{k.sJ}, 2")
    k(f"s_add_u32 s{k.sT0}, s{k.sT0}, s{k.sLw}")
    k(f"s_lshl_b32 s{k.sT0}, s{k.sT0}, 13")
    k(f"s_cmp_ge_u32 s{k.sT0}, L_{k.name}_codeend-{k.name}")
    k(f"s_cbranch_scc1 {k.L('noct')}")
    k(f"s_getpc_b64 {sr(sP,2)}")
    k.label("pc")
    k(f"s_sub_u32 s{sP}, s{sP}, {k.L('pc')}-{k.name}")
    k(f"s_subb_u32 s{sP+1}, s{sP+1}, 0")
    k(f"v_lshl_add_u32 v{vA}, v{k.vLane}, 7, s{k.sT0}")
    k(f"v_min_u32 v{vA}, L_{k.name}_codeend-{k.name}-4, v{vA}")
    k(f"global_load_dword v{vD}, v{vA}, {sr(sP,2)}")
    k.label("noct")
    k.reset(m)

def warm(k, vA, vD, what):
    T0, T1 = k.sT0, k.sT1; WSr = sr(k.sWS, 4)
    def fl(n=1):
        k(f"s_lshl_b32 s{T0}, s{T0}, {FSH}")
        k(f"s_add_u32 s{T0}, s{T0}, {WS_FL:#x}")
        for i in range(n):
            k(f"buffer_load_dword v{vD}, v{vA}, {WSr}, s{T0} offen{SCOPE_PL}")
            if i < n-1: k(f"s_add_u32 s{T0}, s{T0}, {64*FS}")
    if "t" in what:
        k(f"v_lshlrev_b32 v{vA}, 19, v{k.vLane}")
        k(f"buffer_load_dword v{vD}, v{vA}, {WSr}, 0 offen{SCOPE_PL}")
    k(f"v_lshlrev_b32 v{vA}, {FSH}, v{k.vLane}")
    if "1" in what:
        k(f"s_lshl_b32 s{T0}, s2, 3")
        k(f"s_mov_b64 exec, 0xff")
        fl()
        k(f"s_mov_b64 exec, -1")
    if "a" in what:
        k(f"s_lshl_b32 s{T0}, s2, 5")
        k(f"s_add_u32 s{T0}, s{T0}, {FL2}")
        k(f"s_mov_b32 exec_hi, 0")
        fl()
        k(f"s_mov_b64 exec, -1")
        k(f"s_lshl_b32 s{T0}, s2, 12")
        k(f"s_add_u32 s{T0}, s{T0}, {WS_PS:#x}")
        k(f"v_lshlrev_b32 v{vA}, 6, v{k.vLane}")
        k(f"buffer_load_dword v{vD}, v{vA}, {WSr}, s{T0} offen{SCOPE_PL}")

def warm_out(k, vA, vD, lanes):
    m = k.mark(); sO = k.s(4, 4); T0, T1 = k.sT0, k.sT1
    k.srd(sO, k.ptr(KA_OUT), T*D*2)
    k(f"s_lshl_b32 s{T0}, s{k.sX}, 2")
    k(f"s_and_b32 s{T1}, s{k.sJ}, 3")
    k(f"s_add_u32 s{T0}, s{T0}, s{T1}")
    k(f"s_lshl_b32 s{T0}, s{T0}, 16")
    k(f"s_lshr_b32 s{T1}, s{k.sJ}, 2")
    k(f"s_lshl_b32 s{T1}, s{T1}, 7")
    k(f"s_add_u32 s{T0}, s{T0}, s{T1}")
    k(f"v_lshlrev_b32 v{vA}, 12, v{k.vLane}")
    k(f"s_mov_b64 exec, {lanes}")
    k(f"buffer_load_dword v{vD}, v{vA}, {sr(sO,4)}, s{T0} offen")
    k(f"s_mov_b64 exec, -1")
    k.reset(m)
```

```python
from base import *

class P2:
    PAD = 131072
    XCH = 131072 + 12288
    def roles(self, k):
        self.sHead = k.s(); self.sQb = k.s()
        k(f"s_lshl_b32 s{k.sT0}, s{k.sX}, 2")
        k(f"s_lshr_b32 s{k.sT1}, s{k.sJ}, 3")
        k(f"s_add_u32 s{self.sHead}, s{k.sT0}, s{k.sT1}")
        k(f"s_and_b32 s{self.sQb}, s{k.sJ}, 7")

    def c(self, k, first, last):
        k.pfx = "p2c_"; m = k.mark()
        SC = "" if last else SCOPE_ST
        LD = "" if first else SCOPE_LD
        U = 4; PAD = self.PAD; XCH = self.XCH
        T0, T1 = k.sT0, k.sT1; WSr = sr(k.sWS, 4); vL16 = k.vL16; vLane = k.vLane
        self.roles(k)
        sHead, sQb = self.sHead, self.sQb
        sOoff = k.s(); sQo = k.s(); sKh = k.s(); sFl = k.s()
        vKa = k.v(); vVa = k.v(); vVinc = k.v(); vIdx = k.v(); vT0 = k.v(); vT1 = k.v(); vVa0 = k.v()
        vQ = [k.v(4, 4), k.v(4, 4)]
        vKf = [k.v(4, 4), k.v(4, 4)]
        vV0 = k.v(4, 4)
        vV1 = [k.v(4, 4), k.v(4, 4)]
        vS = [k.v(16, 4), k.v(16, 4)]
        vNM = [k.v(16, 4), k.v(16, 4)]
        vO = [k.v(16, 4), k.v(16, 4)]
        QK = lambda d, kf, q, c: k(f"v_mfma_f32_32x32x16_bf16 {vr(d,16)}, {vr(kf,4)}, {vr(q,4)}, {c}")
        PV = lambda o, v, s: k(f"v_smfmac_f32_32x32x32_bf16 {vr(o,16)}, {vr(v,4)}, {vr(s,8)}, v{vIdx}")
        k(f"s_lshr_b32 s{sKh}, s{k.sWave}, 2")
        k(f"s_and_b32 s{T0}, s{k.sWave}, 3")
        k(f"s_lshl_b32 s{T0}, s{T0}, 1")
        k(f"s_lshl_b32 s{T1}, s{sQb}, 3")
        k(f"s_add_u32 s{T0}, s{T0}, s{T1}")
        k(f"s_add_u32 s{sOoff}, s{T0}, s{sKh}")
        k(f"s_lshl_b32 s{sOoff}, s{sOoff}, 5")
        k(f"s_add_u32 s{sOoff}, s{sOoff}, s{sHead}")
        k(f"s_lshl_b32 s{sFl}, s{sQb}, 5")
        k(f"s_add_u32 s{sFl}, s{sFl}, s{sHead}")
        k(f"s_add_u32 s{sFl}, s{sFl}, {FL2}")
        k(f"s_lshl_b32 s{sOoff}, s{sOoff}, 10")
        k(f"s_add_u32 s{sOoff}, s{sOoff}, {WS_OF:#x}")
        k(f"s_lshl_b32 s{T1}, s{sHead}, 6")
        k(f"s_add_u32 s{sQo}, s{T0}, s{T1}")
        k(f"s_lshl_b32 s{sQo}, s{sQo}, 10")
        k(f"v_lshrrev_b32 v{vT0}, 5, v{vLane}")
        k(f"v_and_b32 v{vVa0}, 15, v{vLane}")
        k(f"v_lshl_add_u32 v{vVa0}, v{vT0}, 4, v{vVa0}")
        k(f"v_lshlrev_b32 v{vVa0}, 4, v{vVa0}")
        k(f"v_add_u32 v{vVa0}, 1024, v{vVa0}")
        k(f"v_and_b32 v{vT0}, 27, v{vLane}")
        k(f"v_cmp_eq_u32 vcc, 16, v{vT0}")
        k(f"v_mov_b32 v{vT1}, {PAD + 1024 + 16}")
        k(f"v_mov_b32 v{vKa}, {PAD + 1024}")
        k(f"v_cndmask_b32 v{vT1}, v{vT1}, v{vKa}, vcc")
        k(f"v_and_b32 v{vT0}, 16, v{vLane}")
        k(f"v_cmp_eq_u32 vcc, 0, v{vT0}")
        k(f"s_lshl_b32 s{T0}, s{sKh}, 16")
        k(f"v_mov_b32 v{vKa}, {U*2048}")
        k(f"v_cndmask_b32 v{vVinc}, 0, v{vKa}, vcc")
        k(f"v_add_u32 v{vVa}, s{T0}, v{vVa0}")
        k(f"v_cndmask_b32 v{vVa}, v{vT1}, v{vVa}, vcc")
        k(f"v_add_u32 v{vKa}, s{T0}, v{vL16}")
        k(f"v_mov_b32 v{vIdx}, 0xdddddddd")
        k(f"v_lshrrev_b32 v{vT0}, 1, v{vLane}")
        k(f"v_min_u32 v{vT0}, 23, v{vT0}")
        k(f"v_lshlrev_b32 v{vT0}, 9, v{vT0}")
        k(f"v_and_b32 v{vT1}, 1, v{vLane}")
        k(f"v_lshl_add_u32 v{vT0}, v{vT1}, 4, v{vT0}")
        k(f"v_add_u32 v{vT0}, {PAD}, v{vT0}")
        k(f"v_cmp_eq_u32 vcc, 0, v{vT1}")
        k(f"v_mov_b32 v{vT1}, 0x3f803f80")
        k(f"s_nop 0")
        for i in range(4): k(f"v_cndmask_b32 v{vV0+i}, 0, v{vT1}, vcc")
        k(f"ds_write_b128 v{vT0}, {vr(vV0,4)}")
        for t in range(2):
            for i in range(16): k(f"v_mov_b32 v{vO[t]+i}, 0")
        for i in range(8, 16): k(f"v_mov_b32 v{vS[1]+i}, 0")
        for i in range(4): k(f"v_mov_b32 v{vV1[1]+i}, 0")
        if first:
            k.ptrs_ready()
            if not last: nonce_publish(k, vS[0])
        else:
            if not env('P2_LP', 0):
                k(f"s_cmp_lg_u32 s{k.sWave}, {PW}")
                k(f"s_cbranch_scc1 {k.L('nopoll')}")
                k(f"s_lshl_b32 s{T0}, s{k.sX}, 5")
                rep_off(k, T0, k.sJ, R1)
                poll(k, "poll", T0, vT1, vQ[0], n=32)
                k.label("nopoll")
            k(f"s_barrier")
            k.stamp("ready")
        k(f"buffer_load_dwordx4 {vr(vQ[0],4)}, v{vL16}, {WSr}, s{sQo} offen{LD}")
        k(f"buffer_load_dwordx4 {vr(vQ[1],4)}, v{vL16}, {WSr}, s{sQo} offen offset:1024{LD}")
        k(f"s_waitcnt lgkmcnt(0)")
        k(f"s_barrier")
        k.stamp("data")
        k(f"ds_read_b128 {vr(vV0,4)}, v{vL16}")
        k(f"ds_read_b128 {vr(vKf[0],4)}, v{vKa}")
        k(f"ds_read_b128 {vr(vKf[1],4)}, v{vKa} offset:2048")
        k(f"s_waitcnt vmcnt(0) lgkmcnt(2)")
        QK(vNM[0], vV0, vQ[0], "0")
        QK(vNM[1], vV0, vQ[1], "0")
        k(f"ds_read_b128 {vr(vV0,4)}, v{vVa}")
        k(f"ds_read_b128 {vr(vV1[0],4)}, v{vVa} offset:512")
        k(f"s_nop 9")
        for t in range(2):
            N_ = vNM[t]
            k(f"v_max3_f32 v{vT0}, v{N_}, v{N_+1}, v{N_+2}")
            for i in range(3, 15, 2):
                k(f"v_max3_f32 v{vT0}, v{vT0}, v{N_+i}, v{N_+i+1}")
            k(f"v_max_f32 v{vT0}, v{vT0}, v{N_+15}")
            half_combine(k, [vT0], [vT1], op="v_max_f32")
            for i in range(16): k(f"v_sub_f32 v{N_+i}, 0, v{vT0}")
            if t == 0:
                k(f"s_waitcnt lgkmcnt(0)")
                k(f"s_nop 0")
                QK(vS[0], vKf[0], vQ[0], vr(vNM[0],16))
        e = lambda S, i, w="": k(f"v_exp_f32{w} v{S+i}, v{S+i}")
        A, B = vS[0], vS[1]
        LOOP = env("P2_LOOP", 32)
        FIX = "_e64" if env("P2_FIX", 1) else ""
        sPh = k.s()
        def step(st, unrolled, lastu):
            u = st % U; p = st & 1
            e(A,0); e(A,1)
            PV(vO[1], vV1[1-p], B+8)
            for i in range(2, 6): e(A,i)
            QK(B, vKf[p], vQ[1], vr(vNM[1],16))
            for i in range(6, 9): e(A,i)
            e(A, 9, FIX)
            k(f"s_waitcnt lgkmcnt(0)") if not FIX else None
            if FIX:
                k.lines.insert(len(k.lines)-1, "  s_waitcnt lgkmcnt(0)")
            PV(vO[0], vV0, A)
            for i in range(10, 16): e(A,i)
            e(B,0); e(B,1)
            PV(vO[0], vV1[p], A+8)
            for i in range(2, 6): e(B,i)
            if not (unrolled and st == 31): QK(A, vKf[1-p], vQ[0], vr(vNM[0],16))
            for i in range(6, 10): e(B,i)
            PV(vO[1], vV0, B)
            if not (unrolled and st == 31):
                k(f"ds_read_b128 {vr(vV0,4)}, v{vVa} offset:{(u+1)*2048}")
                k(f"ds_read_b128 {vr(vV1[1-p],4)}, v{vVa} offset:{(u+1)*2048+512}")
            if not (unrolled and st >= 30):
                k(f"ds_read_b128 {vr(vKf[p],4)}, v{vKa} offset:{(st+2)*2048}")
            elif st == 30:
                k(f"s_nop 0"); k(f"s_nop 0")
            for i in range(10, 12): e(B,i)
            if u == U-1: k(f"v_add_u32{FIX} v{vVa}, v{vVinc}, v{vVa}")
            if lastu:
                k(f"v_add_u32 v{vKa}, {LOOP*2048}, v{vKa}")
                k(f"s_sub_u32 s{k.sCnt}, s{k.sCnt}, 1")
                k(f"s_cmp_lg_u32 s{k.sCnt}, 0")
            for i in range(12, 16): e(B,i)
        if LOOP == 32:
            k(".p2align 3")
            for st in range(32):
                if st == 0 and env("P2_ST", 0): k.stamp("go"); k(".p2align 3")
                if st in self.BARS:
                    if env("P2_ST", 0): k.stamp(f"a{st}")
                    k(f"s_barrier")
                    if env("P2_ST", 0): k.stamp(f"b{st}")
                    k(".p2align 3")
                step(st, True, False)
        else:
            k(f"s_mov_b32 s{sPh}, 0")
            k(f"s_mov_b32 s{k.sCnt}, {self.BARS[0]//LOOP}")
            k(".p2align 3")
            k.label("loop")
            for st in range(LOOP): step(st, False, st == LOOP-1)
            k(f"s_cbranch_scc1 {k.L('loop')}")
            cn = [(b_ - a_)//LOOP for a_, b_ in zip(self.BARS, self.BARS[1:] + (32,))]
            k(f"s_cmp_ge_u32 s{sPh}, 3")
            k(f"s_cbranch_scc1 {k.L('fin')}")
            k(f"s_cmp_eq_u32 s{sPh}, 0")
            k(f"s_cselect_b32 s{k.sCnt}, {cn[0]}, {cn[1]}")
            k(f"s_cmp_eq_u32 s{sPh}, 2")
            k(f"s_cselect_b32 s{k.sCnt}, {cn[2]}, s{k.sCnt}")
            k(f"s_add_u32 s{sPh}, s{sPh}, 1")
            k(f"s_barrier")
            k(f"s_branch {k.L('loop')}")
            k.label("fin")
            k(f"s_waitcnt lgkmcnt(0)")
        k.stamp("loopend")
        k(f"s_mul_i32 s{T0}, s{k.sWave}, 2304")
        k(f"s_add_u32 s{T0}, s{T0}, {XCH}")
        PV(vO[1], vV1[1], vS[1]+8)
        k(f"v_add_u32 v{vT0}, s{T0}, v{vL16}")
        k(f"v_lshlrev_b32 v{vKa}, 2, v{vLane}")
        k(f"v_add_u32 v{vKa}, s{T0}, v{vKa}")
        k(f"s_xor_b32 s{T1}, s{k.sWave}, 4")
        k(f"s_mul_i32 s{T1}, s{T1}, 2304")
        k(f"s_add_u32 s{T1}, s{T1}, {XCH}")
        k(f"v_add_u32 v{vT1}, s{T1}, v{vL16}")
        k(f"v_lshlrev_b32 v{vVa}, 2, v{vLane}")
        k(f"v_add_u32 v{vVa}, s{T1}, v{vVa}")
        k(f"s_nop 2")
        k(f"s_cmp_eq_u32 s{sKh}, 0")
        k(f"s_cbranch_scc1 {k.L('kh0')}")
        k(f"ds_write_b128 v{vT0}, {vr(vO[0],4)}")
        k(f"ds_write_b128 v{vT0}, {vr(vO[0]+4,4)} offset:1024")
        k(f"ds_write_b32 v{vKa}, v{vO[0]+8} offset:2048")
        k(f"s_waitcnt lgkmcnt(0)")
        for i in range(9): k(f"v_mov_b32 v{vO[0]+i}, v{vO[1]+i}")
        for i in range(4): k(f"v_mov_b32 v{vQ[0]+i}, v{vQ[1]+i}")
        k(f"s_branch {k.L('xch')}")
        k.label("kh0")
        k(f"ds_write_b128 v{vT0}, {vr(vO[1],4)}")
        k(f"ds_write_b128 v{vT0}, {vr(vO[1]+4,4)} offset:1024")
        k(f"ds_write_b32 v{vKa}, v{vO[1]+8} offset:2048")
        k(f"s_waitcnt lgkmcnt(0)")
        k.label("xch")
        k(f"s_barrier")
        k.stamp("xch")
        k(f"ds_read_b128 {vr(vS[0],4)}, v{vT1}")
        k(f"ds_read_b128 {vr(vS[0]+4,4)}, v{vT1} offset:1024")
        k(f"ds_read_b32 v{vS[0]+8}, v{vVa} offset:2048")
        k(f"s_waitcnt lgkmcnt(0)")
        O = vO[0]
        for i in range(9): k(f"v_add_f32 v{O+i}, v{O+i}, v{vS[0]+i}")
        k(f"v_add_f32 v{vT0}, abs(v{O}), v{O+8}")
        for i in range(1, 8): k(f"v_add_f32 v{vT0}, abs(v{O+i}), v{vT0}")
        k(f"s_mov_b32 s{T0}, 0x71800000")
        k(f"v_cmp_gt_f32 vcc, s{T0}, v{vT0}")
        k(f"s_cmp_eq_u64 vcc, -1")
        k(f"s_cbranch_scc1 {k.L('store')}")
        sKV = sQo
        k(f"s_lshl_b32 s{sKV}, s{sHead}, 17")
        k(f"s_add_u32 s{sKV}, s{sKV}, {WS_KVF:#x}")
        k(f"s_mov_b32 s{k.sCnt}, 64")
        k(f"s_mov_b32 s{T1}, s{sKV}")
        k(f"v_mov_b32 v{vT0}, 0xff800000")
        k.label("fb1")
        k(f"buffer_load_dwordx4 {vr(vKf[0],4)}, v{vL16}, {WSr}, s{T1} offen{LD}")
        k(f"s_add_u32 s{T1}, s{T1}, 2048")
        k(f"s_waitcnt vmcnt(0)")
        QK(vS[0], vKf[0], vQ[0], "0")
        k(f"s_nop 15")
        for i in range(0, 16, 2): k(f"v_max3_f32 v{vT0}, v{vT0}, v{vS[0]+i}, v{vS[0]+i+1}")
        k(f"s_sub_u32 s{k.sCnt}, s{k.sCnt}, 1")
        k(f"s_cmp_lg_u32 s{k.sCnt}, 0")
        k(f"s_cbranch_scc1 {k.L('fb1')}")
        half_combine(k, [vT0], [vT1], op="v_max_f32")
        for i in range(16):
            k(f"v_sub_f32 v{vNM[0]+i}, 0, v{vT0}")
            k(f"v_mov_b32 v{O+i}, 0")
        for i in range(4):
            k(f"v_mov_b32 v{vV0+i}, 0x3f803f80")
            k(f"v_mov_b32 v{vV1[0]+i}, 0x3f803f80")
        k(f"s_mov_b32 s{k.sCnt}, 64")
        k.label("fb2")
        k(f"buffer_load_dwordx4 {vr(vKf[0],4)}, v{vL16}, {WSr}, s{sKV} offen{LD}")
        k(f"s_mov_b32 exec_lo, 0xffff")
        k(f"s_mov_b32 exec_hi, 0xffff")
        k(f"buffer_load_dwordx4 {vr(vV0,4)}, v{vVa0}, {WSr}, s{sKV} offen{LD}")
        k(f"buffer_load_dwordx4 {vr(vV1[0],4)}, v{vVa0}, {WSr}, s{sKV} offen offset:512{LD}")
        k(f"s_mov_b64 exec, -1")
        k(f"s_add_u32 s{sKV}, s{sKV}, 2048")
        k(f"s_waitcnt vmcnt(0)")
        QK(vS[0], vKf[0], vQ[0], vr(vNM[0],16))
        k(f"s_nop 15")
        for i in range(16): e(vS[0], i)
        k(f"s_nop 1")
        PV(O, vV0, vS[0])
        PV(O, vV1[0], vS[0]+8)
        k(f"s_nop 15")
        k(f"s_sub_u32 s{k.sCnt}, s{k.sCnt}, 1")
        k(f"s_cmp_lg_u32 s{k.sCnt}, 0")
        k(f"s_cbranch_scc1 {k.L('fb2')}")
        k.label("store")
        k(f"v_rcp_f32 v{vT1}, v{O+8}")
        k(f"s_nop 0")
        for i in range(8): k(f"v_mul_f32 v{O+i}, v{O+i}, v{vT1}")
        for i in range(4): k(f"v_cvt_pk_bf16_f32 v{vKf[0]+i}, v{O+2*i}, v{O+2*i+1}")
        k(f"buffer_store_dwordx4 {vr(vKf[0],4)}, v{vL16}, {WSr}, s{sOoff} offen{SC}")
        k.stamp("stored")
        if not last:
            if first: nonce_fetch(k, vS[0])
            publish(k, sFl, vT0, vS[0], R2)
            k.stamp("flag")
        k.reset(m)
    BARS = {32: (2, 8, env('P2_B3', 24)), 4: (4, 8, 24), 8: (8, 16, 24)}[env('P2_LOOP', 32)]

    def l_pre(self, k): k.reset(k.lbase)
    def l(self, k, first, last, next_pre):
        k.pfx = "p2l_"
        LD = "" if first else SCOPE_LD
        T0, T1 = k.sT0, k.sT1; WSr = sr(k.sWS, 4); vL16 = k.vL16; sLw = k.sLw
        self.roles(k)
        sKV = k.s(); sOff = k.s(); sPF = k.s(4, 4); sId = k.s()
        vT0 = k.v(); vT1 = k.v()
        k(f"s_lshl_b32 s{sKV}, s{self.sHead}, 17")
        k(f"s_and_b32 s{T0}, s{sLw}, 1")
        k(f"s_lshl_b32 s{T0}, s{T0}, 10")
        k(f"s_add_u32 s{sKV}, s{sKV}, s{T0}")
        k(f"s_add_u32 s{sKV}, s{sKV}, {WS_KVF:#x}")
        k(f"s_lshr_b32 s{T1}, s{sLw}, 1")
        k(f"s_lshl_b32 s{T1}, s{T1}, 16")
        k(f"s_add_u32 m0, s{T1}, s{T0}")
        k(f"s_lshl_b32 s{sOff}, s{self.sQb}, 14")
        k(f"s_add_u32 s{sOff}, s{sOff}, s{T1}")
        if first: k.ptrs_ready()
        else:
            if env('P2_LP', 0):
                vP_ = k.v(2, 2)
                k(f"s_cmp_lg_u32 s{sLw}, 0")
                k(f"s_cbranch_scc1 {k.L('nopoll')}")
                k(f"s_lshl_b32 s{sId}, s{k.sX}, 5")
                rep_off(k, sId, k.sJ, R1)
                poll(k, "poll", sId, vT0, vP_, n=32)
                k.label("nopoll")
            k(f"s_barrier")
        def issue2():
            k(f"s_and_b32 s{sOff}, s{sOff}, 0x1ffff")
            k(f"s_add_u32 s{T0}, s{sOff}, s{sKV}")
            k(f"buffer_load_dwordx4 v{vL16}, {WSr}, s{T0} offen{LD}{env('KV_NT', '')} lds")
            k(f"buffer_load_dwordx4 v{vL16}, {WSr}, s{T0} offen offset:2048{LD}{env('KV_NT', '')} lds")
            k(f"s_add_u32 m0, m0, 4096")
            k(f"s_add_u32 s{sOff}, s{sOff}, 4096")
        n0 = self.BARS[0] + 2; n1 = self.BARS[1] + 2
        i0 = n0//2 + 1; i1 = min(16, n1//2 + 2)
        for i in range(i0): issue2()
        k(f"s_waitcnt vmcnt({2*i0 - n0})")
        k(f"s_barrier")
        for i in range(i1 - i0): issue2()
        k(f"s_waitcnt vmcnt({2*i1 - n1})")
        k(f"s_barrier")
        for i in range(16 - i1): issue2()
        nt = [0]
        PF = env("P2_PF", "sUixo")
        k(f"s_lshl_b32 s{sId}, s{k.sJ}, 2")
        k(f"s_add_u32 s{sId}, s{sId}, s{sLw}")
        def touch(ka, size, per_wave, xcd_stride, xmask=7):
            k.srd(sPF, k.ptr(ka), size)
            k(f"s_mul_i32 s{T0}, s{sId}, {per_wave}")
            if xcd_stride:
                k(f"s_and_b32 s{T1}, s{k.sX}, {xmask}")
                k(f"s_mul_i32 s{T1}, s{T1}, {xcd_stride}")
                k(f"s_add_u32 s{T0}, s{T0}, s{T1}")
            stride = min(128, per_wave//64)
            n = -(-per_wave//(64*stride))
            k(f"v_mul_u32_u24 v{vT0}, {stride}, v{k.vLane}")
            for i in range(n):
                k(f"buffer_load_dword v{k.vDump}, v{vT0}, {sr(sPF,4)}, s{T0} offen")
                nt[0] += 1
                if i < n-1: k(f"s_add_u32 s{T0}, s{T0}, {64*stride}")
        k(f"s_waitcnt vmcnt(0)")
        k.stamp("kvin")
        k(f"s_barrier")
        k.stamp("b8")
        if "o" in PF: touch(KA_WO, D*D*2, 4096, 0)
        if self.p4:
            self.p4.stage_regs(k)
            k.pfx = "p2l_"
        k.stamp("staged")
        if "s" in PF:
            if P5N and env("P5_MAP", 1): touch(KA_WSP, T*T*2, 16384, 2097152, 3)
            else: touch(KA_WSP, T*T*2, 8192, 1048576)
        if "S" in PF: touch(KA_WSP, T*T*2, 8192, 1048576)
        if "u" in PF: touch(KA_WOUT, FH*D*2, 1024, 131072)
        if "U" in PF: touch(KA_WOUT, FH*D*2, 8192, 0)
        if "i" in PF and not self.p4: touch(KA_WIN, D*F*2, 16384, 0)
        if "x" in PF: touch(KA_X, T*D*2, 2048, 262144)
        if last: k(f"s_barrier")
        if not last:
            k(f"s_cmp_lg_u32 s{sLw}, 3")
            k(f"s_cbranch_scc1 {k.L('nowarm')}")
            warm(k, vT0, k.vDump, env("WARM2", "a"))
            if env("WO2", 0): warm_out(k, vT0, k.vDump, env("WO2", 0))
            k.label("nowarm")
            k.stamp("touched")
            k(f"s_barrier")
            PF2 = env("P2_PF2", "")
            if "s" in PF2: touch(KA_WSP, T*T*2, 16384, 2097152, 3)
            if "U" in PF2: touch(KA_WOUT, FH*D*2, 8192, 0)
            next_pre(k)
            k(f"s_barrier")
            k.stamp("done2")
    p4 = None
```
